```python
import torch

def _softmax(x, axis=-1):
    return torch.softmax(x, dim=axis)
def _gelu(x):
    return torch.nn.functional.gelu(x, approximate="tanh")
def _silu(x):
    return torch.nn.functional.silu(x)
def _sigmoid(x):
    return torch.sigmoid(x)
def _layernorm(x, axis=-1, eps=1e-5):
    m = x.mean(dim=axis, keepdim=True)
    v = x.var(dim=axis, keepdim=True, unbiased=False)
    return (x - m) / torch.sqrt(v + eps)
def _scatter_add(tgt, idx, src, axis=0):
    return tgt.clone().index_add_(axis, idx, src)
def _segment_sum(src, seg, n):
    out = torch.zeros((n,) + src.shape[1:], dtype=src.dtype)
    return out.index_add_(0, seg, src)
def _pad(x, pw):
    flat = tuple(v for pair in reversed(pw) for v in pair)
    return torch.nn.functional.pad(x, flat)

kernel_name = 'parallel_sum__sliding_block__swiglu_ffn__prompt'

def setup_inputs():

    _w = (lambda a: (lambda t: t.to(torch.bfloat16) if t.is_floating_point() else t)(torch.as_tensor(a)))
    def _A_setup():
        B, S, D = 1, 2048, 512
        return {
            "x": _w((lambda *s: torch.randn(*s, dtype=torch.bfloat16) * 0.05)(B, S, D)),
            "wqkv": _w((lambda *s: torch.randn(*s, dtype=torch.bfloat16) * 0.05)(D, 3 * D)),
            "wo": _w((lambda *s: torch.randn(*s, dtype=torch.bfloat16) * 0.1)(D, D)),
        }
    _A_in = _A_setup()

    def _B_setup():
        B, S, D, F = 1, 2048, 512, 1792
        return {
            "x": _w((lambda *s: torch.randn(*s, dtype=torch.bfloat16) * 0.05)(B, S, D)),
            "w_gate": _w((lambda *s: torch.randn(*s, dtype=torch.bfloat16) * 0.05)(D, F)),
            "w_up": _w((lambda *s: torch.randn(*s, dtype=torch.bfloat16) * 0.05)(D, F)),
            "w_down": _w((lambda *s: torch.randn(*s, dtype=torch.bfloat16) * 0.05)(F, D)),
        }
    _B_in = _B_setup()

    return {
        "A_x": _A_in["x"],
        "A_wqkv": _A_in["wqkv"],
        "A_wo": _A_in["wo"],
        "B_x": _B_in["x"],
        "B_w_gate": _B_in["w_gate"],
        "B_w_up": _B_in["w_up"],
        "B_w_down": _B_in["w_down"],
    }

def reference(A_x, A_wqkv, A_wo, B_x, B_w_gate, B_w_up, B_w_down):
    def _A_ref(x, wqkv, wo):
        B, S, D = x.shape
        H = 32; Dh = D // H; W = 256
        qkv = (lambda x, *d: x.permute(*d))((x @ wqkv).reshape(B, S, 3, H, Dh), 2, 0, 3, 1, 4)
        q, k, v = qkv[0], qkv[1], qkv[2]
        scores = torch.einsum("bhqd,bhkd->bhqk", q, k) * (Dh ** -0.5)
        idx = torch.arange(S)
        mask = (idx[:, None] - idx[None, :] >= 0) & (idx[:, None] - idx[None, :] < W)
        scores = torch.where(mask[None, None], scores, -1e9)
        p = _softmax(scores, axis=-1)
        o = torch.einsum("bhqk,bhkd->bhqd", p, v)
        return (lambda x, *d: x.permute(*d))(o, 0, 2, 1, 3).reshape(B, S, D) @ wo

    def _B_ref(x, w_gate, w_up, w_down):
        g = _silu(x @ w_gate)
        u = x @ w_up
        return (g * u) @ w_down

    x = A_x
    xn = _layernorm(x, axis=-1)
    return x + _A_ref(xn, A_wqkv, A_wo) + _B_ref(xn, B_w_gate, B_w_up, B_w_down)
```

```python
class Asm:
    def __init__(self):
        self.lines = []
        self._lab = 0

    def __call__(self, s, *a):
        if a:
            s = s % a
        self.lines.append("    " + s)

    def raw(self, s):
        self.lines.append(s)

    def label(self, name):
        self.lines.append(name + ":")

    def newlabel(self, base="L"):
        self._lab += 1
        return "%s_%d" % (base, self._lab)

    def comment(self, s):
        self.lines.append("    ; " + s)

    def text(self):
        return "\n".join(self.lines) + "\n"


def v(i, n=1):
    return "v%d" % i if n == 1 else "v[%d:%d]" % (i, i + n - 1)

def a(i, n=1):
    return "a%d" % i if n == 1 else "a[%d:%d]" % (i, i + n - 1)

def s(i, n=1):
    return "s%d" % i if n == 1 else "s[%d:%d]" % (i, i + n - 1)

def r(i, n=1):
    if i >= 256:
        return a(i - 256, n)
    assert i + n <= 256
    return v(i, n)


def kernel_header(name):
    return """.text
.globl %s
.p2align 8
.type %s,@function
%s:
""" % (name, name, name)


def kernel_desc(name, vgpr, sgpr, accum, kernarg=80, wgy=False):
    t = """.section .rodata,"a"
.p2align 6
.amdhsa_kernel %s
  .amdhsa_next_free_vgpr %d
  .amdhsa_next_free_sgpr %d
  .amdhsa_accum_offset %d
  .amdhsa_group_segment_fixed_size 0
  .amdhsa_kernarg_size %d
  .amdhsa_user_sgpr_count 2
  .amdhsa_user_sgpr_kernarg_segment_ptr 1
  .amdhsa_system_sgpr_workgroup_id_x 1
""" % (name, vgpr, sgpr, accum, kernarg)
    if wgy:
        t += "  .amdhsa_system_sgpr_workgroup_id_y 1\n"
    t += ".end_amdhsa_kernel\n"
    return t
```

```python
import re

TRANS = ("v_exp_f32", "v_log_f32", "v_rcp_f32", "v_rsq_f32", "v_sqrt_f32", "v_sin_f32", "v_cos_f32", "v_rcp_iflag_f32")
VCC, M0, EXEC = 2000, 2002, 2003

def regs(tok):
    tok = tok.strip()
    tok = tok.lstrip("-").strip()
    m = re.match(r"^\|(.*)\|$", tok)
    if m: tok = m.group(1)
    m = re.match(r"^abs\((.*)\)$", tok)
    if m: tok = m.group(1)
    m = re.match(r"^([vas])(\d+)$", tok)
    if m:
        b = {"v": 0, "a": 256, "s": 1000}[m.group(1)]
        return {b + int(m.group(2))}
    m = re.match(r"^([vas])\[(\d+):(\d+)\]$", tok)
    if m:
        b = {"v": 0, "a": 256, "s": 1000}[m.group(1)]
        return set(range(b + int(m.group(2)), b + int(m.group(3)) + 1))
    if tok in ("vcc", "vcc_lo", "vcc_hi"): return {VCC}
    if tok == "m0": return {M0}
    if tok in ("exec", "exec_lo", "exec_hi"): return {EXEC}
    return set()

def isvec(r): return r < 512
def issg(r): return r >= 1000

class I:
    def __init__(self, line):
        self.line = line
        t = line.split(";")[0].strip()
        self.op = t.split()[0] if t else ""
        rest = t[len(self.op):].strip()
        ops = []; depth = 0; cur = ""
        for ch in rest:
            if ch == "[": depth += 1
            if ch == "]": depth -= 1
            if ch == "," and depth == 0:
                ops.append(cur.strip()); cur = ""
            else:
                cur += ch
        if cur.strip(): ops.append(cur.strip())
        mods = ""
        if ops:
            last = ops[-1].split()
            if len(last) > 1:
                ops[-1] = last[0]; mods = " ".join(last[1:])
        self.ops = ops; self.mods = mods
        op = self.op
        self.kind = "other"
        self.w = set(); self.r = set(); self.A = set(); self.B = set(); self.C = set()
        self.states = 1
        self.passes = 0
        self.store_data = set()
        if op == "s_nop":
            self.states = int(ops[0], 0) + 1; self.kind = "salu"
        elif op.startswith("v_mfma"):
            self.kind = "mfma"
            self.w = regs(ops[0]); self.A = regs(ops[1]); self.B = regs(ops[2]); self.C = regs(ops[3])
            self.r = self.A | self.B | self.C
            self.passes = 8 if "32x32" in op else 4
        elif op.startswith("v_"):
            self.kind = "valu"
            if op.startswith("v_permlane") and "swap" in op:
                self.w = regs(ops[0]) | regs(ops[1]); self.r = set(self.w)
            elif op.startswith("v_cmpx"):
                self.w = regs(ops[0]) | {EXEC}
                for o in ops[1:]: self.r |= regs(o)
            elif "_co_" in op:
                self.w = regs(ops[0]) | regs(ops[1])
                for o in ops[2:]: self.r |= regs(o)
            else:
                self.w = regs(ops[0])
                for o in ops[1:]: self.r |= regs(o)
                if op.startswith(("v_fmac", "v_dot2c", "v_writelane", "v_mac")): self.r |= self.w
                if "dst_unused:UNUSED_PRESERVE" in mods: self.r |= self.w
        elif op.startswith("ds_"):
            self.kind = "ds"
            if op.startswith(("ds_read", "ds_bpermute", "ds_permute", "ds_swizzle")) or "_rtn" in op:
                self.w = regs(ops[0])
                for o in ops[1:]: self.r |= regs(o)
            else:
                for o in ops: self.r |= regs(o)
        elif op.startswith(("buffer_", "global_", "flat_")):
            self.kind = "vmem"
            islds = re.search(r"\blds\b", mods) is not None or "load_lds" in op
            self.islds = islds
            if op in ("buffer_wbl2", "buffer_inv"):
                pass
            elif "load" in op and not islds:
                self.w = regs(ops[0])
                for o in ops[1:]: self.r |= regs(o)
            elif islds:
                for o in ops: self.r |= regs(o)
                self.r |= {M0}
            else:
                for o in ops: self.r |= regs(o)
                if "store" in op and ("x4" in op or "x3" in op):
                    self.store_data = regs(ops[0]) if op.startswith("buffer") else regs(ops[1])
                if "atomic" in op and "sc0" in mods:
                    self.w = regs(ops[0])
        elif op.startswith("s_"):
            self.kind = "salu"
            if op.startswith(("s_cmp", "s_cbranch", "s_branch", "s_waitcnt", "s_barrier", "s_endpgm", "s_setprio", "s_sleep")):
                for o in ops: self.r |= regs(o)
            elif ops:
                self.w = regs(ops[0])
                for o in ops[1:]: self.r |= regs(o)
                if "saveexec" in op: self.w |= {EXEC}
        self.dpp = any(k in mods for k in ("row_shr", "row_shl", "row_ror", "quad_perm", "row_bcast", "row_mirror", "row_half_mirror", "wave_", "row_newbcast"))

def need(p, c):
    n = 0
    if p.kind == "valu":
        vw = {x for x in p.w if isvec(x)}
        sw = {x for x in p.w if issg(x)}
        if c.kind == "mfma" and vw & c.r: n = max(n, 2)
        if c.kind == "mfma" and EXEC in p.w: n = max(n, 4)
        if c.kind == "vmem" and sw & c.r: n = max(n, 5)
        if c.kind == "valu":
            if sw & c.r:
                n = max(n, 4 if c.op.startswith(("v_readlane", "v_writelane")) else 2)
            if c.op.startswith("v_permlane") and vw & c.r: n = max(n, 2)
            if c.dpp and vw & c.r: n = max(n, 2)
            if c.op.startswith(("v_readlane", "v_readfirstlane")) and vw & c.r: n = max(n, 1)
            if p.op.startswith(TRANS) and not c.op.startswith(TRANS) and vw & c.r: n = max(n, 1)
            if EXEC in p.w and (c.dpp or c.op.startswith(("v_readlane", "v_readfirstlane", "v_writelane", "v_permlane"))): n = max(n, 5)
            if ("sdwa" in p.op or "op_sel" in p.mods) and not p.op.startswith("v_pk") and vw & (c.r | c.w): n = max(n, 1)
        if c.kind == "salu" and sw & c.r: n = max(n, 1)
    if p.kind == "mfma":
        big = p.passes == 8
        if c.kind == "mfma":
            if p.w & (c.A | c.B): n = max(n, 12 if big else 8)
            if p.w & c.C:
                if not (p.w == c.C and p.passes == c.passes): n = max(n, 10 if big else 6)
            elif p.w & c.w:
                n = max(n, 10 if big else 6) if p.w != c.w else n
        elif c.kind in ("valu", "vmem", "ds"):
            if p.w & (c.r | c.w): n = max(n, 12 if big else 8)
            if c.kind == "valu" and p.C & c.w: n = max(n, 7 if big else 3)
    if p.kind == "salu":
        if M0 in p.w and c.kind == "vmem" and getattr(c, "islds", False): n = max(n, 1)
    if p.kind == "vmem" and p.store_data:
        if p.store_data & c.w: n = max(n, 2 if c.kind == "valu" else 1)
    return n

MAXD = 14

def fix(lines, verbose=False):
    out = []
    hist = []
    labels = {}
    pending = {}
    alts = []
    nins = 0
    def dist1(h, c):
        d = 0; req = 0
        for p in reversed(h):
            if d >= MAXD: break
            k = need(p, c)
            if k - d > req: req = k - d
            d += p.states
        return req
    def dist_check(c):
        return max([dist1(hist, c)] + [dist1(h, c) for h in alts])
    for ln in lines:
        t = ln.split(";")[0].strip()
        if not t or t.startswith("."):
            out.append(ln); continue
        if t.endswith(":"):
            labels[t[:-1]] = len(out)
            alts.extend(pending.pop(t[:-1], []))
            out.append(ln); continue
        c = I(ln)
        req = dist_check(c)
        if req > 0:
            nop = "    s_nop %d ; hazard" % (req - 1)
            out.append(nop); hist.append(I(nop)); nins += 1
            for h in alts: h.append(I(nop))
        out.append(ln); hist.append(c)
        for h in alts: h.append(c)
        alts[:] = [h for h in alts if len(h) < 60 + MAXD and not (len(h) >= MAXD and h[-MAXD] is hist[-MAXD] )] if len(hist) >= MAXD else alts
        if c.op in ("s_branch", "s_endpgm"):
            if c.op == "s_branch" and c.ops[0] not in labels:
                pending.setdefault(c.ops[0], []).append(list(hist[-40:]))
                hist = []
                continue
        if c.op.startswith("s_cbranch") and c.ops and c.ops[0] not in labels:
            pending.setdefault(c.ops[0], []).append(list(hist[-40:]))
        if c.op.startswith(("s_cbranch", "s_branch")) and c.ops:
            tgt = c.ops[0]
            if tgt in labels:
                h2 = list(hist); d = 0
                for l2 in out[labels[tgt]:]:
                    t2 = l2.split(";")[0].strip()
                    if not t2 or t2.startswith(".") or t2.endswith(":"): continue
                    c2 = I(l2)
                    dd = 0; rq = 0
                    for p in reversed(h2):
                        if dd >= MAXD: break
                        k = need(p, c2)
                        if k - dd > rq: rq = k - dd
                        dd += p.states
                    if rq > 0:
                        raise RuntimeError("hazard across back-edge to %s at '%s' needs %d more" % (tgt, l2.strip(), rq))
                    h2.append(c2); d += c2.states
                    if d >= MAXD: break
        if len(hist) > 64: hist = hist[-40:]
    if verbose: print("hazard nops inserted:", nins)
    return out
```

```python
import sys
from asmlib import *
import hazard

NAME = "parallel_sum__sliding_block__swiglu_ffn__prompt"
A2F = 0
QF = 0x1000000
KF = QF + 0x200000
VF = QF + 0x400000
WS_BYTES = 0x1600000
LOG2E = 1.4426950408889634

import struct
def f32(x):
    return "0x%08x" % struct.unpack("<I", struct.pack("<f", x))[0]

class VM:
    def __init__(self, A):
        self.A = A; self.ops = []; self.done = -1
    def issue(self, text, tag):
        self.A(text); self.ops.append(tag)
    def wait(self, tag, extra=""):
        idx = max(i for i, t in enumerate(self.ops) if t == tag)
        if idx <= self.done: return
        n = len(self.ops) - 1 - idx
        assert n <= 63, n
        self.done = idx
        self.A("s_waitcnt vmcnt(%d)%s" % (n, extra))

def srd(A, d, lo, nbytes):
    A("s_mov_b32 s%d, s%d" % (d, lo)); A("s_mov_b32 s%d, s%d" % (d + 1, lo + 1))
    A("s_mov_b32 s%d, 0x%x" % (d + 2, nbytes)); A("s_mov_b32 s%d, 0x20000" % (d + 3))

MF = "v_mfma_f32_32x32x16_bf16"

def gen_k1():
    A = Asm(); vm = VM(A)
    X = 128; ACC = 64; T = 16
    vLane, vL16 = 1, 2
    vRA = [3, 4, 5]; vRB = [6, 7, 8]; vRP = [9, 10, 11]
    vDQ = [48, 49, 50, 51]; vDG = [52, 53, 54, 55]; vDP = [56, 57, 58, 59]
    sW, sRB, sIQ = 24, 25, 26
    sXS, sWQ, sGU, sWS = 8, 12, 16, 20
    sQ, sV, sG2a, sG2b, sG1 = 27, 28, 29, 30, 31
    sLW = 32
    sHa, sHb, sH1 = 33, 34, 35
    sBLK = 36; sTmp = 37; sTmp2 = 38; sTy = 39
    A("s_cmp_ge_u32 s2, 256"); A("s_cbranch_scc1 K1_end")
    A("s_load_dwordx4 s[40:43], s[0:1], 0")
    A("s_load_dwordx4 s[44:47], s[0:1], 32")
    A("s_load_dwordx2 s[48:49], s[0:1], 72")
    A("v_lshrrev_b32 v3, 6, v0")
    A("v_and_b32 v%d, 63, v0" % vLane)
    A("v_readfirstlane_b32 s%d, v3" % sW)
    A("v_lshlrev_b32 v%d, 4, v%d" % (vL16, vLane))
    A("s_and_b32 s3, s2, 7"); A("s_lshr_b32 s4, s2, 3")
    A("s_and_b32 s5, s3, 1"); A("s_lshl_b32 s5, s5, 3"); A("s_and_b32 s6, s4, 7"); A("s_add_u32 s%d, s5, s6" % sRB)
    A("s_lshr_b32 s5, s3, 1"); A("s_lshl_b32 s5, s5, 1")
    A("s_lshr_b32 s6, s4, 3")
    A("s_lshr_b32 s%d, s6, 1" % sTy)
    A("s_and_b32 s6, s6, 1"); A("s_add_u32 s%d, s5, s6" % sIQ)
    A("s_lshl_b32 s%d, s%d, 13" % (sLW, sW))
    A("s_lshl_b32 s%d, s%d, 2" % (sBLK, sRB)); A("s_add_u32 s%d, s%d, s%d" % (sBLK, sBLK, sW))
    A("s_waitcnt lgkmcnt(0)")
    srd(A, sXS, 40, 2048 * 1024); srd(A, sWQ, 42, 512 * 3072); srd(A, sWS, 48, WS_BYTES)
    A("s_cmp_ge_u32 s%d, 2" % sW)
    A("s_cselect_b32 s%d, s46, s44" % sGU); A("s_cselect_b32 s%d, s47, s45" % (sGU + 1))
    A("s_mov_b32 s%d, %d" % (sGU + 2, 512 * 3584)); A("s_mov_b32 s%d, 0x20000" % (sGU + 3))
    A("s_lshl_b32 s5, s%d, 15" % sBLK)
    A("s_lshl_b32 s6, s%d, 15" % sW); A("s_add_u32 s6, s6, 32768")
    for r in range(32):
        if r % 4 == 0:
            A("s_add_u32 m0, s6, %d" % (r * 1024)); A("s_add_u32 s7, s5, %d" % (r * 1024))
        A("v_xor_b32 v%d, %d, v%d" % (T + (r % 4), (r & 15) << 4, vL16))
        vm.issue("buffer_load_dwordx4 v%d, s[%d:%d], s7 offen offset:%d lds" % (T + (r % 4), sXS, sXS + 3, (r % 4) * 1024), "x%d" % (r // 8))
    A("v_lshrrev_b32 v16, 3, v%d" % vLane)
    A("v_and_b32 v17, 7, v%d" % vLane)
    A("v_bfe_u32 v18, v%d, 4, 1" % vLane); A("v_lshlrev_b32 v18, 2, v18"); A("v_xor_b32 v17, v17, v18")
    A("v_lshlrev_b32 v17, 4, v17")
    A("v_mul_u32_u24 v18, 3072, v16"); A("v_add_u32 v%d, v18, v17" % vDQ[0])
    A("v_mul_u32_u24 v18, 3584, v16"); A("v_add_u32 v%d, v18, v17" % vDG[0])
    A("v_lshrrev_b32 v16, 2, v%d" % vLane); A("v_and_b32 v17, 3, v%d" % vLane); A("v_lshlrev_b32 v17, 4, v17")
    A("v_mul_u32_u24 v18, 3584, v16"); A("v_add_u32 v%d, v18, v17" % vDP[0])
    for j in range(1, 4):
        A("v_add_u32 v%d, %d, v%d" % (vDQ[j], j * (8 * 3072 - 1024), vDQ[0]))
        A("v_add_u32 v%d, %d, v%d" % (vDG[j], j * (8 * 3584 - 1024), vDG[0]))
        A("v_add_u32 v%d, %d, v%d" % (vDP[j], j * (16 * 3584 - 1024), vDP[0]))
    A("v_lshrrev_b32 v16, 5, v%d" % vLane); A("v_lshlrev_b32 v16, 3, v16")
    A("v_bfe_u32 v17, v%d, 2, 2" % vLane); A("v_add_u32 v16, v16, v17")
    A("v_bfe_u32 v17, v%d, 4, 1" % vLane); A("v_lshlrev_b32 v17, 5, v17")
    A("v_and_b32 v18, 3, v%d" % vLane); A("v_lshlrev_b32 v18, 3, v18"); A("v_add_u32 v17, v17, v18")
    A("v_lshl_add_u32 v%d, v16, 6, v17" % vRP[0])
    A("v_bfe_u32 v18, v16, 1, 1"); A("v_lshlrev_b32 v18, 6, v18"); A("v_add_u32 v17, v17, v18")
    A("v_lshl_add_u32 v%d, v16, 7, v17" % vRA[0])
    A("v_xor_b32 v%d, 64, v%d" % (vRB[0], vRA[0]))
    for j in (1, 2):
        for R in (vRA, vRB, vRP):
            A("v_add_u32 v%d, %d, v%d" % (R[j], j * 65536, R[0]))
    A("s_and_b32 s5, s%d, 1" % sW); A("s_lshr_b32 s6, s%d, 1" % sW)
    A("s_lshl_b32 s7, s%d, 7" % sIQ)
    A("s_mul_i32 s%d, s5, %d" % (sQ, 64 * 3072)); A("s_lshl_b32 s3, s6, 10"); A("s_add_u32 s%d, s%d, s3" % (sQ, sQ)); A("s_add_u32 s%d, s%d, s7" % (sQ, sQ))
    A("s_mul_i32 s%d, s%d, %d" % (sV, sW, 64 * 3072)); A("s_add_u32 s%d, s%d, s7" % (sV, sV)); A("s_add_u32 s%d, s%d, 2048" % (sV, sV))
    A("s_mul_i32 s3, s%d, 320" % sIQ); A("s_add_u32 s3, s3, 1024")
    A("s_and_b32 s4, s%d, 1" % sIQ); A("s_lshl_b32 s4, s4, 6"); A("s_add_u32 s%d, s3, s4" % sHa)
    A("s_add_u32 s%d, s%d, 128" % (sHb, sHa))
    A("s_lshl_b32 s4, s4, 2"); A("s_sub_u32 s4, 256, s4"); A("s_add_u32 s%d, s3, s4" % sH1)
    A("s_cmp_eq_u32 s%d, 0" % sTy); A("s_cselect_b32 s%d, s7, s%d" % (sHa, sHa))
    A("s_mul_i32 s3, s5, %d" % (64 * 3584))
    A("s_add_u32 s%d, s3, s%d" % (sG2a, sHa)); A("s_add_u32 s%d, s3, s%d" % (sG2b, sHb))
    A("s_lshl_b32 s3, s3, 1"); A("s_add_u32 s%d, s3, s%d" % (sG1, sH1))
    A("s_mul_i32 s3, s%d, %d" % (sBLK, 144 * 1024))
    for sr in (sHa, sHb, sH1):
        A("s_lshl_b32 s%d, s%d, 5" % (sr, sr)); A("s_add_u32 s%d, s%d, s3" % (sr, sr))

    def dma_stage(kind, t, slot, tag):
        res = []
        for i in range(8):
            grp, j = i // 4, i % 4
            def f(grp=grp, j=j):
                if kind == "QK": base, add, srd_, vd = sQ, (128 * t + 32 * grp) * 3072, sWQ, vDQ
                elif kind == "V": base, add, srd_, vd = sV, (256 * t + 32 * grp) * 3072, sWQ, vDQ
                elif kind == "Pa": base, add, srd_, vd = sG2a, (128 * t + 32 * grp) * 3584, sGU, vDG
                elif kind == "Pb": base, add, srd_, vd = sG2b, (128 * t + 32 * grp) * 3584, sGU, vDG
                elif kind == "P1": base, add, srd_, vd = sG1, (256 * t + 64 * grp) * 3584, sGU, vDP
                if j == 0:
                    A("s_add_u32 m0, s%d, %d" % (sLW, slot * 32768 + grp * 4096))
                    A("s_add_u32 s%d, s%d, %d" % (sTmp, base, add))
                vm.issue("buffer_load_dwordx4 v%d, s[%d:%d], s%d offen offset:%d lds" % (vd[j], srd_, srd_ + 3, sTmp, j * 1024), tag)
            res.append(f)
        return res

    def quad(kind, t, slot, q):
        res = []
        sb = slot * 32768; bi = sb // 65536; so = sb % 65536
        for j in range(4):
            if kind in ("QK", "Pa", "Pb"):
                res.append((j, 8 * t + q, (vRA if j % 2 == 0 else vRB)[bi], so + (j >> 1) * 16384 + q * 2048, 512))
            elif kind == "V":
                kk = 2 * q + (j >> 1)
                res.append((j & 1, 16 * t + kk, (vRA if j % 2 == 0 else vRB)[bi], so + kk * 2048, 512))
            else:
                kk = 2 * q + (j >> 1)
                res.append((j & 1, 16 * t + kk, vRP[bi], so + (j & 1) * 16384 + kk * 1024, 256))
        return res

    def rd(q4, j, buf):
        _, _, ar, off, d2 = q4[j]
        A("ds_read_b64_tr_b16 %s, v%d offset:%d" % (a(buf * 16 + j * 4, 2), ar, off))
        A("ds_read_b64_tr_b16 %s, v%d offset:%d" % (a(buf * 16 + j * 4 + 2, 2), ar, off + d2))

    def epi_swiglu(ncf, goff, uoff, sH):
        for cf in range(ncf):
            for hf in range(2):
                g0 = ACC + goff + cf * 16 + hf * 8; u0 = ACC + uoff + cf * 16 + hf * 8
                for i in range(8): A("v_mul_f32 v%d, %s, v%d" % (T + i, f32(-LOG2E), g0 + i))
                for i in range(8): A("v_exp_f32 v%d, v%d" % (T + i, T + i))
                for i in range(8): A("v_mul_f32 v%d, v%d, v%d" % (T + 8 + i, g0 + i, u0 + i))
                for i in range(8): A("v_add_f32 v%d, 1.0, v%d" % (T + i, T + i))
                for i in range(8): A("v_rcp_f32 v%d, v%d" % (T + i, T + i))
                for i in range(8): A("v_mul_f32 v%d, v%d, v%d" % (T + i, T + i, T + 8 + i))
                P = T + 16 + ((cf * 2 + hf) % 2) * 4
                for i in range(4): A("v_cvt_pk_bf16_f32 v%d, v%d, v%d" % (P + i, T + 2 * i, T + 2 * i + 1))
                vm.issue("buffer_store_dwordx4 %s, v%d, s[%d:%d], s%d offen offset:%d" % (v(P, 4), vL16, sWS, sWS + 3, sH, (cf * 2 + hf) * 1024), "st")

    def epi_qk():
        A("s_lshl_b32 s3, s%d, 18" % sIQ); A("s_lshl_b32 s4, s%d, 10" % sBLK); A("s_add_u32 s3, s3, s4")
        n = 0
        for f in range(4):
            for hf in range(2):
                r0 = ACC + f * 16 + hf * 8
                P = T + 16 + (n % 2) * 4; n += 1
                if f < 2:
                    for i in range(8): A("v_mul_f32 v%d, %s, v%d" % (r0 + i, f32(0.25 * LOG2E), r0 + i))
                for i in range(4): A("v_cvt_pk_bf16_f32 v%d, v%d, v%d" % (P + i, r0 + 2 * i, r0 + 2 * i + 1))
                A("s_add_u32 s4, s3, 0x%x" % ((QF if f < 2 else KF) + (2 * (f & 1) + hf) * 65536))
                vm.issue("buffer_store_dwordx4 %s, v%d, s[%d:%d], s4 offen" % (v(P, 4), vL16, sWS, sWS + 3), "st")

    def epi_v():
        A("s_lshl_b32 s3, s%d, 18" % sIQ); A("s_lshl_b32 s4, s%d, 11" % sBLK); A("s_add_u32 s3, s3, s4")
        n = 0
        for f in range(2):
            A("s_add_u32 s4, s3, 0x%x" % (VF + f * 131072))
            for hf in range(2):
                r0 = ACC + f * 16 + hf * 8
                P = T + 16 + (n % 2) * 4; n += 1
                for i in range(4): A("v_cvt_pk_bf16_f32 v%d, v%d, v%d" % (P + i, r0 + 2 * i, r0 + 2 * i + 1))
                vm.issue("buffer_store_dwordx4 %s, v%d, s[%d:%d], s4 offen offset:%d" % (v(P, 4), vL16, sWS, sWS + 3, hf * 1024), "st")

    def layernorm(stage_dmas):
        A("v_and_b32 v16, 31, v%d" % vLane); A("v_lshrrev_b32 v17, 5, v%d" % vLane)
        A("v_and_b32 v18, 15, v16"); A("v_xor_b32 v18, v18, v17"); A("v_lshlrev_b32 v18, 4, v18")
        A("v_lshl_add_u32 v18, v16, 10, v18")
        A("s_lshl_b32 s6, s%d, 15" % sW); A("s_add_u32 s6, s6, 32768")
        A("v_add_u32 v20, s6, v18")
        for b in range(1, 8): A("v_xor_b32 v%d, %d, v20" % (20 + b, b << 5))
        vm.wait("x3")
        for sidx in range(32):
            A("ds_read_b128 %s, v%d offset:%d" % (v(X + 4 * sidx, 4), 20 + (sidx % 8), (sidx // 8) * 256))
        A("s_mov_b32 s3, 0x3f803f80")
        for i in range(8): A("v_mov_b32 v%d, 0" % (32 + i))
        for sidx in range(32):
            if sidx % 4 == 0:
                A("s_waitcnt lgkmcnt(%d)" % min(15, 28 - sidx))
            for i in range(4):
                x = X + 4 * sidx + i
                A("v_dot2_f32_bf16 v%d, v%d, s3, v%d" % (32 + i, x, 32 + i))
                A("v_dot2_f32_bf16 v%d, v%d, v%d, v%d" % (36 + i, x, x, 36 + i))
        A("s_barrier")
        for f in stage_dmas: f()
        A("s_nop 2")
        A("v_add_f32 v32, v32, v33"); A("v_add_f32 v34, v34, v35"); A("v_add_f32 v36, v36, v37"); A("v_add_f32 v38, v38, v39")
        A("v_add_f32 v32, v32, v34"); A("v_add_f32 v36, v36, v38")
        A("v_mov_b32 v33, v32"); A("v_mov_b32 v37, v36")
        A("v_permlane32_swap_b32 v32, v33"); A("v_permlane32_swap_b32 v36, v37")
        A("v_add_f32 v32, v32, v33"); A("v_add_f32 v36, v36, v37")
        A("v_mul_f32 v32, %s, v32" % f32(1.0 / 512)); A("v_mul_f32 v36, %s, v36" % f32(1.0 / 512))
        A("v_fma_f32 v36, -v32, v32, v36"); A("v_max_f32 v36, 0, v36")
        A("v_cvt_pk_bf16_f32 v32, v32, v36")
        A("v_and_b32 v36, 0xffff0000, v32"); A("v_lshlrev_b32 v32, 16, v32")
        A("v_add_f32 v36, %s, v36" % f32(1e-5))
        A("v_cvt_pk_bf16_f32 v36, v36, v36"); A("v_and_b32 v36, 0xffff0000, v36")
        A("v_sqrt_f32 v36, v36")
        A("v_cvt_pk_bf16_f32 v36, v36, v36"); A("v_and_b32 v36, 0xffff0000, v36")
        A("v_rcp_f32 v36, v36")
        A("v_mul_f32 v32, -v32, v36") if False else A("v_mul_f32_e64 v32, -v32, v36")
        A("s_mov_b32 s3, 0xffff0000")
        for sidx in range(32):
            for i in range(4):
                x = X + 4 * sidx + i
                A("v_lshlrev_b32 v%d, 16, v%d" % (40 + 2 * i, x)); A("v_and_b32 v%d, s3, v%d" % (41 + 2 * i, x))
            for i in range(8): A("v_fma_f32 v%d, v%d, v36, v32" % (40 + i, 40 + i))
            for i in range(4): A("v_cvt_pk_bf16_f32 v%d, v%d, v%d" % (X + 4 * sidx + i, 40 + 2 * i, 41 + 2 * i))

    def run(stages, epis):
        for f in dma_stage(stages[0][0], stages[0][1], 0, "s0"): f()
        first = []
        for sidx in range(1, 5): first += dma_stage(stages[sidx][0], stages[sidx][1], sidx, "s%d" % sidx)
        layernorm(first)
        vm.wait("s0"); A("s_barrier")
        q4 = quad(stages[0][0], stages[0][1], 0, 0)
        for j in range(4): rd(q4, j, 0)
        pend = []
        buf = 0
        for sidx, (kind, t) in enumerate(stages):
            slot = sidx % 5
            for q in range(8):
                cur = quad(kind, t, slot, q)
                if q == 7:
                    if sidx + 1 < len(stages):
                        vm.wait("s%d" % (sidx + 1)); A("s_barrier")
                        nxt = quad(stages[sidx + 1][0], stages[sidx + 1][1], (sidx + 1) % 5, 0)
                        if sidx >= 1 and sidx + 4 < len(stages):
                            pend = dma_stage(stages[sidx + 4][0], stages[sidx + 4][1], (sidx + 4) % 5, "s%d" % (sidx + 4))
                    else:
                        nxt = None
                else:
                    nxt = quad(kind, t, slot, q + 1)
                for j in range(4):
                    acc, xi, _, _, _ = cur[j]
                    if j % 2 == 0:
                        A("s_waitcnt lgkmcnt(%d)" % (4 if (nxt is not None or j == 0) else 0))
                    c = v(ACC + acc * 16, 16) if xi > 0 else "0"
                    wf, xf = a(buf * 16 + j * 4, 4), v(X + 4 * xi, 4)
                    if kind == "V": A("%s %s, %s, %s, %s" % (MF, v(ACC + acc * 16, 16), xf, wf, c))
                    else: A("%s %s, %s, %s, %s" % (MF, v(ACC + acc * 16, 16), wf, xf, c))
                    if nxt is not None: rd(nxt, j, buf ^ 1)
                    if j == 1 and pend: pend.pop(0)()
                buf ^= 1
            if sidx in epis: epis[sidx]()
        A("s_waitcnt vmcnt(0)")
        A("s_endpgm")

    A("s_cmp_eq_u32 s%d, 0" % sTy); A("s_cbranch_scc0 K1_HH")
    save = list(vm.ops)
    run([("QK", t) for t in range(4)] + [("V", t) for t in range(2)] + [("Pa", t) for t in range(4)],
        {3: epi_qk, 5: epi_v, 9: lambda: epi_swiglu(2, 0, 32, sHa)})
    A.label("K1_HH")
    vm.ops = save; vm.done = -1
    run([("Pa", t) for t in range(4)] + [("Pb", t) for t in range(4)] + [("P1", t) for t in range(2)],
        {3: lambda: epi_swiglu(2, 0, 32, sHa), 7: lambda: epi_swiglu(2, 0, 32, sHb), 9: lambda: epi_swiglu(1, 0, 16, sH1)})
    A.label("K1_end")
    A("s_endpgm")
    return A

def gen_k2():
    A = Asm(); vm = VM(A)
    vLane, vL16, vKA, vVA = 1, 2, 3, 4
    Q0, Q1, K0, K1_ = 8, 12, 16, 20
    V0, V1 = 24, 32
    P = 40
    S0, S1, O0, O1, MD, ME = 48, 64, 80, 96, 112, 128
    T = 144
    sW, sRB, sP, sWS, sBLK, sCnt = 24, 25, 26, 20, 27, 28
    sE0, sE1 = 30, 32
    A("s_cmp_ge_u32 s2, 256"); A("s_cbranch_scc1 K2_end")
    A("s_load_dwordx2 s[48:49], s[0:1], 72")
    A("v_lshrrev_b32 v3, 6, v0"); A("v_and_b32 v%d, 63, v0" % vLane)
    A("v_readfirstlane_b32 s%d, v3" % sW)
    A("v_lshlrev_b32 v%d, 4, v%d" % (vL16, vLane))
    A("s_and_b32 s3, s2, 7"); A("s_lshr_b32 s4, s2, 3")
    A("s_and_b32 s5, s3, 1"); A("s_lshl_b32 s5, s5, 3"); A("s_and_b32 s6, s4, 7"); A("s_add_u32 s%d, s5, s6" % sRB)
    A("s_lshr_b32 s5, s3, 1"); A("s_lshl_b32 s5, s5, 2"); A("s_lshr_b32 s6, s4, 3"); A("s_add_u32 s%d, s5, s6" % sP)
    A("s_lshl_b32 s%d, s%d, 2" % (sBLK, sRB)); A("s_add_u32 s%d, s%d, s%d" % (sBLK, sBLK, sW))
    A("s_waitcnt lgkmcnt(0)")
    srd(A, sWS, 48, WS_BYTES)
    A("s_lshl_b32 s3, s%d, 17" % sP)
    A("s_lshl_b32 s4, s%d, 12" % sRB)
    A("s_lshl_b32 s5, s%d, 16" % sW); A("s_add_u32 s5, s5, s4"); A("s_add_u32 s5, s5, 0x%x" % (KF - 8192))
    A("s_lshl_b32 s6, s4, 1"); A("s_mul_i32 s7, s%d, 12288" % sW); A("s_add_u32 s6, s6, s7"); A("s_add_u32 s6, s6, 0x%x" % (VF - 16384 - 24576))
    A("s_cmp_ge_u32 s%d, 2" % sW); A("s_cselect_b32 s5, s6, s5"); A("s_add_u32 s5, s5, s3")
    for i in range(12):
        if i % 4 == 0:
            A("s_add_u32 m0, s7, %d" % (i * 1024)); A("s_add_u32 s6, s5, %d" % (i * 1024))
        vm.issue("buffer_load_dwordx4 v%d, s[%d:%d], s6 offen offset:%d lds" % (vL16, sWS, sWS + 3, (i % 4) * 1024), "kv")
    A("s_lshl_b32 s4, s%d, 10" % sBLK); A("s_add_u32 s4, s4, s3"); A("s_add_u32 s4, s4, 0x%x" % QF); A("s_add_u32 s5, s4, 65536")
    vm.issue("buffer_load_dwordx4 %s, v%d, s[%d:%d], s4 offen" % (v(Q0, 4), vL16, sWS, sWS + 3), "q")
    vm.issue("buffer_load_dwordx4 %s, v%d, s[%d:%d], s5 offen" % (v(Q1, 4), vL16, sWS, sWS + 3), "q")
    A("v_and_b32 v5, 31, v%d" % vLane); A("v_lshrrev_b32 v6, 5, v%d" % vLane); A("v_lshlrev_b32 v6, 2, v6"); A("v_sub_u32 v5, v5, v6")
    A("v_mov_b32 v6, 0xff800000"); A("v_mov_b32 v7, 0")
    for rg in range(16):
        c = (rg // 4) * 8 + rg % 4
        A("v_cmp_le_i32 vcc, %d, v5" % c)
        A("v_cndmask_b32 v%d, v6, v7, vcc" % (MD + rg))
        A("v_cndmask_b32 v%d, v7, v6, vcc" % (ME + rg))
    for i in range(8):
        A("v_mov_b32 v%d, 0x3f803f80" % (V0 + i)); A("v_mov_b32 v%d, 0x3f803f80" % (V1 + i))
    for i in range(16):
        A("v_mov_b32 v%d, 0" % (O0 + i)); A("v_mov_b32 v%d, 0" % (O1 + i))
    A("s_mov_b32 s%d, 0x0000ffff" % sE0); A("s_mov_b32 s%d, 0x0000ffff" % (sE0 + 1))
    A("s_mov_b32 s%d, 0xffff0000" % sE1); A("s_mov_b32 s%d, 0xffff0000" % (sE1 + 1))
    A("s_sub_i32 s3, 8, s%d" % sBLK); A("s_max_i32 s3, s3, 0")
    A("s_add_u32 s4, s3, s%d" % sW)
    A("s_lshl_b32 s5, s4, 10"); A("v_add_u32 v%d, s5, v%d" % (vKA, vL16))
    A("s_lshl_b32 s5, s4, 11"); A("s_add_u32 s5, s5, 24576"); A("v_add_u32 v%d, s5, v%d" % (vVA, vL16))
    A("s_waitcnt vmcnt(0)"); A("s_barrier")
    def rdK0(off): A("ds_read_b128 %s, v%d offset:%d" % (v(K0, 4), vKA, off))
    def rdK1(off): A("ds_read_b128 %s, v%d offset:%d" % (v(K1_, 4), vKA, 12288 + off))
    def rdV(h, off):
        A("s_mov_b64 exec, s[%d:%d]" % ((sE0, sE0 + 1) if h == 0 else (sE1, sE1 + 1)))
        R = V0 if h == 0 else V1
        A("ds_read_b128 %s, v%d offset:%d" % (v(R, 4), vVA, off)); A("ds_read_b128 %s, v%d offset:%d" % (v(R + 4, 4), vVA, off + 1024))
        A("s_mov_b64 exec, -1")
    def mask(m): return {"0": "0", "D": v(MD, 16), "E": v(ME, 16)}[m]
    def half(S, Vr, O):
        for i in range(8): A("v_exp_f32 v%d, v%d" % (S + i, S + i))
        for i in range(4): A("v_cvt_pk_bf16_f32 v%d, v%d, v%d" % (P + i, S + 2 * i, S + 2 * i + 1))
        for i in range(8, 10): A("v_exp_f32 v%d, v%d" % (S + i, S + i))
        A("%s %s, %s, %s, %s" % (MF, v(O, 16), v(Vr, 4), v(P, 4), v(O, 16)))
        for i in range(10, 16): A("v_exp_f32 v%d, v%d" % (S + i, S + i))
        for i in range(4): A("v_cvt_pk_bf16_f32 v%d, v%d, v%d" % (P + 4 + i, S + 8 + 2 * i, S + 9 + 2 * i))
    def body(m1, m0n):
        A("s_waitcnt lgkmcnt(0)")
        A("%s %s, %s, %s, %s" % (MF, v(S1, 16), v(K1_, 4), v(Q1, 4), mask(m1)))
        if m0n is not None: rdK0(1024)
        half(S0, V0, O0)
        if m0n is not None:
            A("s_waitcnt lgkmcnt(0)")
            A("%s %s, %s, %s, %s" % (MF, v(O0, 16), v(V0 + 4, 4), v(P + 4, 4), v(O0, 16)))
            A("%s %s, %s, %s, %s" % (MF, v(S0, 16), v(K0, 4), v(Q0, 4), mask(m0n)))
            rdK1(1024); rdV(0, 2048)
        else:
            A("%s %s, %s, %s, %s" % (MF, v(O0, 16), v(V0 + 4, 4), v(P + 4, 4), v(O0, 16)))
        half(S1, V1, O1)
        A("%s %s, %s, %s, %s" % (MF, v(O1, 16), v(V1 + 4, 4), v(P + 4, 4), v(O1, 16)))
        if m0n is not None:
            rdV(1, 2048)
            A("v_add_u32 v%d, 1024, v%d" % (vKA, vKA)); A("v_add_u32 v%d, 2048, v%d" % (vVA, vVA))
    rdK0(0); rdK1(0); rdV(0, 0); rdV(1, 0)
    A("s_waitcnt lgkmcnt(0)")
    A("s_cmp_eq_u32 s3, 0"); A("s_cbranch_scc1 K2_full")
    A("s_cmp_eq_u32 s3, 8"); A("s_cbranch_scc1 K2_only")
    A("%s %s, %s, %s, 0" % (MF, v(S0, 16), v(K0, 4), v(Q0, 4)))
    A("s_sub_u32 s%d, 7, s3" % sCnt)
    A("s_cmp_eq_u32 s3, 7"); A("s_cbranch_scc1 K2_b7")
    A("s_branch K2_mid")
    A.label("K2_only")
    A("%s %s, %s, %s, %s" % (MF, v(S0, 16), v(K0, 4), v(Q0, 4), v(MD, 16)))
    A("s_branch K2_b8")
    A.label("K2_full")
    A("%s %s, %s, %s, %s" % (MF, v(S0, 16), v(K0, 4), v(Q0, 4), v(ME, 16)))
    A("s_mov_b32 s%d, 6" % sCnt)
    body("E", "0")
    A.label("K2_mid")
    A("s_nop 7");
    body("0", "0")
    A("s_sub_u32 s%d, s%d, 1" % (sCnt, sCnt)); A("s_cmp_lg_u32 s%d, 0" % sCnt); A("s_cbranch_scc1 K2_mid")
    A.label("K2_b7")
    body("0", "D")
    A.label("K2_b8")
    body("D", None)
    A("v_rcp_f32 v%d, v%d" % (T, O0 + 8)); A("v_rcp_f32 v%d, v%d" % (T + 1, O1))
    for i in range(8):
        A("v_mul_f32 v%d, v%d, v%d" % (O0 + i, O0 + i, T)); A("v_mul_f32 v%d, v%d, v%d" % (O1 + 8 + i, O1 + 8 + i, T + 1))
    for i in range(4):
        A("v_cvt_pk_bf16_f32 v%d, v%d, v%d" % (P + i, O0 + 2 * i, O0 + 2 * i + 1))
        A("v_cvt_pk_bf16_f32 v%d, v%d, v%d" % (P + 4 + i, O1 + 8 + 2 * i, O1 + 9 + 2 * i))
    A("s_mul_i32 s3, s%d, %d" % (sBLK, 144 * 1024)); A("s_lshl_b32 s4, s%d, 11" % sP); A("s_add_u32 s3, s3, s4"); A("s_add_u32 s3, s3, %d" % (112 * 1024))
    A("buffer_store_dwordx4 %s, v%d, s[%d:%d], s3 offen" % (v(P, 4), vL16, sWS, sWS + 3))
    A("buffer_store_dwordx4 %s, v%d, s[%d:%d], s3 offen offset:1024" % (v(P + 4, 4), vL16, sWS, sWS + 3))
    A("s_waitcnt vmcnt(0)")
    A.label("K2_end")
    A("s_endpgm")
    return A

def gen_k3():
    A = Asm(); vm = VM(A)
    vLane, vL16, vRA, vRB = 1, 2, 3, 4
    vD = [5, 6, 7, 8]
    ACC = 64; AF = 128; DEPTH = 8; T = 16
    sW, sR, sC = 24, 25, 26
    sDN, sWO, sWS, sXS, sOUT = 8, 12, 20, 16, 28
    sLW, sA0, sA1, sBd, sBo, sTmp = 32, 33, 34, 35, 36, 37
    A("s_cmp_ge_u32 s2, 256"); A("s_cbranch_scc1 K3_end")
    A("s_load_dwordx2 s[40:41], s[0:1], 0"); A("s_load_dwordx2 s[42:43], s[0:1], 16")
    A("s_load_dwordx4 s[44:47], s[0:1], 48"); A("s_load_dwordx2 s[48:49], s[0:1], 72")
    A("v_lshrrev_b32 v3, 6, v0"); A("v_and_b32 v%d, 63, v0" % vLane)
    A("v_readfirstlane_b32 s%d, v3" % sW)
    A("v_lshlrev_b32 v%d, 4, v%d" % (vL16, vLane))
    A("s_and_b32 s3, s2, 7"); A("s_lshr_b32 s4, s2, 3")
    A("s_lshl_b32 s5, s3, 2"); A("s_and_b32 s6, s4, 3"); A("s_add_u32 s%d, s5, s6" % sR); A("s_lshr_b32 s%d, s4, 2" % sC)
    A("s_mul_i32 s%d, s%d, 40960" % (sLW, sW))
    A("v_lshrrev_b32 v16, 3, v%d" % vLane); A("v_and_b32 v17, 7, v%d" % vLane)
    A("v_bfe_u32 v18, v%d, 4, 1" % vLane); A("v_lshlrev_b32 v18, 2, v18"); A("v_xor_b32 v17, v17, v18"); A("v_lshlrev_b32 v17, 4, v17")
    A("v_lshl_add_u32 v%d, v16, 10, v17" % vD[0])
    for j in range(1, 4): A("v_add_u32 v%d, %d, v%d" % (vD[j], j * 7168, vD[0]))
    A("v_lshrrev_b32 v16, 5, v%d" % vLane); A("v_lshlrev_b32 v16, 2, v16")
    A("v_bfe_u32 v17, v%d, 2, 2" % vLane); A("v_add_u32 v16, v16, v17")
    A("v_bfe_u32 v17, v%d, 4, 1" % vLane); A("v_lshlrev_b32 v17, 5, v17")
    A("v_and_b32 v18, 3, v%d" % vLane); A("v_lshlrev_b32 v18, 3, v18"); A("v_add_u32 v17, v17, v18")
    A("v_bfe_u32 v18, v16, 1, 1"); A("v_lshlrev_b32 v18, 6, v18"); A("v_add_u32 v17, v17, v18")
    A("v_lshl_add_u32 v%d, v16, 7, v17" % vRA)
    A("v_add_u32 v%d, s%d, v%d" % (vRA, sLW, vRA))
    A("v_xor_b32 v%d, 64, v%d" % (vRB, vRA))
    A("s_waitcnt lgkmcnt(0)")
    srd(A, sXS, 40, 2048 * 1024); srd(A, sWO, 42, 512 * 1024); srd(A, sDN, 44, 1792 * 1024); srd(A, sOUT, 46, 2048 * 1024); srd(A, sWS, 48, WS_BYTES)
    A("s_lshl_b32 s3, s%d, 7" % sC)
    A("s_mul_i32 s%d, s%d, %d" % (sBd, sW, 448 * 1024)); A("s_add_u32 s%d, s%d, s3" % (sBd, sBd))
    A("s_mul_i32 s%d, s%d, %d" % (sBo, sW, 128 * 1024)); A("s_add_u32 s%d, s%d, s3" % (sBo, sBo))
    A("s_mul_i32 s%d, s%d, %d" % (sA0, sR, 2 * 144 * 1024)); A("s_add_u32 s%d, s%d, %d" % (sA1, sA0, 144 * 1024))
    A("s_mul_i32 s3, s%d, %d" % (sW, 28 * 1024)); A("s_mul_i32 s4, s%d, %d" % (sW, 8 * 1024)); A("s_add_u32 s4, s4, %d" % (112 * 1024))
    A("s_add_u32 s50, s%d, s3" % sA0); A("s_add_u32 s51, s%d, s3" % sA1); A("s_add_u32 s52, s%d, s4" % sA0); A("s_add_u32 s53, s%d, s4" % sA1)
    def dma_chunk(c):
        for i in range(8):
            grp, j = i // 4, i % 4
            if j == 0:
                A("s_add_u32 m0, s%d, %d" % (sLW, (c % 5) * 8192 + grp * 4096))
                if c < 7: A("s_add_u32 s%d, s%d, %d" % (sTmp, sBd, (c * 64 + grp * 32) * 1024))
                else: A("s_add_u32 s%d, s%d, %d" % (sTmp, sBo, ((c - 7) * 64 + grp * 32) * 1024))
            sr = sDN if c < 7 else sWO
            vm.issue("buffer_load_dwordx4 v%d, s[%d:%d], s%d offen offset:%d lds" % (vD[j], sr, sr + 3, sTmp, j * 1024), "b%d" % c)
    def loadA(ks):
        s0 = 50 if ks < 28 else 52
        kk = ks if ks < 28 else ks - 28
        for rf in range(2):
            if kk % 4 == 0 and kk > 0:
                A("s_add_u32 s%d, s%d, 4096" % (s0 + rf, s0 + rf))
            vm.issue("buffer_load_dwordx4 %s, v%d, s[%d:%d], s%d offen offset:%d" % (v(AF + ((ks % DEPTH) * 2 + rf) * 4, 4), vL16, sWS, sWS + 3, s0 + rf, (kk % 4) * 1024), "a%d" % ks)
    def rdB(ks):
        off = ((ks // 4) % 5) * 8192 + (ks % 4) * 2048
        for cf in range(2):
            R = vRA if cf == 0 else vRB
            A("ds_read_b64_tr_b16 %s, v%d offset:%d" % (a((ks % 2) * 8 + cf * 4, 2), R, off))
            A("ds_read_b64_tr_b16 %s, v%d offset:%d" % (a((ks % 2) * 8 + cf * 4 + 2, 2), R, off + 1024))
    dma_chunk(0)
    for ks in range(DEPTH // 2): loadA(ks)
    dma_chunk(1)
    for ks in range(DEPTH // 2, DEPTH): loadA(ks)
    for c in range(2, 5): dma_chunk(c)
    A("v_and_b32 v16, 31, v%d" % vLane); A("v_lshrrev_b32 v17, 5, v%d" % vLane)
    A("v_lshlrev_b32 v16, 10, v16"); A("v_lshl_add_u32 v9, v17, 4, v16")
    A("s_lshr_b32 s3, s%d, 1" % sW); A("s_lshl_b32 s4, s%d, 1" % sR); A("s_add_u32 s3, s3, s4"); A("s_lshl_b32 s3, s3, 15")
    A("s_and_b32 s4, s%d, 1" % sW); A("s_lshl_b32 s4, s4, 6"); A("s_add_u32 s3, s3, s4"); A("s_lshl_b32 s4, s%d, 7" % sC); A("s_add_u32 s54, s3, s4")
    vm.issue("buffer_load_dwordx4 v[48:51], v9, s[%d:%d], s54 offen" % (sXS, sXS + 3), "xr")
    vm.issue("buffer_load_dwordx4 v[52:55], v9, s[%d:%d], s54 offen offset:32" % (sXS, sXS + 3), "xr")
    vm.wait("b0"); rdB(0)
    for ks in range(36):
        if ks + 1 < 36:
            if (ks + 1) % 4 == 0: vm.wait("b%d" % ((ks + 1) // 4))
            rdB(ks + 1)
        vm.wait("a%d" % ks)
        A("s_waitcnt lgkmcnt(%d)" % (4 if ks + 1 < 36 else 0))
        for cf in range(2):
            for rf in range(2):
                d = v(ACC + (rf * 2 + cf) * 16, 16)
                A("%s %s, %s, %s, %s" % (MF, d, a((ks % 2) * 8 + cf * 4, 4), v(AF + ((ks % DEPTH) * 2 + rf) * 4, 4), d if ks else "0"))
        if ks + DEPTH < 36: loadA(ks + DEPTH)
        if ks % 4 == 0 and ks >= 4 and ks // 4 + 4 < 9:
            dma_chunk(ks // 4 + 4)
    A("s_barrier")
    A("s_lshl_b32 s3, s%d, 14" % sW); A("v_add_u32 v10, s3, v%d" % vL16)
    for t in range(4):
        for j in range(4):
            A("ds_write_b128 v10, %s offset:%d" % (v(ACC + t * 16 + 4 * j, 4), t * 4096 + j * 1024))
    A("s_lshl_b32 s3, s%d, 12" % sW); A("v_add_u32 v10, s3, v%d" % vL16)
    A("s_waitcnt lgkmcnt(0)"); A("s_barrier")
    for sw in range(4):
        for j in range(4):
            A("ds_read_b128 %s, v10 offset:%d" % (v(ACC + sw * 16 + 4 * j, 4), sw * 16384 + j * 1024))
    A("s_waitcnt lgkmcnt(0)")
    for i in range(16):
        A("v_add_f32 v%d, v%d, v%d" % (ACC + i, ACC + i, ACC + 16 + i)); A("v_add_f32 v%d, v%d, v%d" % (ACC + 32 + i, ACC + 32 + i, ACC + 48 + i))
    for i in range(16): A("v_add_f32 v%d, v%d, v%d" % (ACC + i, ACC + i, ACC + 32 + i))
    for jj in range(2):
        for i in range(4):
            A("v_permlane32_swap_b32 v%d, v%d" % (ACC + 8 * jj + i, ACC + 8 * jj + 4 + i))
    vm.wait("xr")
    A("s_mov_b32 s3, 0xffff0000")
    for jj in range(2):
        for i in range(4):
            x = 48 + 4 * jj + i
            A("v_lshlrev_b32 v16, 16, v%d" % x); A("v_and_b32 v17, s3, v%d" % x)
            A("v_add_f32 v16, v16, v%d" % (ACC + 8 * jj + 2 * i)); A("v_add_f32 v17, v17, v%d" % (ACC + 8 * jj + 2 * i + 1))
            A("v_cvt_pk_bf16_f32 v%d, v16, v17" % (56 + 4 * jj + i))
    A("buffer_store_dwordx4 v[56:59], v9, s[%d:%d], s54 offen" % (sOUT, sOUT + 3))
    A("buffer_store_dwordx4 v[60:63], v9, s[%d:%d], s54 offen offset:32" % (sOUT, sOUT + 3))
    A("s_waitcnt vmcnt(0)")
    A.label("K3_end")
    A("s_endpgm")
    return A

def build(extra_empty=0):
    hdr = "; generated by gen/v1.py\n"
    hdr += "; @launch kernel=k1_kernel grid=(256,1,1) block=(256,1,1) lds=163840\n"
    hdr += "; @launch kernel=k2_kernel grid=(256,1,1) block=(256,1,1) lds=53248\n"
    hdr += "; @launch kernel=k3_kernel grid=(256,1,1) block=(256,1,1) lds=163840\n"
    for i in range(extra_empty):
        hdr += "; @launch kernel=k0_kernel grid=(256,1,1) block=(256,1,1) lds=0\n"
    t = hdr + '.amdgcn_target "amdgcn-amd-amdhsa--gfx950"\n'
    for nm, g in (("k1_kernel", gen_k1), ("k2_kernel", gen_k2), ("k3_kernel", gen_k3)):
        t += kernel_header(nm) + "\n".join(hazard.fix(g().lines, True)) + "\n"
    if extra_empty:
        t += kernel_header("k0_kernel") + "    s_endpgm\n"
    t += kernel_desc("k1_kernel", 288, 64, 256) + kernel_desc("k2_kernel", 160, 64, 160) + kernel_desc("k3_kernel", 208, 64, 192)
    if extra_empty:
        t += kernel_desc("k0_kernel", 8, 16, 8)
    return t

if __name__ == "__main__":
    out = sys.argv[1] if len(sys.argv) > 1 else "cdna_kernels/%s.s" % NAME
    open(out, "w").write(build(int(sys.argv[2]) if len(sys.argv) > 2 else 0))
```

```python
import sys
from asmlib import *
import hazard

NAME = "parallel_sum__sliding_block__swiglu_ffn__prompt"
A2F = 0
QF = 0x1000000
KF = QF + 0x200000
VF = QF + 0x400000
WS_BYTES = 0x1700000
LOG2E = 1.4426950408889634

import struct
def f32(x):
    return "0x%08x" % struct.unpack("<I", struct.pack("<f", x))[0]

class VM:
    def __init__(self, A):
        self.A = A; self.ops = []; self.done = -1
    def issue(self, text, tag):
        self.A(text); self.ops.append(tag)
    def wait(self, tag, extra=""):
        idx = max(i for i, t in enumerate(self.ops) if t == tag)
        if idx <= self.done: return
        n = len(self.ops) - 1 - idx
        assert n <= 63, n
        self.done = idx
        self.A("s_waitcnt vmcnt(%d)%s" % (n, extra))

def srd(A, d, lo, nbytes):
    A("s_mov_b32 s%d, s%d" % (d, lo)); A("s_mov_b32 s%d, s%d" % (d + 1, lo + 1))
    A("s_mov_b32 s%d, 0x%x" % (d + 2, nbytes)); A("s_mov_b32 s%d, 0x20000" % (d + 3))

MF = "v_mfma_f32_32x32x16_bf16"
STAMP = False
STAMP_OFF = 0x1600000
class Stamps:
    def __init__(self, A, kidx):
        self.A = A; self.n = 0; self.k = kidx
    def __call__(self):
        if not STAMP: return
        self.A("s_memtime s[%d:%d]" % (64 + 2 * self.n, 65 + 2 * self.n)); self.A("s_waitcnt lgkmcnt(0)"); self.n += 1
        assert self.n <= 16
    def flush(self, sWS, sW):
        if not STAMP: return
        A = self.A
        A("s_waitcnt vmcnt(0)")
        self()
        A("s_lshl_b32 s3, s2, 2"); A("s_add_u32 s3, s3, s%d" % sW); A("s_lshl_b32 s3, s3, 6"); A("s_add_u32 s3, s3, 0x%x" % (STAMP_OFF + self.k * 65536))
        A("v_mov_b32 v1, 0")
        A("s_mov_b64 exec, 1")
        for i in range(1, self.n):
            A("s_sub_u32 s4, s%d, s64" % (64 + 2 * i)); A("v_mov_b32 v2, s4")
            A("buffer_store_dword v2, v1, s[%d:%d], s3 offen offset:%d" % (sWS, sWS + 3, 4 * (i - 1)))

def gen_k1():
    A = Asm(); vm = VM(A)
    X = 128; ACC = 64; T = 16
    vLane, vL16 = 1, 2
    vRA = [3, 4, 5]; vRB = [6, 7, 8]; vRP = [9, 10, 11]
    vDQ = [48, 49, 50, 51]; vDG = [52, 53, 54, 55]; vDP = [56, 57, 58, 59]
    sW, sRB, sIQ = 24, 25, 26
    sXS, sWQ, sGU, sWS = 8, 12, 16, 20
    sQ, sV, sG2a, sG2b, sG1 = 27, 28, 29, 30, 31
    sLW = 32
    sHa, sHb, sH1 = 33, 34, 35
    sBLK = 36; sTmp = 37; sTmp2 = 38; sTy = 39
    A("s_cmp_ge_u32 s2, 256"); A("s_cbranch_scc1 K1_end")
    st = Stamps(A, 0); st()
    A("s_load_dwordx4 s[40:43], s[0:1], 0")
    A("s_load_dwordx4 s[44:47], s[0:1], 32")
    A("s_load_dwordx2 s[48:49], s[0:1], 72")
    A("v_lshrrev_b32 v3, 6, v0")
    A("v_and_b32 v%d, 63, v0" % vLane)
    A("v_readfirstlane_b32 s%d, v3" % sW)
    A("v_lshlrev_b32 v%d, 4, v%d" % (vL16, vLane))
    A("s_and_b32 s3, s2, 7"); A("s_lshr_b32 s4, s2, 3")
    A("s_and_b32 s5, s3, 1"); A("s_lshl_b32 s5, s5, 3"); A("s_and_b32 s6, s4, 7"); A("s_add_u32 s%d, s5, s6" % sRB)
    A("s_lshr_b32 s5, s3, 1"); A("s_lshl_b32 s5, s5, 1")
    A("s_lshr_b32 s6, s4, 3")
    A("s_lshr_b32 s%d, s6, 1" % sTy)
    A("s_and_b32 s6, s6, 1"); A("s_add_u32 s%d, s5, s6" % sIQ)
    A("s_lshl_b32 s%d, s%d, 13" % (sLW, sW))
    A("s_lshl_b32 s%d, s%d, 2" % (sBLK, sRB)); A("s_add_u32 s%d, s%d, s%d" % (sBLK, sBLK, sW))
    A("s_waitcnt lgkmcnt(0)")
    srd(A, sXS, 40, 2048 * 1024); srd(A, sWQ, 42, 512 * 3072); srd(A, sWS, 48, WS_BYTES)
    A("s_cmp_ge_u32 s%d, 2" % sW)
    A("s_cselect_b32 s%d, s46, s44" % sGU); A("s_cselect_b32 s%d, s47, s45" % (sGU + 1))
    A("s_mov_b32 s%d, %d" % (sGU + 2, 512 * 3584)); A("s_mov_b32 s%d, 0x20000" % (sGU + 3))
    A("s_lshl_b32 s5, s%d, 15" % sBLK)
    A("s_lshl_b32 s6, s%d, 15" % sW); A("s_add_u32 s6, s6, 32768")
    for r in range(32):
        if r % 4 == 0:
            A("s_add_u32 m0, s6, %d" % (r * 1024)); A("s_add_u32 s7, s5, %d" % (r * 1024))
        A("v_xor_b32 v%d, %d, v%d" % (T + (r % 4), (r & 15) << 4, vL16))
        vm.issue("buffer_load_dwordx4 v%d, s[%d:%d], s7 offen offset:%d lds" % (T + (r % 4), sXS, sXS + 3, (r % 4) * 1024), "x%d" % (r // 8))
    A("v_lshrrev_b32 v16, 3, v%d" % vLane)
    A("v_and_b32 v17, 7, v%d" % vLane)
    A("v_bfe_u32 v18, v%d, 4, 1" % vLane); A("v_lshlrev_b32 v18, 2, v18"); A("v_xor_b32 v17, v17, v18")
    A("v_lshlrev_b32 v17, 4, v17")
    A("v_mul_u32_u24 v18, 3072, v16"); A("v_add_u32 v%d, v18, v17" % vDQ[0])
    A("v_mul_u32_u24 v18, 3584, v16"); A("v_add_u32 v%d, v18, v17" % vDG[0])
    A("v_lshrrev_b32 v16, 2, v%d" % vLane); A("v_and_b32 v17, 3, v%d" % vLane); A("v_lshlrev_b32 v17, 4, v17")
    A("v_mul_u32_u24 v18, 3584, v16"); A("v_add_u32 v%d, v18, v17" % vDP[0])
    for j in range(1, 4):
        A("v_add_u32 v%d, %d, v%d" % (vDQ[j], j * (8 * 3072 - 1024), vDQ[0]))
        A("v_add_u32 v%d, %d, v%d" % (vDG[j], j * (8 * 3584 - 1024), vDG[0]))
        A("v_add_u32 v%d, %d, v%d" % (vDP[j], j * (16 * 3584 - 1024), vDP[0]))
    A("v_lshrrev_b32 v16, 5, v%d" % vLane); A("v_lshlrev_b32 v16, 3, v16")
    A("v_bfe_u32 v17, v%d, 2, 2" % vLane); A("v_add_u32 v16, v16, v17")
    A("v_bfe_u32 v17, v%d, 4, 1" % vLane); A("v_lshlrev_b32 v17, 5, v17")
    A("v_and_b32 v18, 3, v%d" % vLane); A("v_lshlrev_b32 v18, 3, v18"); A("v_add_u32 v17, v17, v18")
    A("v_lshl_add_u32 v%d, v16, 6, v17" % vRP[0])
    A("v_bfe_u32 v18, v16, 1, 1"); A("v_lshlrev_b32 v18, 6, v18"); A("v_add_u32 v17, v17, v18")
    A("v_lshl_add_u32 v%d, v16, 7, v17" % vRA[0])
    A("v_xor_b32 v%d, 64, v%d" % (vRB[0], vRA[0]))
    for j in (1, 2):
        for R in (vRA, vRB, vRP):
            A("v_add_u32 v%d, %d, v%d" % (R[j], j * 65536, R[0]))
    A("s_and_b32 s5, s%d, 1" % sW); A("s_lshr_b32 s6, s%d, 1" % sW)
    A("s_lshl_b32 s7, s%d, 7" % sIQ)
    A("s_mul_i32 s%d, s5, %d" % (sQ, 64 * 3072)); A("s_lshl_b32 s3, s6, 10"); A("s_add_u32 s%d, s%d, s3" % (sQ, sQ)); A("s_add_u32 s%d, s%d, s7" % (sQ, sQ))
    A("s_mul_i32 s%d, s%d, %d" % (sV, sW, 64 * 3072)); A("s_add_u32 s%d, s%d, s7" % (sV, sV)); A("s_add_u32 s%d, s%d, 2048" % (sV, sV))
    A("s_mul_i32 s3, s%d, 320" % sIQ); A("s_add_u32 s3, s3, 1024")
    A("s_and_b32 s4, s%d, 1" % sIQ); A("s_lshl_b32 s4, s4, 6"); A("s_add_u32 s%d, s3, s4" % sHa)
    A("s_add_u32 s%d, s%d, 128" % (sHb, sHa))
    A("s_lshl_b32 s4, s4, 2"); A("s_sub_u32 s4, 256, s4"); A("s_add_u32 s%d, s3, s4" % sH1)
    A("s_cmp_eq_u32 s%d, 0" % sTy); A("s_cselect_b32 s%d, s7, s%d" % (sHa, sHa))
    A("s_mul_i32 s3, s5, %d" % (64 * 3584))
    A("s_add_u32 s%d, s3, s%d" % (sG2a, sHa)); A("s_add_u32 s%d, s3, s%d" % (sG2b, sHb))
    A("s_lshl_b32 s3, s3, 1"); A("s_add_u32 s%d, s3, s%d" % (sG1, sH1))
    A("s_mul_i32 s3, s%d, %d" % (sBLK, 144 * 1024))
    for sr in (sHa, sHb, sH1):
        A("s_lshl_b32 s%d, s%d, 5" % (sr, sr)); A("s_add_u32 s%d, s%d, s3" % (sr, sr))

    def dma_stage(kind, t, slot, tag):
        res = []
        for i in range(8):
            grp, j = i // 4, i % 4
            def f(grp=grp, j=j):
                if kind == "QK": base, add, srd_, vd = sQ, (128 * t + 32 * grp) * 3072, sWQ, vDQ
                elif kind == "V": base, add, srd_, vd = sV, (256 * t + 32 * grp) * 3072, sWQ, vDQ
                elif kind == "Pa": base, add, srd_, vd = sG2a, (128 * t + 32 * grp) * 3584, sGU, vDG
                elif kind == "Pb": base, add, srd_, vd = sG2b, (128 * t + 32 * grp) * 3584, sGU, vDG
                elif kind == "P1": base, add, srd_, vd = sG1, (256 * t + 64 * grp) * 3584, sGU, vDP
                if j == 0:
                    A("s_add_u32 m0, s%d, %d" % (sLW, slot * 32768 + grp * 4096))
                    A("s_add_u32 s%d, s%d, %d" % (sTmp, base, add))
                vm.issue("buffer_load_dwordx4 v%d, s[%d:%d], s%d offen offset:%d lds" % (vd[j], srd_, srd_ + 3, sTmp, j * 1024), tag)
            res.append(f)
        return res

    def quad(kind, t, slot, q):
        res = []
        sb = slot * 32768; bi = sb // 65536; so = sb % 65536
        for j in range(4):
            if kind in ("QK", "Pa", "Pb"):
                res.append((j, 8 * t + q, (vRA if j % 2 == 0 else vRB)[bi], so + (j >> 1) * 16384 + q * 2048, 512))
            elif kind == "V":
                kk = 2 * q + (j >> 1)
                res.append((j & 1, 16 * t + kk, (vRA if j % 2 == 0 else vRB)[bi], so + kk * 2048, 512))
            else:
                kk = 2 * q + (j >> 1)
                res.append((j & 1, 16 * t + kk, vRP[bi], so + (j & 1) * 16384 + kk * 1024, 256))
        return res

    def rd(q4, j, buf):
        _, _, ar, off, d2 = q4[j]
        A("ds_read_b64_tr_b16 %s, v%d offset:%d" % (a(buf * 16 + j * 4, 2), ar, off))
        A("ds_read_b64_tr_b16 %s, v%d offset:%d" % (a(buf * 16 + j * 4 + 2, 2), ar, off + d2))

    def epi_swiglu(ncf, goff, uoff, sH):
        for cf in range(ncf):
            for hf in range(2):
                g0 = ACC + goff + cf * 16 + hf * 8; u0 = ACC + uoff + cf * 16 + hf * 8
                for i in range(8): A("v_mul_f32 v%d, %s, v%d" % (T + i, f32(-LOG2E), g0 + i))
                for i in range(8): A("v_exp_f32 v%d, v%d" % (T + i, T + i))
                for i in range(8): A("v_mul_f32 v%d, v%d, v%d" % (T + 8 + i, g0 + i, u0 + i))
                for i in range(8): A("v_add_f32 v%d, 1.0, v%d" % (T + i, T + i))
                for i in range(8): A("v_rcp_f32 v%d, v%d" % (T + i, T + i))
                for i in range(8): A("v_mul_f32 v%d, v%d, v%d" % (T + i, T + i, T + 8 + i))
                P = T + 16 + ((cf * 2 + hf) % 2) * 4
                for i in range(4): A("v_cvt_pk_bf16_f32 v%d, v%d, v%d" % (P + i, T + 2 * i, T + 2 * i + 1))
                vm.issue("buffer_store_dwordx4 %s, v%d, s[%d:%d], s%d offen offset:%d" % (v(P, 4), vL16, sWS, sWS + 3, sH, (cf * 2 + hf) * 1024), "st")

    def epi_qk():
        A("s_lshl_b32 s3, s%d, 18" % sIQ); A("s_lshl_b32 s4, s%d, 10" % sBLK); A("s_add_u32 s3, s3, s4")
        n = 0
        for f in range(4):
            for hf in range(2):
                r0 = ACC + f * 16 + hf * 8
                P = T + 16 + (n % 2) * 4; n += 1
                if f < 2:
                    for i in range(8): A("v_mul_f32 v%d, %s, v%d" % (r0 + i, f32(0.25 * LOG2E), r0 + i))
                for i in range(4): A("v_cvt_pk_bf16_f32 v%d, v%d, v%d" % (P + i, r0 + 2 * i, r0 + 2 * i + 1))
                A("s_add_u32 s4, s3, 0x%x" % ((QF if f < 2 else KF) + (2 * (f & 1) + hf) * 65536))
                vm.issue("buffer_store_dwordx4 %s, v%d, s[%d:%d], s4 offen" % (v(P, 4), vL16, sWS, sWS + 3), "st")

    def epi_v():
        A("s_lshl_b32 s3, s%d, 18" % sIQ); A("s_lshl_b32 s4, s%d, 11" % sBLK); A("s_add_u32 s3, s3, s4")
        n = 0
        for f in range(2):
            A("s_add_u32 s4, s3, 0x%x" % (VF + f * 131072))
            for hf in range(2):
                r0 = ACC + f * 16 + hf * 8
                P = T + 16 + (n % 2) * 4; n += 1
                for i in range(4): A("v_cvt_pk_bf16_f32 v%d, v%d, v%d" % (P + i, r0 + 2 * i, r0 + 2 * i + 1))
                vm.issue("buffer_store_dwordx4 %s, v%d, s[%d:%d], s4 offen offset:%d" % (v(P, 4), vL16, sWS, sWS + 3, hf * 1024), "st")

    def layernorm(stage_dmas):
        A("v_and_b32 v16, 31, v%d" % vLane); A("v_lshrrev_b32 v17, 5, v%d" % vLane)
        A("v_and_b32 v18, 15, v16"); A("v_xor_b32 v18, v18, v17"); A("v_lshlrev_b32 v18, 4, v18")
        A("v_lshl_add_u32 v18, v16, 10, v18")
        A("s_lshl_b32 s6, s%d, 15" % sW); A("s_add_u32 s6, s6, 32768")
        A("v_add_u32 v20, s6, v18")
        for b in range(1, 8): A("v_xor_b32 v%d, %d, v20" % (20 + b, b << 5))
        st()
        vm.wait("x3")
        st()
        for sidx in range(32):
            A("ds_read_b128 %s, v%d offset:%d" % (v(X + 4 * sidx, 4), 20 + (sidx % 8), (sidx // 8) * 256))
        A("s_mov_b32 s3, 0x3f803f80")
        for i in range(8): A("v_mov_b32 v%d, 0" % (32 + i))
        for sidx in range(32):
            if sidx % 4 == 0:
                A("s_waitcnt lgkmcnt(%d)" % min(15, 28 - sidx))
            for i in range(4):
                x = X + 4 * sidx + i
                A("v_dot2_f32_bf16 v%d, v%d, s3, v%d" % (32 + i, x, 32 + i))
                A("v_dot2_f32_bf16 v%d, v%d, v%d, v%d" % (36 + i, x, x, 36 + i))
        st()
        A("s_barrier")
        for f in stage_dmas: f()
        A("s_nop 2")
        A("v_add_f32 v32, v32, v33"); A("v_add_f32 v34, v34, v35"); A("v_add_f32 v36, v36, v37"); A("v_add_f32 v38, v38, v39")
        A("v_add_f32 v32, v32, v34"); A("v_add_f32 v36, v36, v38")
        A("v_mov_b32 v33, v32"); A("v_mov_b32 v37, v36")
        A("v_permlane32_swap_b32 v32, v33"); A("v_permlane32_swap_b32 v36, v37")
        A("v_add_f32 v32, v32, v33"); A("v_add_f32 v36, v36, v37")
        A("v_mul_f32 v32, %s, v32" % f32(1.0 / 512)); A("v_mul_f32 v36, %s, v36" % f32(1.0 / 512))
        A("v_fma_f32 v36, -v32, v32, v36"); A("v_max_f32 v36, 0, v36")
        A("v_cvt_pk_bf16_f32 v32, v32, v36")
        A("v_and_b32 v36, 0xffff0000, v32"); A("v_lshlrev_b32 v32, 16, v32")
        A("v_add_f32 v36, %s, v36" % f32(1e-5))
        A("v_cvt_pk_bf16_f32 v36, v36, v36"); A("v_and_b32 v36, 0xffff0000, v36")
        A("v_sqrt_f32 v36, v36")
        A("v_cvt_pk_bf16_f32 v36, v36, v36"); A("v_and_b32 v36, 0xffff0000, v36")
        A("v_rcp_f32 v36, v36")
        A("v_mul_f32 v32, -v32, v36") if False else A("v_mul_f32_e64 v32, -v32, v36")
        A("s_mov_b32 s3, 0xffff0000")
        for sidx in range(32):
            for i in range(4):
                x = X + 4 * sidx + i
                A("v_lshlrev_b32 v%d, 16, v%d" % (40 + 2 * i, x)); A("v_and_b32 v%d, s3, v%d" % (41 + 2 * i, x))
            for i in range(8): A("v_fma_f32 v%d, v%d, v36, v32" % (40 + i, 40 + i))
            for i in range(4): A("v_cvt_pk_bf16_f32 v%d, v%d, v%d" % (X + 4 * sidx + i, 40 + 2 * i, 41 + 2 * i))

    def run(stages, epis):
        for f in dma_stage(stages[0][0], stages[0][1], 0, "s0"): f()
        first = []
        for sidx in range(1, 5): first += dma_stage(stages[sidx][0], stages[sidx][1], sidx, "s%d" % sidx)
        layernorm(first)
        st()
        vm.wait("s0"); A("s_barrier")
        st()
        q4 = quad(stages[0][0], stages[0][1], 0, 0)
        for j in range(4): rd(q4, j, 0)
        pend = []
        buf = 0
        for sidx, (kind, t) in enumerate(stages):
            slot = sidx % 5
            for q in range(8):
                cur = quad(kind, t, slot, q)
                if q == 7:
                    if sidx + 1 < len(stages):
                        vm.wait("s%d" % (sidx + 1)); A("s_barrier")
                        nxt = quad(stages[sidx + 1][0], stages[sidx + 1][1], (sidx + 1) % 5, 0)
                        if sidx >= 1 and sidx + 4 < len(stages):
                            pend = dma_stage(stages[sidx + 4][0], stages[sidx + 4][1], (sidx + 4) % 5, "s%d" % (sidx + 4))
                    else:
                        nxt = None
                else:
                    nxt = quad(kind, t, slot, q + 1)
                for j in range(4):
                    acc, xi, _, _, _ = cur[j]
                    if j % 2 == 0:
                        A("s_waitcnt lgkmcnt(%d)" % (4 if (nxt is not None or j == 0) else 0))
                    c = v(ACC + acc * 16, 16) if xi > 0 else "0"
                    wf, xf = a(buf * 16 + j * 4, 4), v(X + 4 * xi, 4)
                    if kind == "V": A("%s %s, %s, %s, %s" % (MF, v(ACC + acc * 16, 16), xf, wf, c))
                    else: A("%s %s, %s, %s, %s" % (MF, v(ACC + acc * 16, 16), wf, xf, c))
                    if nxt is not None: rd(nxt, j, buf ^ 1)
                    if j == 1 and pend: pend.pop(0)()
                buf ^= 1
            if sidx in epis:
                st(); epis[sidx](); st()
        st.flush(sWS, sW)
        A("s_waitcnt vmcnt(0)")
        A("s_endpgm")

    A("s_cmp_eq_u32 s%d, 0" % sTy); A("s_cbranch_scc0 K1_HH")
    save = list(vm.ops); sn = st.n
    run([("QK", t) for t in range(4)] + [("V", t) for t in range(2)] + [("Pa", t) for t in range(4)],
        {3: epi_qk, 5: epi_v, 9: lambda: epi_swiglu(2, 0, 32, sHa)})
    A.label("K1_HH")
    vm.ops = save; vm.done = -1; st.n = sn
    run([("Pa", t) for t in range(4)] + [("Pb", t) for t in range(4)] + [("P1", t) for t in range(2)],
        {3: lambda: epi_swiglu(2, 0, 32, sHa), 7: lambda: epi_swiglu(2, 0, 32, sHb), 9: lambda: epi_swiglu(1, 0, 16, sH1)})
    A.label("K1_end")
    A("s_endpgm")
    return A

def gen_k2():
    A = Asm(); vm = VM(A)
    vLane, vL16, vKA, vVA = 1, 2, 3, 4
    Q0, Q1, K0, K1_ = 8, 12, 16, 20
    V0, V1 = 24, 32
    P = 40
    S0, S1, O0, O1, MD, ME = 48, 64, 80, 96, 112, 128
    T = 144
    sW, sRB, sP, sWS, sBLK, sCnt = 24, 25, 26, 20, 27, 28
    sE0, sE1 = 30, 32
    A("s_cmp_ge_u32 s2, 256"); A("s_cbranch_scc1 K2_end")
    st = Stamps(A, 1); st()
    A("s_load_dwordx2 s[48:49], s[0:1], 72")
    A("v_lshrrev_b32 v3, 6, v0"); A("v_and_b32 v%d, 63, v0" % vLane)
    A("v_readfirstlane_b32 s%d, v3" % sW)
    A("v_lshlrev_b32 v%d, 4, v%d" % (vL16, vLane))
    A("s_and_b32 s3, s2, 7"); A("s_lshr_b32 s4, s2, 3")
    A("s_and_b32 s5, s3, 1"); A("s_lshl_b32 s5, s5, 3"); A("s_and_b32 s6, s4, 7"); A("s_add_u32 s%d, s5, s6" % sRB)
    A("s_lshr_b32 s5, s3, 1"); A("s_lshl_b32 s5, s5, 2"); A("s_lshr_b32 s6, s4, 3"); A("s_add_u32 s%d, s5, s6" % sP)
    A("s_lshl_b32 s%d, s%d, 2" % (sBLK, sRB)); A("s_add_u32 s%d, s%d, s%d" % (sBLK, sBLK, sW))
    A("s_waitcnt lgkmcnt(0)")
    srd(A, sWS, 48, WS_BYTES)
    A("s_lshl_b32 s3, s%d, 17" % sP)
    A("s_lshl_b32 s4, s%d, 12" % sRB)
    A("s_lshl_b32 s5, s%d, 16" % sW); A("s_add_u32 s5, s5, s4"); A("s_add_u32 s5, s5, 0x%x" % (KF - 8192))
    A("s_lshl_b32 s6, s4, 1"); A("s_mul_i32 s7, s%d, 12288" % sW); A("s_add_u32 s6, s6, s7"); A("s_add_u32 s6, s6, 0x%x" % (VF - 16384 - 24576))
    A("s_cmp_ge_u32 s%d, 2" % sW); A("s_cselect_b32 s5, s6, s5"); A("s_add_u32 s5, s5, s3")
    for i in range(12):
        if i % 4 == 0:
            A("s_add_u32 m0, s7, %d" % (i * 1024)); A("s_add_u32 s6, s5, %d" % (i * 1024))
        vm.issue("buffer_load_dwordx4 v%d, s[%d:%d], s6 offen offset:%d lds" % (vL16, sWS, sWS + 3, (i % 4) * 1024), "kv")
    A("s_lshl_b32 s4, s%d, 10" % sBLK); A("s_add_u32 s4, s4, s3"); A("s_add_u32 s4, s4, 0x%x" % QF); A("s_add_u32 s5, s4, 65536")
    vm.issue("buffer_load_dwordx4 %s, v%d, s[%d:%d], s4 offen" % (v(Q0, 4), vL16, sWS, sWS + 3), "q")
    vm.issue("buffer_load_dwordx4 %s, v%d, s[%d:%d], s5 offen" % (v(Q1, 4), vL16, sWS, sWS + 3), "q")
    A("v_and_b32 v5, 31, v%d" % vLane); A("v_lshrrev_b32 v6, 5, v%d" % vLane); A("v_lshlrev_b32 v6, 2, v6"); A("v_sub_u32 v5, v5, v6")
    A("v_mov_b32 v6, 0xff800000"); A("v_mov_b32 v7, 0")
    for rg in range(16):
        c = (rg // 4) * 8 + rg % 4
        A("v_cmp_le_i32 vcc, %d, v5" % c)
        A("v_cndmask_b32 v%d, v6, v7, vcc" % (MD + rg))
        A("v_cndmask_b32 v%d, v7, v6, vcc" % (ME + rg))
    for i in range(8):
        A("v_mov_b32 v%d, 0x3f803f80" % (V0 + i)); A("v_mov_b32 v%d, 0x3f803f80" % (V1 + i))
    for i in range(16):
        A("v_mov_b32 v%d, 0" % (O0 + i)); A("v_mov_b32 v%d, 0" % (O1 + i))
    A("s_mov_b32 s%d, 0x0000ffff" % sE0); A("s_mov_b32 s%d, 0x0000ffff" % (sE0 + 1))
    A("s_mov_b32 s%d, 0xffff0000" % sE1); A("s_mov_b32 s%d, 0xffff0000" % (sE1 + 1))
    A("s_sub_i32 s3, 8, s%d" % sBLK); A("s_max_i32 s3, s3, 0")
    A("s_add_u32 s4, s3, s%d" % sW)
    A("s_lshl_b32 s5, s4, 10"); A("v_add_u32 v%d, s5, v%d" % (vKA, vL16))
    A("s_lshl_b32 s5, s4, 11"); A("s_add_u32 s5, s5, 24576"); A("v_add_u32 v%d, s5, v%d" % (vVA, vL16))
    st()
    A("s_waitcnt vmcnt(0)"); A("s_barrier")
    st()
    def rdK0(off): A("ds_read_b128 %s, v%d offset:%d" % (v(K0, 4), vKA, off))
    def rdK1(off): A("ds_read_b128 %s, v%d offset:%d" % (v(K1_, 4), vKA, 12288 + off))
    def rdV(h, off):
        A("s_mov_b64 exec, s[%d:%d]" % ((sE0, sE0 + 1) if h == 0 else (sE1, sE1 + 1)))
        R = V0 if h == 0 else V1
        A("ds_read_b128 %s, v%d offset:%d" % (v(R, 4), vVA, off)); A("ds_read_b128 %s, v%d offset:%d" % (v(R + 4, 4), vVA, off + 1024))
        A("s_mov_b64 exec, -1")
    def mask(m): return {"0": "0", "D": v(MD, 16), "E": v(ME, 16)}[m]
    def half(S, Vr, O):
        for i in range(8): A("v_exp_f32 v%d, v%d" % (S + i, S + i))
        for i in range(4): A("v_cvt_pk_bf16_f32 v%d, v%d, v%d" % (P + i, S + 2 * i, S + 2 * i + 1))
        for i in range(8, 10): A("v_exp_f32 v%d, v%d" % (S + i, S + i))
        A("%s %s, %s, %s, %s" % (MF, v(O, 16), v(Vr, 4), v(P, 4), v(O, 16)))
        for i in range(10, 16): A("v_exp_f32 v%d, v%d" % (S + i, S + i))
        for i in range(4): A("v_cvt_pk_bf16_f32 v%d, v%d, v%d" % (P + 4 + i, S + 8 + 2 * i, S + 9 + 2 * i))
    def body(m1, m0n):
        A("s_waitcnt lgkmcnt(0)")
        A("%s %s, %s, %s, %s" % (MF, v(S1, 16), v(K1_, 4), v(Q1, 4), mask(m1)))
        if m0n is not None: rdK0(1024)
        half(S0, V0, O0)
        if m0n is not None:
            A("s_waitcnt lgkmcnt(0)")
            A("%s %s, %s, %s, %s" % (MF, v(O0, 16), v(V0 + 4, 4), v(P + 4, 4), v(O0, 16)))
            A("%s %s, %s, %s, %s" % (MF, v(S0, 16), v(K0, 4), v(Q0, 4), mask(m0n)))
            rdK1(1024); rdV(0, 2048)
        else:
            A("%s %s, %s, %s, %s" % (MF, v(O0, 16), v(V0 + 4, 4), v(P + 4, 4), v(O0, 16)))
        half(S1, V1, O1)
        A("%s %s, %s, %s, %s" % (MF, v(O1, 16), v(V1 + 4, 4), v(P + 4, 4), v(O1, 16)))
        if m0n is not None:
            rdV(1, 2048)
            A("v_add_u32 v%d, 1024, v%d" % (vKA, vKA)); A("v_add_u32 v%d, 2048, v%d" % (vVA, vVA))
    rdK0(0); rdK1(0); rdV(0, 0); rdV(1, 0)
    A("s_waitcnt lgkmcnt(0)")
    A("s_cmp_eq_u32 s3, 0"); A("s_cbranch_scc1 K2_full")
    A("s_cmp_eq_u32 s3, 8"); A("s_cbranch_scc1 K2_only")
    A("%s %s, %s, %s, 0" % (MF, v(S0, 16), v(K0, 4), v(Q0, 4)))
    A("s_sub_u32 s%d, 7, s3" % sCnt)
    A("s_cmp_eq_u32 s3, 7"); A("s_cbranch_scc1 K2_b7")
    A("s_branch K2_mid")
    A.label("K2_only")
    A("%s %s, %s, %s, %s" % (MF, v(S0, 16), v(K0, 4), v(Q0, 4), v(MD, 16)))
    A("s_branch K2_b8")
    A.label("K2_full")
    A("%s %s, %s, %s, %s" % (MF, v(S0, 16), v(K0, 4), v(Q0, 4), v(ME, 16)))
    A("s_mov_b32 s%d, 6" % sCnt)
    body("E", "0")
    A.label("K2_mid")
    A("s_nop 7");
    body("0", "0")
    A("s_sub_u32 s%d, s%d, 1" % (sCnt, sCnt)); A("s_cmp_lg_u32 s%d, 0" % sCnt); A("s_cbranch_scc1 K2_mid")
    A.label("K2_b7")
    body("0", "D")
    A.label("K2_b8")
    body("D", None)
    st()
    A("v_rcp_f32 v%d, v%d" % (T, O0 + 8)); A("v_rcp_f32 v%d, v%d" % (T + 1, O1))
    for i in range(8):
        A("v_mul_f32 v%d, v%d, v%d" % (O0 + i, O0 + i, T)); A("v_mul_f32 v%d, v%d, v%d" % (O1 + 8 + i, O1 + 8 + i, T + 1))
    for i in range(4):
        A("v_cvt_pk_bf16_f32 v%d, v%d, v%d" % (P + i, O0 + 2 * i, O0 + 2 * i + 1))
        A("v_cvt_pk_bf16_f32 v%d, v%d, v%d" % (P + 4 + i, O1 + 8 + 2 * i, O1 + 9 + 2 * i))
    A("s_mul_i32 s3, s%d, %d" % (sBLK, 144 * 1024)); A("s_lshl_b32 s4, s%d, 11" % sP); A("s_add_u32 s3, s3, s4"); A("s_add_u32 s3, s3, %d" % (112 * 1024))
    A("buffer_store_dwordx4 %s, v%d, s[%d:%d], s3 offen" % (v(P, 4), vL16, sWS, sWS + 3))
    A("buffer_store_dwordx4 %s, v%d, s[%d:%d], s3 offen offset:1024" % (v(P + 4, 4), vL16, sWS, sWS + 3))
    st.flush(sWS, sW)
    A("s_waitcnt vmcnt(0)")
    A.label("K2_end")
    A("s_endpgm")
    return A

def gen_k3():
    A = Asm(); vm = VM(A)
    vLane, vL16, vRA, vRB = 1, 2, 3, 4
    vD = [5, 6, 7, 8]
    ACC = 64; AF = 128; DEPTH = 8; T = 16
    sW, sR, sC = 24, 25, 26
    sDN, sWO, sWS, sXS, sOUT = 8, 12, 20, 16, 28
    sLW, sA0, sA1, sBd, sBo, sTmp = 32, 33, 34, 35, 36, 37
    A("s_cmp_ge_u32 s2, 256"); A("s_cbranch_scc1 K3_end")
    st = Stamps(A, 2); st()
    A("s_load_dwordx2 s[40:41], s[0:1], 0"); A("s_load_dwordx2 s[42:43], s[0:1], 16")
    A("s_load_dwordx4 s[44:47], s[0:1], 48"); A("s_load_dwordx2 s[48:49], s[0:1], 72")
    A("v_lshrrev_b32 v3, 6, v0"); A("v_and_b32 v%d, 63, v0" % vLane)
    A("v_readfirstlane_b32 s%d, v3" % sW)
    A("v_lshlrev_b32 v%d, 4, v%d" % (vL16, vLane))
    A("s_and_b32 s3, s2, 7"); A("s_lshr_b32 s4, s2, 3")
    A("s_lshl_b32 s5, s3, 2"); A("s_and_b32 s6, s4, 3"); A("s_add_u32 s%d, s5, s6" % sR); A("s_lshr_b32 s%d, s4, 2" % sC)
    A("s_mul_i32 s%d, s%d, 40960" % (sLW, sW))
    A("v_lshrrev_b32 v16, 3, v%d" % vLane); A("v_and_b32 v17, 7, v%d" % vLane)
    A("v_bfe_u32 v18, v%d, 4, 1" % vLane); A("v_lshlrev_b32 v18, 2, v18"); A("v_xor_b32 v17, v17, v18"); A("v_lshlrev_b32 v17, 4, v17")
    A("v_lshl_add_u32 v%d, v16, 10, v17" % vD[0])
    for j in range(1, 4): A("v_add_u32 v%d, %d, v%d" % (vD[j], j * 7168, vD[0]))
    A("v_lshrrev_b32 v16, 5, v%d" % vLane); A("v_lshlrev_b32 v16, 2, v16")
    A("v_bfe_u32 v17, v%d, 2, 2" % vLane); A("v_add_u32 v16, v16, v17")
    A("v_bfe_u32 v17, v%d, 4, 1" % vLane); A("v_lshlrev_b32 v17, 5, v17")
    A("v_and_b32 v18, 3, v%d" % vLane); A("v_lshlrev_b32 v18, 3, v18"); A("v_add_u32 v17, v17, v18")
    A("v_bfe_u32 v18, v16, 1, 1"); A("v_lshlrev_b32 v18, 6, v18"); A("v_add_u32 v17, v17, v18")
    A("v_lshl_add_u32 v%d, v16, 7, v17" % vRA)
    A("v_add_u32 v%d, s%d, v%d" % (vRA, sLW, vRA))
    A("v_xor_b32 v%d, 64, v%d" % (vRB, vRA))
    A("s_waitcnt lgkmcnt(0)")
    srd(A, sXS, 40, 2048 * 1024); srd(A, sWO, 42, 512 * 1024); srd(A, sDN, 44, 1792 * 1024); srd(A, sOUT, 46, 2048 * 1024); srd(A, sWS, 48, WS_BYTES)
    A("s_lshl_b32 s3, s%d, 7" % sC)
    A("s_mul_i32 s%d, s%d, %d" % (sBd, sW, 448 * 1024)); A("s_add_u32 s%d, s%d, s3" % (sBd, sBd))
    A("s_mul_i32 s%d, s%d, %d" % (sBo, sW, 128 * 1024)); A("s_add_u32 s%d, s%d, s3" % (sBo, sBo))
    A("s_mul_i32 s%d, s%d, %d" % (sA0, sR, 2 * 144 * 1024)); A("s_add_u32 s%d, s%d, %d" % (sA1, sA0, 144 * 1024))
    A("s_mul_i32 s3, s%d, %d" % (sW, 28 * 1024)); A("s_mul_i32 s4, s%d, %d" % (sW, 8 * 1024)); A("s_add_u32 s4, s4, %d" % (112 * 1024))
    A("s_add_u32 s50, s%d, s3" % sA0); A("s_add_u32 s51, s%d, s3" % sA1); A("s_add_u32 s52, s%d, s4" % sA0); A("s_add_u32 s53, s%d, s4" % sA1)
    def dma_chunk(c):
        for i in range(8):
            grp, j = i // 4, i % 4
            if j == 0:
                A("s_add_u32 m0, s%d, %d" % (sLW, (c % 5) * 8192 + grp * 4096))
                if c < 7: A("s_add_u32 s%d, s%d, %d" % (sTmp, sBd, (c * 64 + grp * 32) * 1024))
                else: A("s_add_u32 s%d, s%d, %d" % (sTmp, sBo, ((c - 7) * 64 + grp * 32) * 1024))
            sr = sDN if c < 7 else sWO
            vm.issue("buffer_load_dwordx4 v%d, s[%d:%d], s%d offen offset:%d lds" % (vD[j], sr, sr + 3, sTmp, j * 1024), "b%d" % c)
    def loadA(ks):
        s0 = 50 if ks < 28 else 52
        kk = ks if ks < 28 else ks - 28
        for rf in range(2):
            if kk % 4 == 0 and kk > 0:
                A("s_add_u32 s%d, s%d, 4096" % (s0 + rf, s0 + rf))
            vm.issue("buffer_load_dwordx4 %s, v%d, s[%d:%d], s%d offen offset:%d" % (v(AF + ((ks % DEPTH) * 2 + rf) * 4, 4), vL16, sWS, sWS + 3, s0 + rf, (kk % 4) * 1024), "a%d" % ks)
    def rdB(ks):
        off = ((ks // 4) % 5) * 8192 + (ks % 4) * 2048
        for cf in range(2):
            R = vRA if cf == 0 else vRB
            A("ds_read_b64_tr_b16 %s, v%d offset:%d" % (a((ks % 2) * 8 + cf * 4, 2), R, off))
            A("ds_read_b64_tr_b16 %s, v%d offset:%d" % (a((ks % 2) * 8 + cf * 4 + 2, 2), R, off + 1024))
    dma_chunk(0)
    for ks in range(DEPTH // 2): loadA(ks)
    dma_chunk(1)
    for ks in range(DEPTH // 2, DEPTH): loadA(ks)
    for c in range(2, 5): dma_chunk(c)
    A("v_and_b32 v16, 31, v%d" % vLane); A("v_lshrrev_b32 v17, 5, v%d" % vLane)
    A("v_lshlrev_b32 v16, 10, v16"); A("v_lshl_add_u32 v9, v17, 4, v16")
    A("s_lshr_b32 s3, s%d, 1" % sW); A("s_lshl_b32 s4, s%d, 1" % sR); A("s_add_u32 s3, s3, s4"); A("s_lshl_b32 s3, s3, 15")
    A("s_and_b32 s4, s%d, 1" % sW); A("s_lshl_b32 s4, s4, 6"); A("s_add_u32 s3, s3, s4"); A("s_lshl_b32 s4, s%d, 7" % sC); A("s_add_u32 s54, s3, s4")
    vm.issue("buffer_load_dwordx4 v[48:51], v9, s[%d:%d], s54 offen" % (sXS, sXS + 3), "xr")
    vm.issue("buffer_load_dwordx4 v[52:55], v9, s[%d:%d], s54 offen offset:32" % (sXS, sXS + 3), "xr")
    st()
    vm.wait("b0"); st(); rdB(0)
    for ks in range(36):
        if ks % 9 == 0 and ks: st()
        if ks + 1 < 36:
            if (ks + 1) % 4 == 0: vm.wait("b%d" % ((ks + 1) // 4))
            rdB(ks + 1)
        vm.wait("a%d" % ks)
        A("s_waitcnt lgkmcnt(%d)" % (4 if ks + 1 < 36 else 0))
        for cf in range(2):
            for rf in range(2):
                d = v(ACC + (rf * 2 + cf) * 16, 16)
                A("%s %s, %s, %s, %s" % (MF, d, a((ks % 2) * 8 + cf * 4, 4), v(AF + ((ks % DEPTH) * 2 + rf) * 4, 4), d if ks else "0"))
        if ks + DEPTH < 36: loadA(ks + DEPTH)
        if ks % 4 == 0 and ks >= 4 and ks // 4 + 4 < 9:
            dma_chunk(ks // 4 + 4)
    st()
    A("s_barrier")
    st()
    A("s_lshl_b32 s3, s%d, 14" % sW); A("v_add_u32 v10, s3, v%d" % vL16)
    for t in range(4):
        for j in range(4):
            A("ds_write_b128 v10, %s offset:%d" % (v(ACC + t * 16 + 4 * j, 4), t * 4096 + j * 1024))
    A("s_lshl_b32 s3, s%d, 12" % sW); A("v_add_u32 v10, s3, v%d" % vL16)
    A("s_waitcnt lgkmcnt(0)"); A("s_barrier")
    for sw in range(4):
        for j in range(4):
            A("ds_read_b128 %s, v10 offset:%d" % (v(ACC + sw * 16 + 4 * j, 4), sw * 16384 + j * 1024))
    A("s_waitcnt lgkmcnt(0)")
    for i in range(16):
        A("v_add_f32 v%d, v%d, v%d" % (ACC + i, ACC + i, ACC + 16 + i)); A("v_add_f32 v%d, v%d, v%d" % (ACC + 32 + i, ACC + 32 + i, ACC + 48 + i))
    for i in range(16): A("v_add_f32 v%d, v%d, v%d" % (ACC + i, ACC + i, ACC + 32 + i))
    for jj in range(2):
        for i in range(4):
            A("v_permlane32_swap_b32 v%d, v%d" % (ACC + 8 * jj + i, ACC + 8 * jj + 4 + i))
    vm.wait("xr")
    A("s_mov_b32 s3, 0xffff0000")
    for jj in range(2):
        for i in range(4):
            x = 48 + 4 * jj + i
            A("v_lshlrev_b32 v16, 16, v%d" % x); A("v_and_b32 v17, s3, v%d" % x)
            A("v_add_f32 v16, v16, v%d" % (ACC + 8 * jj + 2 * i)); A("v_add_f32 v17, v17, v%d" % (ACC + 8 * jj + 2 * i + 1))
            A("v_cvt_pk_bf16_f32 v%d, v16, v17" % (56 + 4 * jj + i))
    A("buffer_store_dwordx4 v[56:59], v9, s[%d:%d], s54 offen" % (sOUT, sOUT + 3))
    A("buffer_store_dwordx4 v[60:63], v9, s[%d:%d], s54 offen offset:32" % (sOUT, sOUT + 3))
    st.flush(sWS, sW)
    A("s_waitcnt vmcnt(0)")
    A.label("K3_end")
    A("s_endpgm")
    return A

def build(extra_empty=0):
    hdr = "; generated by gen/v1.py\n"
    hdr += "; @launch kernel=k1_kernel grid=(256,1,1) block=(256,1,1) lds=163840\n"
    hdr += "; @launch kernel=k2_kernel grid=(256,1,1) block=(256,1,1) lds=53248\n"
    hdr += "; @launch kernel=k3_kernel grid=(256,1,1) block=(256,1,1) lds=163840\n"
    for i in range(extra_empty):
        hdr += "; @launch kernel=k0_kernel grid=(256,1,1) block=(256,1,1) lds=0\n"
    t = hdr + '.amdgcn_target "amdgcn-amd-amdhsa--gfx950"\n'
    for nm, g in (("k1_kernel", gen_k1), ("k2_kernel", gen_k2), ("k3_kernel", gen_k3)):
        t += kernel_header(nm) + "\n".join(hazard.fix(g().lines, True)) + "\n"
    if extra_empty:
        t += kernel_header("k0_kernel") + "    s_endpgm\n"
    t += kernel_desc("k1_kernel", 288, 100, 256) + kernel_desc("k2_kernel", 160, 100, 160) + kernel_desc("k3_kernel", 208, 100, 192)
    if extra_empty:
        t += kernel_desc("k0_kernel", 8, 16, 8)
    return t

if __name__ == "__main__":
    if "--stamp" in sys.argv:
        STAMP = True; sys.argv.remove("--stamp")
    out = sys.argv[1] if len(sys.argv) > 1 else "cdna_kernels/%s.s" % NAME
    open(out, "w").write(build(int(sys.argv[2]) if len(sys.argv) > 2 else 0))
```

```python
import sys, struct
from asmlib import *
import hazard

NAME = "parallel_sum__sliding_block__swiglu_ffn__prompt"
A2F = 0
B2T = 0xA00000
QF = 0x1000000
KF = QF + 0x200000
VF = QF + 0x400000
STAMP_OFF = 0x1600000
FLG = 0x1700000
FK = FLG + 0x100; FQ = FLG + 0x1200; FH = FLG + 0x4000; FO = FLG + 0x6000; FB = FLG + 0x8000; EOFF = FLG + 0xA000
WS_BYTES = 0x1710000
LOG2E = 1.4426950408889634
MF = "v_mfma_f32_32x32x16_bf16"
OPT = dict(stamp=False, fine=False, pf_code=True, rot=True, d2=7, rot2=True, fb_force=False, touch=False,
           pro_first=12, budget=12, bulk=0, s0first=0, xahead=4, kvst=9, early=True, rmap=True, pubh=0, wopf=6)
NAMES = {}

def f32(x):
    return "0x%08x" % struct.unpack("<I", struct.pack("<f", x))[0]

class Track:
    def __init__(self, A, name, maxn):
        self.A = A; self.ops = []; self.done = -1; self.name = name; self.maxn = maxn
    def issue(self, text, tag):
        self.A(text); self.ops.append(tag)
    def wait(self, tag):
        idx = max(i for i, t in enumerate(self.ops) if t == tag)
        if idx <= self.done: return
        n = sum(1 for t in self.ops[idx + 1:] if not t.startswith("?"))
        self.done = idx
        self.A("s_waitcnt %s(%d)" % (self.name, min(n, self.maxn)))
    def mark_all(self): self.done = len(self.ops) - 1
    def save(self): return (list(self.ops), self.done)
    def load(self, st): self.ops = list(st[0]); self.done = st[1]

def gen():
    A = Asm(); vm = Track(A, "vmcnt", 63); lg = Track(A, "lgkmcnt", 15)
    SC = " sc1"
    def srd(d, lo, nbytes):
        A("s_mov_b32 s%d, s%d" % (d, lo)); A("s_mov_b32 s%d, s%d" % (d + 1, lo + 1))
        A("s_mov_b32 s%d, 0x%x" % (d + 2, nbytes)); A("s_mov_b32 s%d, 0x20000" % (d + 3))
    def M(*lines):
        for l in lines: A(l)
    sXS, sWQ, sGU, sWS, sDBG, sOUT, sDN, sWO = 8, 12, 16, 20, 44, 52, 56, 80
    sW, sRB, sIQ, sP, sBLK, sTy, sROT = 24, 25, 26, 27, 28, 29, 30
    sR, sC2, sLW, sTmp, sIdx = 31, 32, 33, 34, 35
    sKVb, sQb, sGa, sGb, sG1 = 36, 37, 38, 39, 40
    sHa, sHb, sH1 = 41, 42, 43
    sMsk, sFl = 50, 51
    sSt = 60
    sKq, sKg, sK2 = 64, 68, 72
    sBd, sRot2, sBo, sStg, sEarly = 74, 75, 99, 48, 49
    sBg = 76
    sE0, sE1 = 64, 66
    sCnt, sI0, sMask = 84, 85, 86
    sAd, sAo = 88, 90
    sXo, sSpin, sOne = 92, 93, 98
    sPtr = 64
    vLane, vL16, vL8, vTag = 1, 2, 3, 4
    vRA = [6, 7]; vRB = [9, 10]; vRP = [12, 13]; vBA, vBB = 8, 11; vL16b = 15
    vD1 = [16, 17, 18, 19]; vD2 = [20, 21, 22, 23]
    vF, vRet, vXo, vPF, vFo = 24, 26, 27, 28, 29
    vMu, vRs = 30, 31
    T = 32
    vDB = [T + 20, T + 21, T + 22, T + 23]
    vX = [56, 57, 58, 59]; vBT = 60; vXR = 44; vSt = 48
    ACA, ACB = 64, 128
    def Xr(s_): return v(192 + 4 * s_, 4) if s_ < 16 else a(192 + 4 * (s_ - 16), 4)
    def Xraw(s_): return 192 + 4 * s_ if s_ < 16 else 128 + 4 * (s_ - 16)
    nst = [0]
    def stamp(name, fine=False):
        if not OPT["stamp"] or (fine and not OPT["fine"]): return
        NAMES[nst[0]] = name
        M("s_memtime s[94:95]", "s_waitcnt lgkmcnt(0)"); lg.mark_all()
        A("v_writelane_b32 v63, s94, %d" % nst[0]); nst[0] += 1
    def stamp_flush():
        if not OPT["stamp"]: return
        A("s_waitcnt vmcnt(0)"); stamp("end")
        M("s_memrealtime s[94:95]", "s_waitcnt lgkmcnt(0)", "v_writelane_b32 v63, s94, 63", "v_writelane_b32 v63, s96, 62")
        M("s_lshl_b32 s3, s2, 2", "s_add_u32 s3, s3, s%d" % sW, "s_lshl_b32 s3, s3, 8", "s_add_u32 s3, s3, 0x%x" % STAMP_OFF)
        A("v_lshlrev_b32 v62, 2, v%d" % vLane)
        A("buffer_store_dword v63, v62, s[%d:%d], s3 offen" % (sWS, sWS + 3))

    M("s_cmp_ge_u32 s2, 256", "s_cbranch_scc1 L_end")
    M("s_load_dwordx4 s[4:7], s[0:1], 0", "s_load_dwordx2 s[48:49], s[0:1], 72", "s_load_dwordx4 s[64:67], s[0:1], 32",
      "s_load_dwordx4 s[68:71], s[0:1], 48", "s_load_dwordx2 s[72:73], s[0:1], 16", "s_load_dwordx2 s[74:75], s[0:1], 64")
    if OPT["stamp"]:
        M("s_memrealtime s[96:97]", "v_mov_b32 v63, 0"); stamp("t0")
    M("v_lshrrev_b32 v3, 6, v0", "v_and_b32 v%d, 63, v0" % vLane, "v_readfirstlane_b32 s%d, v3" % sW)
    M("s_and_b32 s3, s2, 7", "s_lshr_b32 s%d, s2, 3" % sIdx)
    M("s_and_b32 s%d, s3, 1" % sRB, "s_lshl_b32 s%d, s%d, 3" % (sRB, sRB), "s_and_b32 s%d, s%d, 7" % (sTmp, sIdx), "s_add_u32 s%d, s%d, s%d" % (sRB, sRB, sTmp))
    A("s_lshr_b32 s%d, s%d, 3" % (sTy, sIdx))
    if OPT["rot"]: M("s_add_u32 s%d, s%d, s%d" % (sROT, sRB, sTy), "s_and_b32 s%d, s%d, 3" % (sROT, sROT))
    else: A("s_mov_b32 s%d, 0" % sROT)
    M("s_lshl_b32 s%d, s%d, 2" % (sBLK, sRB), "s_add_u32 s%d, s%d, s%d" % (sBLK, sBLK, sW))
    M("v_lshrrev_b32 v6, 3, v%d" % vLane, "v_and_b32 v7, 7, v%d" % vLane, "v_lshrrev_b32 v8, 4, v%d" % vLane,
      "v_xor_b32 v7, v7, v8", "v_lshlrev_b32 v7, 4, v7", "v_lshl_add_u32 v%d, v6, 10, v7" % vX[0],
      "v_xor_b32 v%d, 64, v%d" % (vX[1], vX[0]), "v_add_u32 v%d, 7168, v%d" % (vX[1], vX[1]),
      "v_add_u32 v%d, 14336, v%d" % (vX[2], vX[0]), "v_add_u32 v%d, 14336, v%d" % (vX[3], vX[1]))
    sXrow, sXlds, sXrot = 76, 77, 78
    M("s_lshl_b32 s%d, s%d, 15" % (sXrow, sBLK), "s_lshl_b32 s%d, s%d, 15" % (sXlds, sW), "s_add_u32 s%d, s%d, 32768" % (sXlds, sXlds),
      "s_lshl_b32 s%d, s%d, 8" % (sXrot, sROT), "s_waitcnt lgkmcnt(0)")
    srd(sXS, 4, 2048 * 1024)
    xl = []
    for c in range(8):
        for rq in range(4):
            def f(c=c, rq=rq):
                if rq == 0:
                    M("s_add_u32 m0, s%d, %d" % (sXlds, c * 4096), "s_add_u32 s79, s%d, %d" % (sXrot, c * 128), "s_and_b32 s79, s79, 1023", "s_add_u32 s79, s79, s%d" % sXrow)
                vm.issue("buffer_load_dwordx4 v%d, s[%d:%d], s79 offen offset:%d lds" % (vX[rq], sXS, sXS + 3, rq * 1024), "x%d" % c)
            xl.append(f)
    for _ in range(OPT["pro_first"]): xl.pop(0)()

    SB = []
    def blk(f): SB.append(f); return f
    @blk
    def _():
        srd(sWQ, 6, 512 * 3072); srd(sWS, 48, WS_BYTES)
        M("s_lshr_b32 s%d, s3, 1" % sP, "s_lshl_b32 s%d, s%d, 1" % (sIQ, sP), "s_lshl_b32 s%d, s%d, 2" % (sP, sP), "s_add_u32 s%d, s%d, s%d" % (sP, sP, sTy),
          "s_and_b32 s4, s%d, 1" % sTy, "s_add_u32 s%d, s%d, s4" % (sIQ, sIQ), "s_lshr_b32 s%d, s%d, 1" % (sTy, sTy),
          "s_and_b32 s4, s3, 1", "s_lshl_b32 s4, s4, 4", "s_lshr_b32 s%d, s3, 1" % sR, "s_lshl_b32 s%d, s%d, 2" % (sR, sR), "s_add_u32 s%d, s%d, s4" % (sR, sR),
          "s_and_b32 s4, s%d, 3" % sIdx, "s_add_u32 s%d, s%d, s4" % (sR, sR), "s_lshr_b32 s%d, s%d, 2" % (sC2, sIdx))
    @blk
    def _():
        M("s_cmp_ge_u32 s%d, 2" % sW, "s_cselect_b32 s%d, s66, s64" % sGU, "s_cselect_b32 s%d, s67, s65" % (sGU + 1),
          "s_mov_b32 s%d, %d" % (sGU + 2, 512 * 3584), "s_mov_b32 s%d, 0x20000" % (sGU + 3))
        srd(sDN, 68, 1792 * 1024); srd(sWO, 72, 512 * 1024)
        srd(sOUT, 70, 2048 * 1024); srd(sDBG, 74, 256)
    @blk
    def _():
        M("s_and_b32 s5, s%d, 1" % sW, "s_lshr_b32 s6, s%d, 1" % sW, "s_lshl_b32 s7, s%d, 7" % sIQ)
        M("s_mul_i32 s3, s%d, 320" % sIQ, "s_add_u32 s3, s3, 1024", "s_and_b32 s4, s%d, 1" % sIQ, "s_lshl_b32 s4, s4, 6", "s_add_u32 s%d, s3, s4" % sHa,
          "s_add_u32 s%d, s%d, 128" % (sHb, sHa), "s_lshl_b32 s4, s4, 2", "s_sub_u32 s4, 256, s4", "s_add_u32 s%d, s3, s4" % sH1,
          "s_cmp_eq_u32 s%d, 0" % sTy, "s_cselect_b32 s%d, s7, s%d" % (sHa, sHa))
        for t in range(4):
            M("s_add_u32 s4, s%d, %d" % (sROT, t), "s_and_b32 s4, s4, 3", "s_mul_i32 s%d, s4, %d" % (sKq + t, 128 * 3072), "s_mul_i32 s%d, s4, %d" % (sKg + t, 128 * 3584))
    @blk
    def _():
        M("s_mul_i32 s%d, s5, %d" % (sQb, 64 * 3072), "s_add_u32 s%d, s%d, s7" % (sQb, sQb),
          "s_lshl_b32 s3, s6, 10", "s_add_u32 s%d, s%d, s3" % (sKVb, sQb), "s_add_u32 s%d, s%d, 1024" % (sKVb, sKVb),
          "s_mul_i32 s3, s5, %d" % (64 * 3584), "s_add_u32 s%d, s3, s%d" % (sGa, sHa), "s_add_u32 s%d, s3, s%d" % (sGb, sHb), "s_mov_b32 s%d, s%d" % (sG1, sH1))
    @blk
    def _():
        A("s_mov_b32 s4, 0x%x" % EOFF)
        vm.issue("buffer_load_dwordx2 %s, off, s[%d:%d], s4 sc1" % (v(vTag, 2), sWS, sWS + 3), "ep")
        if OPT["pf_code"]:
            M("s_getpc_b64 s[88:89]", "s_lshl_b32 s90, s%d, 11" % sIdx, "v_lshlrev_b32 v6, 7, v%d" % vLane, "v_add_u32 v6, s90, v6",
              "v_min_u32 v6, CODE_SPAN, v6", "v_mov_b32 v7, s89", "v_add_co_u32 v6, vcc, s88, v6", "v_addc_co_u32 v7, vcc, 0, v7, vcc", "s_mov_b64 exec, 0xffff")
            vm.issue("global_load_dword v%d, v[6:7], off" % vXo, "pfc")
            A("s_mov_b64 exec, -1")
    @blk
    def _():
        M("v_and_b32 v40, 31, v%d" % vLane, "v_lshrrev_b32 v41, 5, v%d" % vLane, "v_bfe_u32 v42, v40, 1, 3", "v_xor_b32 v42, v42, v41",
          "v_lshlrev_b32 v42, 4, v42", "v_lshl_add_u32 v42, v40, 7, v42", "v_add_u32 v%d, s%d, v42" % (vXR, sXlds))
        for b in range(1, 4): A("v_xor_b32 v%d, %d, v%d" % (vXR + b, b << 5, vXR))
    @blk
    def _():
        for i in range(8): A("v_mov_b32 v%d, 0" % (vSt + i))
        M("s_mov_b32 s%d, 0x3f803f80" % sOne, "s_mov_b32 s%d, 0xffff0000" % sMsk, "s_lshl_b32 s%d, s%d, 13" % (sLW, sW))
    @blk
    def _():
        M("v_lshrrev_b32 v40, 3, v%d" % vLane, "v_and_b32 v41, 7, v%d" % vLane, "v_bfe_u32 v42, v%d, 4, 1" % vLane, "v_lshlrev_b32 v42, 2, v42",
          "v_xor_b32 v41, v41, v42", "v_lshlrev_b32 v41, 4, v41", "v_mul_u32_u24 v42, 3584, v40", "v_add_u32 v%d, v42, v41" % vD2[0],
          "v_mul_u32_u24 v42, 3072, v40", "v_add_u32 v43, v42, v41", "v_lshl_add_u32 v61, v40, 10, v41")
    @blk
    def _():
        M("v_lshrrev_b32 v40, 2, v%d" % vLane, "v_and_b32 v41, 3, v%d" % vLane, "v_lshlrev_b32 v41, 4, v41", "v_mul_u32_u24 v42, 3584, v40", "v_add_u32 v42, v42, v41",
          "s_cmp_eq_u32 s%d, 0" % sTy, "s_cselect_b64 vcc, -1, 0", "s_mov_b32 s4, %d" % (8 * 3072 - 1024), "s_cselect_b32 s4, s4, %d" % (16 * 3584 - 1024),
          "v_cndmask_b32 v%d, v42, v43, vcc" % vD1[0])
        for j in range(1, 4):
            M("v_add_u32 v%d, s4, v%d" % (vD1[j], vD1[j - 1]), "v_add_u32 v%d, %d, v%d" % (vD2[j], j * (8 * 3584 - 1024), vD2[0]))
    NCRIT = len(SB)
    @blk
    def _():
        M("v_lshlrev_b32 v%d, 4, v%d" % (vL16, vLane), "v_lshlrev_b32 v%d, 3, v%d" % (vL8, vLane), "v_add_u32 v%d, 4096, v%d" % (vL16b, vL16))
        M("s_cmp_eq_u32 s%d, 0" % sTy, "s_cselect_b32 s3, s6, s5", "s_mov_b32 s7, %d" % (128 * 3072), "s_cselect_b32 s7, s7, %d" % (128 * 3584), "s_add_u32 s3, s3, s%d" % sROT)
        for t in range(2): M("s_add_u32 s4, s3, %d" % (2 * t), "s_and_b32 s4, s4, 3", "s_mul_i32 s%d, s4, s7" % (sK2 + t))
    @blk
    def _():
        M("v_lshrrev_b32 v40, 5, v%d" % vLane, "v_bfe_u32 v41, v%d, 2, 2" % vLane, "v_lshl_add_u32 v42, v40, 3, v41", "v_lshl_add_u32 v39, v40, 2, v41",
          "v_bfe_u32 v43, v%d, 4, 1" % vLane, "v_lshlrev_b32 v43, 5, v43", "v_and_b32 v38, 3, v%d" % vLane, "v_lshl_add_u32 v43, v38, 3, v43",
          "v_lshl_add_u32 v%d, v42, 6, v43" % vRP[0])
    @blk
    def _():
        M("v_bfe_u32 v38, v41, 1, 1", "v_lshl_add_u32 v43, v38, 6, v43", "v_lshl_add_u32 v%d, v42, 7, v43" % vRA[0], "v_xor_b32 v%d, 64, v%d" % (vRB[0], vRA[0]))
        for R in (vRA, vRB, vRP): A("v_add_u32 v%d, 0x10000, v%d" % (R[1], R[0]))
        M("s_add_u32 s%d, s%d, 131072" % (sStg, sLW), "v_lshl_add_u32 v%d, v39, 7, v43" % vBA, "v_add_u32 v%d, s%d, v%d" % (vBA, sStg, vBA), "v_xor_b32 v%d, 64, v%d" % (vBB, vBA))
    @blk
    def _():
        A("s_mul_i32 s3, s%d, %d" % (sBLK, 144 * 1024))
        for sr in (sHa, sHb, sH1): M("s_lshl_b32 s%d, s%d, 5" % (sr, sr), "s_add_u32 s%d, s%d, s3" % (sr, sr))
        M("s_lshl_b32 s3, s%d, 7" % sC2, "s_mul_i32 s%d, s%d, %d" % (sBd, sW, 448 * 1024), "s_add_u32 s%d, s%d, s3" % (sBd, sBd),
          "s_lshl_b32 s%d, s%d, 17" % (sBo, sW), "s_add_u32 s%d, s%d, s3" % (sBo, sBo))
        if OPT["rot2"]:
            M("s_and_b32 s3, s%d, 3" % sR, "s_lshl_b32 s3, s3, 1", "s_add_u32 s3, s3, s%d" % sC2, "s_cmp_ge_u32 s3, 7", "s_cselect_b32 s4, 7, 0", "s_sub_u32 s3, s3, s4",
              "s_cmp_ge_u32 s3, 7", "s_cselect_b32 s4, 7, 0", "s_sub_u32 s%d, s3, s4" % sRot2)
        else: A("s_mov_b32 s%d, 0" % sRot2)
    order = [0, 1, 2, 3, 6, 7, 8]
    for i in order: SB[i]()
    late = [f for i, f in enumerate(SB) if i not in order]

    def dma_stage(kind, t, slot, tag, mixed=False):
        res = []
        for i in range(8):
            grp, j = i // 4, i % 4
            def f(grp=grp, j=j):
                if kind == "KV": base, sk, add, srd_, vd = sKVb, sKq + t, 32 * 3072, sWQ, vD1
                elif kind == "Q": base, sk, add, srd_, vd = sQb, sK2 + t, 32 * 3072, sWQ, vD1
                elif kind == "Pa": base, sk, add, srd_, vd = sGa, sKg + t, 32 * 3584, sGU, vD2
                elif kind == "Pb": base, sk, add, srd_, vd = sGb, sKg + t, 32 * 3584, sGU, vD2
                elif kind == "P1": base, sk, add, srd_, vd = sG1, sK2 + t, 64 * 3584, sGU, vD1
                if j == 0 or mixed:
                    A("s_add_u32 m0, s%d, %d" % (sLW, slot * 32768 + grp * 4096))
                if j == 0:
                    if grp == 0: A("s_add_u32 s%d, s%d, s%d" % (sTmp, base, sk))
                    else: A("s_add_u32 s%d, s%d, %d" % (sTmp, sTmp, add))
                vm.issue("buffer_load_dwordx4 v%d, s[%d:%d], s%d offen offset:%d lds" % (vd[j], srd_, srd_ + 3, sTmp, j * 1024), tag)
            res.append(f)
        return res

    def quad(kind, t, slot, q):
        res = []
        sb = slot * 32768; bi = sb // 65536; so = sb % 65536
        for j in range(4):
            if kind in ("KV", "Pa", "Pb"):
                res.append((j, 8 * t + q, (vRA if j % 2 == 0 else vRB)[bi], so + (j >> 1) * 16384 + q * 2048, 512))
            elif kind == "Q":
                kk = 2 * q + (j >> 1)
                res.append((j & 1, 16 * t + kk, (vRA if j % 2 == 0 else vRB)[bi], so + kk * 2048, 512))
            else:
                kk = 2 * q + (j >> 1)
                res.append((j & 1, 16 * t + kk, vRP[bi], so + (j & 1) * 16384 + kk * 1024, 256))
        return res

    def rd(q4, j, buf, tag):
        _, _, ar, off, d2 = q4[j]
        lg.issue("ds_read_b64_tr_b16 %s, v%d offset:%d" % (a(buf * 16 + j * 4, 2), ar, off), tag)
        lg.issue("ds_read_b64_tr_b16 %s, v%d offset:%d" % (a(buf * 16 + j * 4 + 2, 2), ar, off + d2), tag)

    def store(P, soff, off, tag):
        if OPT.get("nostore") and tag != "sto":
            vm.ops.append("?" + tag); vm.ops.append(tag); vm.ops.pop(); vm.ops[-1] = tag if False else vm.ops[-1]
            A("s_nop 0"); vm.ops[-1] = tag; A("buffer_load_dword v28, off, s[%d:%d], 0" % (sWS, sWS + 3)); return
        vm.issue("buffer_store_dwordx4 %s, v%d, s[%d:%d], s%d offen offset:%d%s" % (v(P, 4), vL16, sWS, sWS + 3, soff, off, SC), tag)

    def I(text, cost=4): return (cost, (lambda t=text: A(t)))
    PK = [T + 8, T + 12]
    def st_swiglu(acc, ncf, uoff, sH, tag):
        els = []
        for cf in range(ncf):
            for i in range(16): els.append((acc + cf * 16 + i, acc + uoff + cf * 16 + i))
        N = len(els); out = []
        ta = lambda e: T + (e % 6)
        for e in range(N + 6):
            if 0 <= e - 1 < N: out.append(I("v_exp_f32 v%d, v%d" % (ta(e - 1), ta(e - 1)), 8))
            if e < N: out.append(I("v_mul_f32 v%d, %s, v%d" % (ta(e), f32(-LOG2E), els[e][0])))
            if 0 <= e - 2 < N: out.append(I("v_add_f32 v%d, 1.0, v%d" % (ta(e - 2), ta(e - 2))))
            if 0 <= e - 3 < N: out.append(I("v_rcp_f32 v%d, v%d" % (ta(e - 3), ta(e - 3)), 8))
            if 0 <= e - 1 < N: out.append(I("v_mul_f32 v%d, v%d, v%d" % (els[e - 1][1], els[e - 1][0], els[e - 1][1])))
            if 0 <= e - 4 < N: out.append(I("v_mul_f32 v%d, v%d, v%d" % (els[e - 4][1], ta(e - 4), els[e - 4][1])))
            k = e - 5
            if 0 <= k < N and k % 2 == 1:
                fr = k // 8
                out.append(I("v_cvt_pk_bf16_f32 v%d, v%d, v%d" % (PK[fr % 2] + (k % 8) // 2, els[k - 1][1], els[k][1])))
                if k % 8 == 7: out.append((-8, (lambda fr=fr: store(PK[fr % 2], sH, fr * 1024, tag))))
        return out
    def st_kv(acc):
        out = [(2, lambda: M("s_lshl_b32 s%d, s%d, 18" % (sSt, sIQ), "s_lshl_b32 s%d, s%d, 10" % (sSt + 1, sBLK),
                             "s_add_u32 s%d, s%d, s%d" % (sSt + 2, sSt, sSt + 1), "s_add_u32 s%d, s%d, s%d" % (sSt, sSt + 2, sSt + 1)))]
        n = 0
        for f in (0, 2, 1, 3):
            for hf in range(2):
                r0 = acc + f * 16 + hf * 8; P = PK[n % 2]; n += 1
                for i in range(4): out.append(I("v_cvt_pk_bf16_f32 v%d, v%d, v%d" % (P + i, r0 + 2 * i, r0 + 2 * i + 1)))
                def g(P=P, f=f, hf=hf):
                    if f < 2:
                        A("s_add_u32 s%d, s%d, 0x%x" % (sSt + 3, sSt + 2, KF + (2 * f + hf) * 65536)); store(P, sSt + 3, 0, "stkv")
                    else:
                        if hf == 0: A("s_add_u32 s%d, s%d, 0x%x" % (sSt + 3, sSt, VF + (f - 2) * 131072))
                        store(P, sSt + 3, hf * 1024, "stkv")
                out.append((-8, g))
        return out
    def st_q(acc):
        out = []; n = 0
        for f in range(2):
            for hf in range(2):
                r0 = acc + f * 16 + hf * 8; P = PK[n % 2]; n += 1
                for i in range(8): out.append(I("v_mul_f32 v%d, %s, v%d" % (r0 + i, f32(0.25 * LOG2E), r0 + i)))
                for i in range(4): out.append(I("v_cvt_pk_bf16_f32 v%d, v%d, v%d" % (P + i, r0 + 2 * i, r0 + 2 * i + 1)))
                def g(P=P, f=f, hf=hf):
                    A("s_add_u32 s%d, s%d, 0x%x" % (sSt + 3, sSt + 2, QF + (2 * f + hf) * 65536)); store(P, sSt + 3, 0, "stq")
                out.append((-8, g))
        return out
    def st_norm(s_):
        out = []; x = Xraw(s_)
        for i in range(4):
            out.append(I("v_lshlrev_b32 v%d, 16, v%d" % (T + 2 * i, x + i))); out.append(I("v_and_b32 v%d, s%d, v%d" % (T + 1 + 2 * i, sMsk, x + i)))
        for i in range(8): out.append(I("v_fma_f32 v%d, v%d, v%d, v%d" % (T + i, T + i, vRs, vMu)))
        for i in range(4): out.append(I("v_cvt_pk_bf16_f32 v%d, v%d, v%d" % (x + i, T + 2 * i, T + 1 + 2 * i)))
        if s_ >= 16:
            for i in range(4): out.append(I("v_accvgpr_write_b32 a%d, v%d" % (192 + 4 * (s_ - 16) + i, x + i)))
        return out

    def publish(soff):
        A("s_mov_b64 exec, 1")
        vm.issue("buffer_store_dwordx2 %s, v%d, s[%d:%d], s%d offen%s" % (v(vTag, 2), vL16, sWS, sWS + 3, soff, SC), "?flag")
        A("s_mov_b64 exec, -1")
    def poll_issue(voff, soff, tag):
        vm.issue("buffer_load_dwordx2 %s, v%d, s[%d:%d], s%d offen sc1" % (v(vF, 2), voff, sWS, sWS + 3, soff), tag)
    def poll_check(voff, soff, tag):
        L = A.newlabel("L_poll"); D = A.newlabel("L_polld")
        chk = ["v_cmp_eq_u64 vcc, %s, %s" % (v(vF, 2), v(vTag, 2)), "s_and_b64 vcc, vcc, s[%d:%d]" % (sMask, sMask + 1),
               "s_cmp_eq_u64 vcc, s[%d:%d]" % (sMask, sMask + 1), "s_cbranch_scc1 %s" % D]
        stamp("pre_" + tag, True)
        vm.wait(tag)
        stamp("vm_" + tag, True)
        M(*chk)
        A("s_mov_b32 s%d, 0x20000" % sSpin)
        A.label(L)
        A("buffer_load_dwordx2 %s, v%d, s[%d:%d], s%d offen sc1" % (v(vF, 2), voff, sWS, sWS + 3, soff))
        A("s_waitcnt vmcnt(0)")
        M(*chk)
        M("s_sub_u32 s%d, s%d, 1" % (sSpin, sSpin), "s_cmp_lg_u32 s%d, 0" % sSpin, "s_cbranch_scc1 %s" % L)
        A.label(D)
        stamp("ok_" + tag, True)

    def Breg(p, cf):
        if p < 28: return a(32 + p * 8 + cf * 4, 4)
        return a(((p - 28) % 2) * 8 + cf * 4, 4)
    def b2_dma(n):
        res = []
        for j in range(4):
            def f(j=j):
                if j == 0:
                    if n >= 2: lg.wait("b2r%d" % (n - 2))
                    if n % 2 == 0:
                        M("s_add_u32 s%d, s%d, %d" % (sBg, sRot2, n // 2), "s_cmp_ge_u32 s%d, 7" % sBg, "s_cselect_b32 s%d, 7, 0" % (sBg + 1),
                          "s_sub_u32 s%d, s%d, s%d" % (sBg, sBg, sBg + 1), "s_lshl_b32 s%d, s%d, 16" % (sBg, sBg), "s_add_u32 s%d, s%d, s%d" % (sBg, sBg, sBd))
                    else: A("s_add_u32 s%d, s%d, 32768" % (sBg, sBg))
                A("s_add_u32 m0, s%d, %d" % (sStg, (n % 2) * 4096))
                vm.issue("buffer_load_dwordx4 v%d, s[%d:%d], s%d offen offset:%d lds" % (vDB[j], sDN, sDN + 3, sBg, j * 1024), "b2d%d" % n)
            res.append(f)
        return res
    def b2_read(n):
        res = []
        for kk in range(2):
            for cf in range(2):
                def f(kk=kk, cf=cf):
                    if kk == 0 and cf == 0: vm.wait("b2d%d" % n)
                    R = vBA if cf == 0 else vBB
                    d = 32 + (2 * n + kk) * 8 + cf * 4
                    off = (n % 2) * 4096 + kk * 2048
                    lg.issue("ds_read_b64_tr_b16 %s, v%d offset:%d" % (a(d, 2), R, off), "b2r%d" % n)
                    lg.issue("ds_read_b64_tr_b16 %s, v%d offset:%d" % (a(d + 2, 2), R, off + 1024), "b2r%d" % n)
                res.append(f)
        return res
    def wo_dma():
        res = []
        for i in range(16):
            def f(i=i):
                j = i % 4
                if j == 0: A("s_add_u32 s%d, s%d, %d" % (sTmp, sBo, i * 8192))
                A("s_add_u32 m0, s%d, %d" % (sSt, (i // 4) * 4096))
                vm.issue("buffer_load_dwordx4 v%d, s[%d:%d], s%d offen offset:%d lds" % (vDB[j], sWO, sWO + 3, sTmp, j * 1024), "wo")
            res.append(f)
        return res

    KVB = 65536
    def kv_dma():
        res = []
        def pre():
            M("s_lshl_b32 s3, s%d, 17" % sP, "s_lshl_b32 s4, s%d, 12" % sRB, "s_lshl_b32 s5, s%d, 16" % sW, "s_add_u32 s5, s5, s4", "s_add_u32 s5, s5, 0x%x" % (KF - 8192),
              "s_lshl_b32 s6, s4, 1", "s_mul_i32 s7, s%d, 12288" % sW, "s_add_u32 s6, s6, s7", "s_add_u32 s6, s6, 0x%x" % (VF - 16384 - 24576),
              "s_cmp_ge_u32 s%d, 2" % sW, "s_cselect_b32 s5, s6, s5", "s_add_u32 s5, s5, s3")
        res.append(pre)
        for i in range(12):
            def f(i=i):
                if i % 4 == 0: M("s_add_u32 m0, s7, %d" % (KVB + i * 1024), "s_add_u32 s6, s5, %d" % (i * 1024))
                vm.issue("buffer_load_dwordx4 v%d, s[%d:%d], s6 offen offset:%d%s lds" % (vL16, sWS, sWS + 3, (i % 4) * 1024, SC), "kv")
            res.append(f)
        return res

    Q0, Q1, K0, K1_ = 192, 196, 200, 204
    V0, V1 = 208, 216
    P = 224
    S0, S1, O0, O1, MD, ME = 128, 144, 160, 176, 232, 64

    def bulk():
        res = []
        if not OPT["bulk"]: return res
        def f0():
            M("s_lshl_b32 s3, s2, 2", "s_add_u32 s3, s3, s%d" % sW, "s_mul_i32 s4, s3, 1536", "s_and_b32 s5, s%d, 1" % sW, "s_lshl_b32 s6, s2, 1", "s_add_u32 s6, s6, s5", "s_mul_i32 s6, s6, 3584")
            vm.issue("buffer_load_dwordx4 a[32:35], v%d, s[%d:%d], s4 offen" % (vL16, sWQ, sWQ + 3), "bulk")
        res.append(f0)
        res.append(lambda: (A("s_mov_b32 exec_hi, 0"), vm.issue("buffer_load_dwordx4 a[32:35], v%d, s[%d:%d], s4 offen offset:1024" % (vL16, sWQ, sWQ + 3), "bulk"), A("s_mov_b32 exec_hi, -1")))
        for j in range(3):
            res.append(lambda j=j: vm.issue("buffer_load_dwordx4 a[32:35], v%d, s[%d:%d], s6 offen offset:%d" % (vL16, sGU, sGU + 3, j * 1024), "bulk"))
        res.append(lambda: (A("s_mov_b32 exec_hi, 0"), vm.issue("buffer_load_dwordx4 a[32:35], v%d, s[%d:%d], s6 offen offset:3072" % (vL16, sGU, sGU + 3), "bulk"), A("s_mov_b32 exec_hi, -1")))
        return res

    def stats(stage0):
        n0 = OPT["s0first"]
        for f in stage0[:n0]: f()
        for f in late: f()
        stamp("setup")
        rest = list(xl) + stage0[n0:] + (bulk() if OPT["bulk"] == 1 else [])
        for _ in range(OPT["xahead"]): rest.pop(0)()
        def rdx(c):
            vm.wait("x%d" % c)
            for sp in range(4):
                lg.issue("ds_read_b128 %s, v%d offset:%d" % (v(Xraw(4 * c + sp), 4), vXR + sp, c * 4096), "xr%d" % c)
        rdx(0)
        for c in range(8):
            for _ in range(4 if c < 4 else 2):
                if rest: rest.pop(0)()
            if c + 1 < 8: rdx(c + 1)
            lg.wait("xr%d" % c)
            for i in range(16):
                x = Xraw(4 * c) + i
                A("v_dot2_f32_bf16 v%d, v%d, s%d, v%d" % (vSt + i % 4, x, sOne, vSt + i % 4))
                A("v_dot2_f32_bf16 v%d, v%d, v%d, v%d" % (vSt + 4 + i % 4, x, x, vSt + 4 + i % 4))
                if i == 7 and c >= 4:
                    for _ in range(2):
                        if rest: rest.pop(0)()
        while rest: rest.pop(0)()
        stamp("stats")
        vm.wait("ep")
        A("s_barrier")

    def ln_scalar(dm):
        M("s_mov_b32 s4, 0x9e3779b9", "v_add_co_u32 v%d, vcc, 0x7f4a7c15, v%d" % (vTag, vTag), "v_mov_b32 v40, s4")
        seq = ["v_add_f32 v48, v48, v49", "v_add_f32 v50, v50, v51", "v_addc_co_u32 v%d, vcc, v40, v%d, vcc" % (vTag + 1, vTag + 1),
               "v_add_f32 v52, v52, v53", "v_add_f32 v54, v54, v55",
               "v_add_f32 v48, v48, v50", "v_add_f32 v52, v52, v54",
               "v_mov_b32 v49, v48", "v_mov_b32 v53, v52", None,
               "v_permlane32_swap_b32 v48, v49", "v_permlane32_swap_b32 v52, v53",
               "v_add_f32 v48, v48, v49", "v_add_f32 v52, v52, v53",
               "v_mul_f32 v48, %s, v48" % f32(1.0 / 512), "v_mul_f32 v52, %s, v52" % f32(1.0 / 512),
               "v_fma_f32 v52, -v48, v48, v52", "v_max_f32 v52, 0, v52",
               "v_cvt_pk_bf16_f32 v48, v48, v52",
               "v_and_b32 v52, 0xffff0000, v48", "v_lshlrev_b32 v48, 16, v48",
               "v_add_f32 v52, %s, v52" % f32(1e-5),
               "v_cvt_pk_bf16_f32 v52, v52, v52", "v_and_b32 v52, 0xffff0000, v52",
               "v_sqrt_f32 v52, v52", None,
               "v_cvt_pk_bf16_f32 v52, v52, v52", "v_and_b32 v52, 0xffff0000, v52",
               "v_rcp_f32 v%d, v52" % vRs, None,
               "v_mul_f32_e64 v%d, -v48, v%d" % (vMu, vRs)]
        for s_ in seq:
            if s_ is None:
                if dm: dm.pop(0)()
            else: A(s_)

    tyn = [0]
    def phase1(ty, stages, accs, streams, tail):
        tyn[0] = ty
        stats(dma_stage(stages[0][0], stages[0][1], 0, "s0"))
        M("s_and_b32 s4, s%d, 1" % sW, "s_lshl_b32 s4, s4, 6", "v_xor_b32 v%d, s4, v%d" % (vBA, vBA), "v_xor_b32 v%d, s4, v%d" % (vBB, vBB))
        dm = []
        for sidx in range(1, 4): dm += dma_stage(stages[sidx][0], stages[sidx][1], sidx, "s%d" % sidx)
        if OPT["bulk"] == 2: dm = dm[:8] + bulk() + dm[8:]
        ln_scalar(dm)
        for j in range(1, 4): A("v_add_u32 v%d, %d, v61" % (vDB[j], j * 7168))
        A("v_mov_b32 v%d, v61" % vDB[0])
        for s_ in range(2):
            for i, (c, f) in enumerate(st_norm(s_)):
                f()
                if i % 8 == 7 and dm: dm.pop(0)()
        stamp("ln")
        vm.wait("s0"); A("s_barrier")
        q4 = quad(stages[0][0], stages[0][1], 0, 0)
        n = 0
        for j in range(4): rd(q4, j, 0, "w%d_%d" % (n, j // 2))
        buf = 0
        wpend = dm
        fill = []; fill_gaps = 0; fill_tot = 0; fill_done = 0; gap = 0
        for sidx, (kind, t) in enumerate(stages):
            slot = sidx % 4
            ex = (b2_read(sidx - 2) if sidx >= 2 else []) + b2_dma(sidx) + list(wpend) if sidx else list(wpend) + b2_dma(0)
            wpend = []
            if sidx == OPT["wopf"]:
                def wp(j):
                    if j == 0: M("s_and_b32 s3, s%d, 3" % sR, "s_lshl_b32 s3, s3, 15", "s_add_u32 s%d, s3, s%d" % (sSpin, sBo), "s_sub_u32 s%d, s%d, 0" % (sSpin, sSpin))
                    vm.issue("buffer_load_dwordx4 v[56:59], v%d, s[%d:%d], s%d offen offset:%d" % (vDB[j], sWO, sWO + 3, sSpin, j * 1024), "wopf")
                ex += [(lambda j=j: wp(j)) for j in range(4)]
            if ty == 0 and sidx == 6:
                def pubkv():
                    vm.wait("stkv")
                    M("s_lshl_b32 s3, s%d, 9" % sIQ, "s_lshl_b32 s4, s%d, 3" % sBLK, "s_add_u32 s3, s3, s4", "s_add_u32 s3, s3, 0x%x" % FK)
                    publish(3)
                ex.insert(8, pubkv)
            if ty == 0 and sidx == 8:
                def pubq():
                    vm.wait("stq")
                    M("s_lshl_b32 s3, s%d, 9" % sIQ, "s_lshl_b32 s4, s%d, 3" % sBLK, "s_add_u32 s3, s3, s4", "s_add_u32 s3, s3, 0x%x" % FQ)
                    publish(3)
                ex.insert(0, pubq)
            if sidx == OPT["kvst"] - 1:
                def pk():
                    M("s_lshr_b32 s3, s%d, 1" % sP, "s_lshl_b32 s3, s3, 9", "s_lshl_b32 s4, s%d, 5" % sRB, "s_add_u32 s3, s3, s4", "s_add_u32 s%d, s3, 0x%x" % (sFl, FK - 64),
                      "s_lshl_b32 s4, s%d, 2" % sRB, "s_sub_i32 s4, 8, s4", "s_max_i32 s4, s4, 0",
                      "s_lshl_b32 s%d, -1, s4" % sMask, "s_and_b32 s%d, s%d, 0xfff" % (sMask, sMask), "s_mov_b32 s%d, 0" % (sMask + 1))
                    poll_issue(vL8, sFl, "pk")
            if sidx == OPT["kvst"]:
                ex = [lambda: poll_check(vL8, sFl, "pk")] + kv_dma() + ex
            if sidx == OPT["kvst"] - 1: ex.insert(1, pk)
            if sidx == 9:
                def pq():
                    M("s_lshr_b32 s3, s%d, 1" % sP, "s_lshl_b32 s3, s3, 9", "s_lshl_b32 s4, s%d, 3" % sBLK, "s_add_u32 s3, s3, s4", "s_add_u32 s%d, s3, 0x%x" % (sFl, FQ),
                      "s_mov_b32 s%d, 1" % sMask, "s_mov_b32 s%d, 0" % (sMask + 1))
                    poll_issue(vL8, sFl, "pq")
                ex.insert(8, pq)
            if sidx in streams:
                while fill: fill.pop(0)[1]()
                fill, ns = streams[sidx]
                fill = list(fill); fill_gaps = ns * 32 - 6; fill_tot = sum(abs(c) for c, _ in fill); fill_done = 0; gap = -3
            nex = len(ex); exi = 0
            for q in range(8):
                cur = quad(kind, t, slot, q)
                if q == 7:
                    if sidx + 1 < len(stages):
                        vm.wait("s%d" % (sidx + 1)); A("s_barrier")
                        nxt = quad(stages[sidx + 1][0], stages[sidx + 1][1], (sidx + 1) % 4, 0)
                        if sidx >= 1 and sidx + 3 < len(stages):
                            wpend = dma_stage(stages[sidx + 3][0], stages[sidx + 3][1], (sidx + 3) % 4, "s%d" % (sidx + 3))
                    else:
                        nxt = None
                else:
                    nxt = quad(kind, t, slot, q + 1)
                lnf = st_norm(8 * sidx + q + 2) if (sidx < 4 and 8 * sidx + q + 2 < 32) else []
                for j in range(4):
                    acc, xi, _, _, _ = cur[j]
                    if j % 2 == 0: lg.wait("w%d_%d" % (n, j // 2))
                    d = v(accs[sidx] + acc * 16, 16)
                    c = d if xi > 0 else "0"
                    wf, xf = a(buf * 16 + j * 4, 4), Xr(xi)
                    if kind == "KV" and acc >= 2: A("%s %s, %s, %s, %s" % (MF, d, xf, wf, c))
                    else: A("%s %s, %s, %s, %s" % (MF, d, wf, xf, c))
                    if nxt is not None: rd(nxt, j, buf ^ 1, "w%d_%d" % (n + 1, j // 2))
                    g_in = q * 4 + j
                    used = 0
                    if fill and fill[0][0] < 0:
                        c_, f = fill.pop(0); f(); fill_done += -c_; used += -c_
                    elif exi < nex and exi * 30 <= g_in * nex:
                        ex[exi](); exi += 1; used += 6
                        while exi < nex and exi * 30 <= (g_in - 2) * nex:
                            ex[exi](); exi += 1; used += 6
                    k = -(-len(lnf) // (4 - j))
                    for _ in range(k): lnf.pop(0)[1]()
                    gap += 1
                    if fill and gap > 0:
                        lag = fill_tot * gap / fill_gaps - fill_done
                        lim = max(OPT["budget"], fill_tot / fill_gaps + 4)
                        while fill and fill[0][0] > 0 and lag > 0 and (used + fill[0][0] <= lim or lag > 24):
                            c_, f = fill.pop(0); f(); fill_done += c_; used += c_; lag -= c_
                buf ^= 1; n += 1
            while exi < nex: ex[exi](); exi += 1
            stamp("st%d" % sidx, sidx not in (3, 5, 7, 9))
        while fill: fill.pop(0)[1]()
        poll_check(vL8, sFl, "pq")
        M("s_lshl_b32 s3, s%d, 17" % sP, "s_lshl_b32 s4, s%d, 10" % sBLK, "s_add_u32 s4, s4, s3", "s_add_u32 s4, s4, 0x%x" % QF, "s_add_u32 s5, s4, 65536")
        vm.issue("buffer_load_dwordx4 %s, v%d, s[%d:%d], s4 offen%s" % (v(Q0, 4), vL16, sWS, sWS + 3, SC), "q")
        vm.issue("buffer_load_dwordx4 %s, v%d, s[%d:%d], s5 offen%s" % (v(Q1, 4), vL16, sWS, sWS + 3, SC), "q")
        for f in b2_read(8): f()
        for c_, f in tail: f()
        stamp("tail")

    M("s_cmp_eq_u32 s%d, 0" % sTy, "s_cbranch_scc0 L_HH")
    sv, sl, sn = vm.save(), lg.save(), nst[0]
    phase1(0, [("KV", t) for t in range(4)] + [("Q", t) for t in range(2)] + [("Pa", t) for t in range(4)],
           [ACA] * 4 + [ACB] * 2 + [ACA] * 4,
           {4: (st_kv(ACA), 2), 6: (st_q(ACB), 1)}, st_swiglu(ACA, 2, 32, sHa, "sth"))
    A("s_branch L_ATT")
    A.label("L_HH")
    vm.load(sv); lg.load(sl); nst[0] = sn
    phase1(1, [("Pa", t) for t in range(4)] + [("Pb", t) for t in range(4)] + [("P1", t) for t in range(2)],
           [ACA] * 4 + [ACB] * 4 + [ACA] * 2,
           {4: (st_swiglu(ACA, 2, 32, sHa, "sth"), 4), 8: (st_swiglu(ACB, 2, 32, sHb, "sth"), 2)}, st_swiglu(ACA, 1, 16, sH1, "sth"))
    A.label("L_ATT")
    vKA, vVA = 6, 7
    M("v_and_b32 v40, 31, v%d" % vLane, "v_lshrrev_b32 v41, 5, v%d" % vLane, "v_lshlrev_b32 v41, 2, v41", "v_sub_u32 v40, v40, v41",
      "v_mov_b32 v41, 0xff800000", "v_mov_b32 v42, 0")
    for rg in range(16):
        c = (rg // 4) * 8 + rg % 4
        A("v_cmp_le_i32 s[%d:%d], %d, v40" % (4 + 2 * (rg % 2), 5 + 2 * (rg % 2), c))
        A("v_mov_b32 v%d, 0x3f803f80" % (V0 + rg))
        if rg > 0:
            pr = rg - 1
            A("v_cndmask_b32 v%d, v41, v42, s[%d:%d]" % (MD + pr, 4 + 2 * (pr % 2), 5 + 2 * (pr % 2)))
            A("v_cndmask_b32 v%d, v42, v41, s[%d:%d]" % (ME + pr, 4 + 2 * (pr % 2), 5 + 2 * (pr % 2)))
    M("s_mov_b32 s%d, 0x0000ffff" % sE0, "s_mov_b32 s%d, 0x0000ffff" % (sE0 + 1))
    M("v_cndmask_b32 v%d, v41, v42, s[6:7]" % (MD + 15), "v_cndmask_b32 v%d, v42, v41, s[6:7]" % (ME + 15))
    M("s_mov_b32 s%d, 0xffff0000" % sE1, "s_mov_b32 s%d, 0xffff0000" % (sE1 + 1))
    M("s_sub_i32 s%d, 8, s%d" % (sI0, sBLK), "s_max_i32 s%d, s%d, 0" % (sI0, sI0))
    M("s_lshl_b32 s5, s%d, 10" % sW, "s_add_u32 s5, s5, %d" % KVB, "v_add_u32 v%d, s5, v%d" % (vKA, vL16), "s_lshl_b32 s5, s%d, 11" % sW, "s_add_u32 s5, s5, %d" % (KVB + 24576), "v_add_u32 v%d, s5, v%d" % (vVA, vL16))
    M("s_lshl_b32 s5, s%d, 10" % sI0, "v_add_u32 v12, s5, v%d" % vKA, "s_lshl_b32 s5, s5, 1", "v_add_u32 v13, s5, v%d" % vVA)
    for i in range(16): M("v_mov_b32 v%d, 0" % (O0 + i), "v_mov_b32 v%d, 0" % (O1 + i))
    for i in range(4): A("v_mov_b32 v%d, 0" % (P + 4 + i))
    A("v_mov_b32 v%d, 1" % vRet)
    M("s_lshl_b32 s3, s%d, 7" % sBLK, "s_lshl_b32 s4, s%d, 3" % sP, "s_add_u32 s3, s3, s4", "s_add_u32 s%d, s3, 0x%x" % (sFl, FH))
    M("s_lshl_b32 s%d, s%d, 8" % (sXo, sR), "s_add_u32 s%d, s%d, 0x%x" % (sXo, sXo, FH), "s_mov_b32 s%d, -1" % sMask, "s_mov_b32 s%d, 0" % (sMask + 1))
    vm.wait("q"); A("s_barrier")
    stamp("att0")
    def rdK(h, off, r=None): lg.issue("ds_read_b128 %s, v%d offset:%d" % (v(K0 if h == 0 else K1_, 4), vKA if r is None else r, h * 12288 + off), "k%d" % h)
    def rdV(h, off, r=None):
        A("s_mov_b64 exec, s[%d:%d]" % ((sE0, sE0 + 1) if h == 0 else (sE1, sE1 + 1)))
        R = V0 if h == 0 else V1
        lg.issue("ds_read_b128 %s, v%d offset:%d" % (v(R, 4), vVA if r is None else r, off), "v%d" % h)
        lg.issue("ds_read_b128 %s, v%d offset:%d" % (v(R + 4, 4), vVA if r is None else r, off + 1024), "v%d" % h)
        A("s_mov_b64 exec, -1")
    def mask(i): return v(ME, 16) if i == 0 else (v(MD, 16) if i == 8 else "0")
    def ex_(r): A("v_exp_f32 v%d, v%d" % (r, r))
    def cv(d, s_): A("v_cvt_pk_bf16_f32 v%d, v%d, v%d" % (d, s_, s_ + 1))
    def half(h, i, extra):
        S, O, Vr = (S0, O0, V0) if h == 0 else (S1, O1, V1)
        So, Oo, Vo, Ko, Qo = (S1, O1, V1, K1_, Q1) if h == 0 else (S0, O0, V0, K0, Q0)
        iq = i if h == 0 else i + 1
        ex_(S); ex_(S + 1)
        A("%s %s, %s, %s, %s" % (MF, v(Oo, 16), v(Vo + 4, 4), v(P + 4, 4), v(Oo, 16)))
        kt, vt = len(lg.ops), None
        snap = lg.save()
        if i < 8: rdK(h, (i + 1) * 1024)
        if iq <= 8: rdV(1 - h, iq * 2048)
        ex_(S + 2); ex_(S + 3); ex_(S + 4); ex_(S + 5); cv(P, S); cv(P + 1, S + 2)
        n_new = len(lg.ops) - kt
        if lg.done < kt - 1:
            A("s_waitcnt lgkmcnt(%d)" % n_new); lg.done = kt - 1
        if iq <= 8: A("%s %s, %s, %s, %s" % (MF, v(So, 16), v(Ko, 4), v(Qo, 4), mask(iq)))
        for f in extra[0]: f()
        ex_(S + 6); ex_(S + 7); ex_(S + 8); ex_(S + 9); cv(P + 2, S + 4); cv(P + 3, S + 6); ex_(S + 10); ex_(S + 11)
        A("%s %s, %s, %s, %s" % (MF, v(O, 16), v(Vr, 4), v(P, 4), v(O, 16)))
        for f in extra[1]: f()
        ex_(S + 12); ex_(S + 13); cv(P + 4, S + 8); cv(P + 5, S + 10); ex_(S + 14); ex_(S + 15); cv(P + 6, S + 12); cv(P + 7, S + 14)
    wo = wo_dma()
    seq = [b2_dma(10), wo[0:4], b2_read(9), b2_dma(11), wo[4:8], wo[8:12], b2_read(10), b2_dma(12), wo[12:16], b2_read(11), b2_dma(13), [], [], b2_read(12), [], b2_read(13)]
    RH = [(x[:2], x[2:]) for x in seq]
    A("s_lshl_b32 s%d, s%d, 14" % (sSt, sW))
    rdK(0, 0, 12); rdK(1, 0, 12); rdV(0, 0, 13)
    M("s_cmp_lg_u32 s%d, 0" % sW, "s_cbranch_scc1 L_noat", "s_mov_b64 exec, 1")
    A("buffer_atomic_add v%d, v%d, s[%d:%d], 0 offen sc0" % (vRet, vL16, sDBG, sDBG + 3))
    A("s_mov_b64 exec, -1")
    A.label("L_noat")
    M("s_cmp_lg_u32 s%d, 0" % sI0, "s_cbranch_scc1 A_short")
    sv_short, sl_short = vm.save(), lg.save()
    lg.wait("k0")
    A("%s %s, %s, %s, %s" % (MF, v(S0, 16), v(K0, 4), v(Q0, 4), v(ME, 16)))
    def pubh():
        vm.wait("sth"); publish(sFl)
    for i in range(9):
        A.label("A_t%d" % i)
        e0 = RH[2 * i] if i < 8 else ([lambda: poll_issue(vL8, sXo, "ph")], [])
        e1 = RH[2 * i + 1] if i < 8 else ([], [])
        if i == OPT["pubh"]: e1 = (e1[0], [pubh] + e1[1])
        half(0, i, e0); half(1, i, e1)
        stamp("t%d" % i, True)
    A("%s %s, %s, %s, %s" % (MF, v(O1, 16), v(V1 + 4, 4), v(P + 4, 4), v(O1, 16)))
    vm_main = vm.save()
    stamp("att")
    D2 = OPT["d2"]
    M("s_lshl_b32 s3, s%d, 1" % sR, "s_lshr_b32 s4, s%d, 1" % sW, "s_add_u32 s5, s3, s4", "s_xor_b32 s6, s5, 1",
      "s_mul_i32 s5, s5, %d" % (144 * 1024), "s_mul_i32 s6, s6, %d" % (144 * 1024),
      "s_mul_i32 s4, s%d, %d" % (sW, 28 * 1024), "s_add_u32 s%d, s5, s4" % sAd, "s_add_u32 s%d, s6, s4" % (sAd + 1),
      "s_lshl_b32 s4, s%d, 13" % sW, "s_add_u32 s4, s4, %d" % (112 * 1024), "s_add_u32 s%d, s5, s4" % sAo, "s_add_u32 s%d, s6, s4" % (sAo + 1))
    sAg = 76
    pool = list(range(80, 128, 4)) + [64, 68, 72, 76] + list(range(192, 224, 4))
    assert len(pool) >= 2 * D2
    def AFr(ks, rf): return pool[(ks % D2) * 2 + rf]
    def loadA(ks):
        kk = ks if ks < 28 else ks - 28
        if kk % 4 == 0:
            if ks < 28:
                M("s_add_u32 s78, s%d, %d" % (sRot2, ks // 4), "s_cmp_ge_u32 s78, 7", "s_cselect_b32 s79, 7, 0", "s_sub_u32 s78, s78, s79", "s_lshl_b32 s78, s78, 12",
                  "s_add_u32 s%d, s%d, s78" % (sAg, sAd), "s_add_u32 s%d, s%d, s78" % (sAg + 1, sAd + 1))
            else:
                M("s_add_u32 s%d, s%d, %d" % (sAg, sAo, kk * 1024), "s_add_u32 s%d, s%d, %d" % (sAg + 1, sAo + 1, kk * 1024))
        for rf in range(2):
            vm.issue("buffer_load_dwordx4 %s, v%d, s[%d:%d], s%d offen offset:%d%s" % (v(AFr(ks, rf), 4), vL16, sWS, sWS + 3, sAg + rf, (kk % 4) * 1024, SC), "a%d" % ks)
    poll_check(vL8, sXo, "ph")
    for ks in range(5): loadA(ks)
    M("v_rcp_f32 v40, v%d" % (O0 + 8), "v_rcp_f32 v41, v%d" % O1, "v_mov_b32 v42, 0x1f800000", "v_mov_b32 v43, 0x5f800000")
    M("v_cmp_le_f32 vcc, v42, v%d" % (O0 + 8), "v_cmp_ge_f32 s[4:5], v43, v%d" % (O0 + 8), "v_cmp_le_f32 s[6:7], v42, v%d" % O1, "s_and_b64 vcc, vcc, s[4:5]",
      "v_cmp_ge_f32 s[4:5], v43, v%d" % O1, "s_and_b64 vcc, vcc, s[6:7]")
    for i in range(8): M("v_mul_f32 v%d, v%d, v40" % (O0 + i, O0 + i), "v_mul_f32 v%d, v%d, v41" % (O1 + 8 + i, O1 + 8 + i))
    A("s_and_b64 s[6:7], vcc, s[4:5]")
    for i in range(4): A("v_pk_add_f32 %s, %s, %s" % (v(T + 2 * i, 2), v(O0 + 2 * i, 2), v(O1 + 8 + 2 * i, 2)))
    M("v_pk_add_f32 %s, %s, %s" % (v(T, 2), v(T, 2), v(T + 2, 2)), "v_pk_add_f32 %s, %s, %s" % (v(T + 4, 2), v(T + 4, 2), v(T + 6, 2)),
      "v_pk_add_f32 %s, %s, %s" % (v(T, 2), v(T, 2), v(T + 4, 2)), "v_add_f32 v%d, v%d, v%d" % (T, T, T + 1), "v_mov_b32 v42, 0x1f8", "v_cmp_class_f32 vcc, v%d, v42" % T)
    for i in range(4): cv(T + 8 + i, O0 + 2 * i); cv(T + 12 + i, O1 + 8 + 2 * i)
    A("s_and_b64 vcc, vcc, s[6:7]")
    if OPT["fb_force"]: A("s_mov_b64 vcc, 0")
    M("s_cmp_eq_u64 vcc, -1", "s_cbranch_scc0 A_fb")
    A.label("A_fin2")
    M("s_mul_i32 s3, s%d, %d" % (sBLK, 144 * 1024), "s_lshl_b32 s4, s%d, 11" % sP, "s_add_u32 s3, s3, s4", "s_add_u32 s3, s3, %d" % (112 * 1024))
    store(T + 8, 3, 0, "sto"); store(T + 12, 3, 1024, "sto")
    assert D2 >= 6
    AC2 = 128
    M("v_and_b32 v40, 31, v%d" % vLane, "v_lshrrev_b32 v41, 5, v%d" % vLane, "v_lshlrev_b32 v40, 10, v40", "v_lshl_add_u32 v%d, v41, 4, v40" % vXo,
      "s_lshr_b32 s3, s%d, 1" % sW, "s_lshl_b32 s4, s%d, 1" % sR, "s_add_u32 s3, s3, s4", "s_lshl_b32 s3, s3, 15",
      "s_and_b32 s4, s%d, 1" % sW, "s_lshl_b32 s4, s4, 6", "s_add_u32 s3, s3, s4", "s_lshl_b32 s4, s%d, 7" % sC2, "s_add_u32 s%d, s3, s4" % sCnt)
    nl = [5]
    M("s_sub_u32 s3, s%d, s%d" % (sSt, sStg), "v_add_u32 v%d, s3, v%d" % (vBA, vBA), "v_add_u32 v%d, s3, v%d" % (vBB, vBB))
    def rdO(kk):
        for cf in range(2):
            R = vBA if cf == 0 else vBB
            d = (kk % 2) * 8 + cf * 4
            lg.issue("ds_read_b64_tr_b16 %s, v%d offset:%d" % (a(d, 2), R, kk * 2048), "o%d" % kk)
            lg.issue("ds_read_b64_tr_b16 %s, v%d offset:%d" % (a(d + 2, 2), R, kk * 2048 + 1024), "o%d" % kk)
    stamp("p2go")
    KO = 28 - D2 + OPT.get("odelay", 0)
    for ks in range(36):
        if ks == 2:
            vm.wait("sto")
            M("s_lshl_b32 s3, s%d, 7" % sBLK, "s_lshl_b32 s4, s%d, 3" % sP, "s_add_u32 s3, s3, s4", "s_add_u32 s3, s3, 0x%x" % FO)
            publish(3)
        if ks == KO - 4:
            M("s_lshl_b32 s%d, s%d, 8" % (sXo, sR), "s_add_u32 s%d, s%d, 0x%x" % (sXo, sXo, FO),
              "s_lshl_b32 s3, s%d, 2" % sW, "s_lshl_b32 s%d, 0x000f000f, s3" % sMask, "s_mov_b32 s%d, 0" % (sMask + 1))
            poll_issue(vL8, sXo, "po")
        if ks == KO:
            stamp("p2a")
            poll_check(vL8, sXo, "po")
            stamp("p2b")
        if ks == 24:
            vm.issue("buffer_load_dwordx4 v[48:51], v%d, s[%d:%d], s%d offen" % (vXo, sXS, sXS + 3, sCnt), "xr")
            vm.issue("buffer_load_dwordx4 v[52:55], v%d, s[%d:%d], s%d offen offset:32" % (vXo, sXS, sXS + 3, sCnt), "xr")
        vm.wait("a%d" % ks)
        if ks == 0: lg.wait("b2r13")
        if ks >= 28: lg.wait("o%d" % (ks - 28))
        lim = min(36 if ks >= KO else 28, ks + D2 + 0)
        m = 0
        for cf in range(2):
            for rf in range(2):
                d = v(AC2 + (rf * 2 + cf) * 16, 16)
                A("%s %s, %s, %s, %s" % (MF, d, Breg(ks, cf), v(AFr(ks, rf), 4), d if ks else "0"))
                m += 1
                if m == 2 and 27 <= ks < 35: rdO(ks - 27)
                if m in (1, 3) and nl[0] < lim:
                    loadA(nl[0]); nl[0] += 1
    stamp("p2end")
    for i in range(1, 4): M("s_xor_b32 s3, s%d, %d" % (sW, i), "s_lshl_b32 s3, s3, 14", "v_add_u32 v%d, s3, v%d" % (40 + i, vL16))
    A("v_add_u32 v40, s%d, v%d" % (sSt, vL16))
    vm.wait("xr")
    for i in range(8): M("v_lshlrev_b32 v%d, 16, v%d" % (64 + 2 * i, 48 + i), "v_and_b32 v%d, s%d, v%d" % (65 + 2 * i, sMsk, 48 + i))
    for i in range(1, 4):
        for j in range(4): A("ds_write_b128 v40, %s offset:%d" % (v(AC2 + i * 16 + 4 * j, 4), (i - 1) * 4096 + j * 1024))
    M("s_waitcnt lgkmcnt(0)", "s_barrier")
    for i in range(1, 4):
        for j in range(4): lg.issue("ds_read_b128 %s, v%d offset:%d" % (v(AC2 + i * 16 + 4 * j, 4), 40 + i, (i - 1) * 4096 + j * 1024), "r%d" % i)
    M("s_cmp_lg_u32 s%d, 0" % sW, "s_cbranch_scc1 L_noep", "v_readfirstlane_b32 s3, v%d" % vRet, "s_cmp_lg_u32 s3, 255", "s_cbranch_scc1 L_noep",
      "s_mov_b32 s3, 0x%x" % EOFF, "s_mov_b64 exec, 1")
    A("buffer_store_dwordx2 %s, v%d, s[%d:%d], s3 offen" % (v(vTag, 2), vL16, sWS, sWS + 3))
    A("s_mov_b64 exec, -1")
    A.label("L_noep")
    lg.wait("r1")
    for i in range(16): A("v_add_f32 v%d, v%d, v%d" % (AC2 + i, AC2 + i, AC2 + 16 + i))
    lg.wait("r3")
    for i in range(16): A("v_add_f32 v%d, v%d, v%d" % (AC2 + 32 + i, AC2 + 32 + i, AC2 + 48 + i))
    for i in range(16): A("v_add_f32 v%d, v%d, v%d" % (AC2 + i, AC2 + i, AC2 + 32 + i))
    for jj in range(2):
        for i in range(4): A("v_permlane32_swap_b32 v%d, v%d" % (AC2 + 8 * jj + i, AC2 + 8 * jj + 4 + i))
    for i in range(16): A("v_add_f32 v%d, v%d, v%d" % (64 + i, 64 + i, AC2 + i))
    for i in range(8): cv(T + i, 64 + 2 * i)
    A("buffer_store_dwordx4 %s, v%d, s[%d:%d], s%d offen" % (v(T, 4), vXo, sOUT, sOUT + 3, sCnt))
    A("buffer_store_dwordx4 %s, v%d, s[%d:%d], s%d offen offset:32" % (v(T + 4, 4), vXo, sOUT, sOUT + 3, sCnt))
    stamp_flush()
    A("s_endpgm")
    A.label("A_short")
    vm.load(sv_short); lg.load(sl_short)
    for i in range(8):
        if i == OPT["pubh"]: vm.wait("sth"); publish(sFl)
        for f in RH[2 * i][0] + RH[2 * i][1] + RH[2 * i + 1][0] + RH[2 * i + 1][1]: f()
        M("s_cmp_eq_u32 s%d, %d" % (sI0, i + 1), "s_cbranch_scc1 A_j%d" % (i + 1))
    for i in range(1, 9):
        A.label("A_j%d" % i)
        A("s_waitcnt lgkmcnt(0)")
        A("%s %s, %s, %s, %s" % (MF, v(S0, 16), v(K0, 4), v(Q0, 4), mask(i)))
        A("s_nop 11")
        A("s_branch A_t%d" % i)
    A.label("A_fb")
    for h in range(2):
        Qh, O, Vr = (Q0, O0, V0) if h == 0 else (Q1, O1, V1)
        vM = 44
        for pas in range(2):
            Lp = "A_fb%d%d" % (h, pas)
            M("v_mov_b32 v%d, v12" % vKA, "v_mov_b32 v%d, v13" % vVA, "s_mov_b32 s%d, s%d" % (sCnt, sI0))
            if pas == 0: A("v_mov_b32 v%d, 0xff800000" % vM)
            else:
                for i in range(16): A("v_mov_b32 v%d, 0" % (O + i))
            A.label(Lp)
            A("ds_read_b128 %s, v%d offset:%d" % (v(K0, 4), vKA, h * 12288))
            if pas == 1: rdV(h, 0)
            M("s_waitcnt lgkmcnt(0)", "s_cmp_eq_u32 s%d, 0" % sCnt, "s_cbranch_scc1 %s_e" % Lp, "s_cmp_eq_u32 s%d, 8" % sCnt, "s_cbranch_scc1 %s_d" % Lp)
            M("%s %s, %s, %s, 0" % (MF, v(S0, 16), v(K0, 4), v(Qh, 4)), "s_branch %s_j" % Lp)
            A.label(Lp + "_e"); M("%s %s, %s, %s, %s" % (MF, v(S0, 16), v(K0, 4), v(Qh, 4), v(ME, 16)), "s_branch %s_j" % Lp)
            A.label(Lp + "_d"); A("%s %s, %s, %s, %s" % (MF, v(S0, 16), v(K0, 4), v(Qh, 4), v(MD, 16)))
            A.label(Lp + "_j")
            A("s_nop 15")
            if pas == 0:
                for i in range(16): A("v_max_f32 v%d, v%d, v%d" % (vM, vM, S0 + i))
            else:
                for i in range(16): A("v_sub_f32 v%d, v%d, v%d" % (S0 + i, S0 + i, vM))
                for i in range(16): ex_(S0 + i)
                for i in range(8): cv(P + i, S0 + 2 * i)
                A("%s %s, %s, %s, %s" % (MF, v(O, 16), v(Vr, 4), v(P, 4), v(O, 16)))
                A("%s %s, %s, %s, %s" % (MF, v(O, 16), v(Vr + 4, 4), v(P + 4, 4), v(O, 16)))
            M("v_add_u32 v%d, 1024, v%d" % (vKA, vKA), "v_add_u32 v%d, 2048, v%d" % (vVA, vVA),
              "s_add_u32 s%d, s%d, 1" % (sCnt, sCnt), "s_cmp_le_u32 s%d, 8" % sCnt, "s_cbranch_scc1 %s" % Lp)
            if pas == 0: M("v_mov_b32 v45, v%d" % vM, "v_permlane32_swap_b32 v%d, v45" % vM, "v_max_f32 v%d, v%d, v45" % (vM, vM))
    A("s_nop 15")
    M("v_rcp_f32 v40, v%d" % (O0 + 8), "v_rcp_f32 v41, v%d" % O1)
    for i in range(8): M("v_mul_f32 v%d, v%d, v40" % (O0 + i, O0 + i), "v_mul_f32 v%d, v%d, v41" % (O1 + 8 + i, O1 + 8 + i))
    for i in range(4): cv(T + 8 + i, O0 + 2 * i); cv(T + 12 + i, O1 + 8 + 2 * i)
    M("s_nop 4", "s_branch A_fin2")
    A.label("L_end")
    A("s_endpgm")
    return A

def build():
    kn = NAME + "_kernel"
    lines = hazard.fix(gen().lines, True)
    t = "; generated by gen/v5.py\n; @launch grid=(256,1,1) block=(256,1,1) lds=163840\n"
    t += '.amdgcn_target "amdgcn-amd-amdhsa--gfx950"\n'
    t += kernel_header(kn) + "\n".join(lines) + "\n"
    t += kernel_desc(kn, 512, 100, 256)
    import subprocess, re
    open("_p1.s", "w").write(t.replace("CODE_SPAN", "0x12345"))
    subprocess.run(["clang", "-x", "assembler", "-target", "amdgcn-amd-amdhsa", "-mcpu=gfx950", "-c", "_p1.s", "-o", "_p1.o"], check=True)
    h = subprocess.run(["llvm-objdump", "-h", "_p1.o"], capture_output=True, text=True).stdout
    size = int(re.search(r"\.text\s+([0-9a-f]+)", h).group(1), 16)
    print("code bytes:", size)
    t = t.replace("CODE_SPAN", "0x%x" % (size - 1024))
    if OPT["stamp"]: t += "; STAMPS " + " ".join(NAMES[i] for i in sorted(NAMES)) + "\n"
    return t

if __name__ == "__main__":
    args = [x for x in sys.argv[1:] if not x.startswith("--")]
    for x in sys.argv[1:]:
        if x.startswith("--"):
            k, _, val = x[2:].partition("=")
            OPT[k] = (val if "," in val else int(val)) if val else True
    out = args[0] if args else "cdna_kernels/%s.s" % NAME
    open(out, "w").write(build())
```

```python
import sys, struct
from asmlib import *
import hazard

NAME = "parallel_sum__sliding_block__swiglu_ffn__prompt"
A2F = 0
B2T = 0xA00000
QF = 0x1000000
KF = QF + 0x200000
VF = QF + 0x400000
STAMP_OFF = 0x1600000
FLG = 0x1700000
FK = FLG + 0x100; FQ = FLG + 0x1200; FH = FLG + 0x4000; FO = FLG + 0x6000; FB = FLG + 0x8000; EOFF = FLG + 0xA000
WS_BYTES = 0x1710000
LOG2E = 1.4426950408889634
MF = "v_mfma_f32_32x32x16_bf16"
OPT = dict(stamp=False, fine=False, pf_code=True, rot=True, d2=7, rot2=True, fb_force=False, touch=False,
           pro_first=12, budget=12, bulk=1, s0first=0, xahead=4, kvst=9, early=True, rmap=True, pubh=1, wopf=-1, bulkb=0, xpf=0, plan=0, t0=0, t1=0, lndma=1)
NAMES = {}

def f32(x):
    return "0x%08x" % struct.unpack("<I", struct.pack("<f", x))[0]

class Track:
    def __init__(self, A, name, maxn):
        self.A = A; self.ops = []; self.done = -1; self.name = name; self.maxn = maxn
    def issue(self, text, tag):
        self.A(text); self.ops.append(tag)
    def wait(self, tag):
        idx = max(i for i, t in enumerate(self.ops) if t == tag)
        if idx <= self.done: return
        n = sum(1 for t in self.ops[idx + 1:] if not t.startswith("?"))
        self.done = idx
        self.A("s_waitcnt %s(%d)" % (self.name, min(n, self.maxn)))
    def mark_all(self): self.done = len(self.ops) - 1
    def save(self): return (list(self.ops), self.done)
    def load(self, st): self.ops = list(st[0]); self.done = st[1]

def gen():
    A = Asm(); vm = Track(A, "vmcnt", 63); lg = Track(A, "lgkmcnt", 15)
    SC = " sc1"
    def srd(d, lo, nbytes):
        A("s_mov_b32 s%d, s%d" % (d, lo)); A("s_mov_b32 s%d, s%d" % (d + 1, lo + 1))
        A("s_mov_b32 s%d, 0x%x" % (d + 2, nbytes)); A("s_mov_b32 s%d, 0x20000" % (d + 3))
    def M(*lines):
        for l in lines: A(l)
    sXS, sWQ, sGU, sWS, sDBG, sOUT, sDN, sWO = 8, 12, 16, 20, 44, 52, 56, 80
    sW, sRB, sIQ, sP, sBLK, sTy, sROT = 24, 25, 26, 27, 28, 29, 30
    sR, sC2, sLW, sTmp, sIdx = 31, 32, 33, 34, 35
    sKVb, sQb, sGa, sGb, sG1 = 36, 37, 38, 39, 40
    sHa, sHb, sH1 = 41, 42, 43
    sMsk, sFl = 50, 51
    sSt = 60
    sKq, sKg, sK2 = 64, 68, 72
    sBd, sRot2, sBo, sStg, sEarly = 74, 75, 99, 48, 49
    sBg = 76
    sE0, sE1 = 64, 66
    sCnt, sI0, sMask = 84, 85, 86
    sAd, sAo = 88, 90
    sXo, sSpin, sOne = 92, 93, 98
    sPtr = 64
    vLane, vL16, vL8, vTag = 1, 2, 3, 4
    vRA = [6, 7]; vRB = [9, 10]; vRP = [12, 13]; vBA, vBB = 8, 11; vL16b = 15
    vD1 = [16, 17, 18, 19]; vD2 = [20, 21, 22, 23]
    vF, vRet, vXo, vPF, vFo = 24, 26, 27, 28, 29
    vMu, vRs = 30, 31
    T = 32
    vDB = [T + 20, T + 21, T + 22, T + 23]
    vX = [56, 57, 58, 59]; vBT = 60; vXR = 44; vSt = 48
    ACA, ACB = 64, 128
    def Xr(s_): return v(192 + 4 * s_, 4) if s_ < 16 else a(192 + 4 * (s_ - 16), 4)
    def Xraw(s_): return 192 + 4 * s_ if s_ < 16 else 128 + 4 * (s_ - 16)
    nst = [0]
    def stamp(name, fine=False):
        if not OPT["stamp"] or (fine and not OPT["fine"]): return
        NAMES[nst[0]] = name
        M("s_memtime s[94:95]", "s_waitcnt lgkmcnt(0)"); lg.mark_all()
        A("v_writelane_b32 v63, s94, %d" % nst[0]); nst[0] += 1
    def stamp_flush():
        if not OPT["stamp"]: return
        A("s_waitcnt vmcnt(0)"); stamp("end")
        M("s_memrealtime s[94:95]", "s_waitcnt lgkmcnt(0)", "v_writelane_b32 v63, s94, 63", "v_writelane_b32 v63, s96, 62")
        M("s_lshl_b32 s3, s2, 2", "s_add_u32 s3, s3, s%d" % sW, "s_lshl_b32 s3, s3, 8", "s_add_u32 s3, s3, 0x%x" % STAMP_OFF)
        A("v_lshlrev_b32 v62, 2, v%d" % vLane)
        A("buffer_store_dword v63, v62, s[%d:%d], s3 offen" % (sWS, sWS + 3))

    M("s_cmp_ge_u32 s2, 256", "s_cbranch_scc1 L_end")
    M("s_load_dwordx4 s[4:7], s[0:1], 0", "s_load_dwordx2 s[48:49], s[0:1], 72", "s_load_dwordx4 s[64:67], s[0:1], 32",
      "s_load_dwordx4 s[68:71], s[0:1], 48", "s_load_dwordx2 s[72:73], s[0:1], 16", "s_load_dwordx2 s[74:75], s[0:1], 64")
    sPC = 46
    if OPT["pf_code"]:
        M("s_getpc_b64 s[100:101]")
        A.label("L_pc")
        M("v_and_b32 v%d, 63, v0" % vLane, "s_lshr_b32 s3, s2, 3", "s_lshl_b32 s3, s3, 11", "s_sub_u32 s3, s3, 6144", "v_lshlrev_b32 v6, 7, v%d" % vLane,
          "v_cmp_lt_u32 vcc, 47, v%d" % vLane, "v_mov_b32 v7, s3", "v_mov_b32 v9, s101", "v_cndmask_b32 v7, 0, v7, vcc", "v_add_u32 v6, v6, v7",
          "v_min_u32 v6, CODE_SPAN, v6", "v_add_co_u32 v8, vcc, s100, v6", "v_addc_co_u32 v9, vcc, 0, v9, vcc", "v_cmp_gt_u32 vcc, 64, v0", "s_and_saveexec_b64 s[88:89], vcc",
          "s_cbranch_execz L_pf0")
        A("global_load_dword v%d, v[8:9], off" % vXo)
        A.label("L_pf0")
        A("s_mov_b64 exec, -1")
        vm.ops.append("?pfc")
    if OPT["stamp"]:
        M("s_memrealtime s[96:97]", "v_mov_b32 v63, 0"); stamp("t0")
    M("v_lshrrev_b32 v3, 6, v0", "v_and_b32 v%d, 63, v0" % vLane, "v_readfirstlane_b32 s%d, v3" % sW)
    M("s_and_b32 s3, s2, 7", "s_lshr_b32 s%d, s2, 3" % sIdx)
    M("s_and_b32 s%d, s3, 1" % sRB, "s_lshl_b32 s%d, s%d, 3" % (sRB, sRB), "s_and_b32 s%d, s%d, 7" % (sTmp, sIdx), "s_add_u32 s%d, s%d, s%d" % (sRB, sRB, sTmp))
    A("s_lshr_b32 s%d, s%d, 3" % (sTy, sIdx))
    if OPT["rot"] == 2: M("s_add_u32 s%d, s%d, s%d" % (sROT, sRB, sTy), "s_and_b32 s%d, s%d, 3" % (sROT, sROT))
    elif OPT["rot"]: A("s_and_b32 s%d, s%d, 3" % (sROT, sRB))
    else: A("s_mov_b32 s%d, 0" % sROT)
    M("s_lshl_b32 s%d, s%d, 2" % (sBLK, sRB), "s_add_u32 s%d, s%d, s%d" % (sBLK, sBLK, sW))
    M("v_lshrrev_b32 v6, 3, v%d" % vLane, "v_and_b32 v7, 7, v%d" % vLane, "v_lshrrev_b32 v8, 4, v%d" % vLane,
      "v_xor_b32 v7, v7, v8", "v_lshlrev_b32 v7, 4, v7", "v_lshl_add_u32 v%d, v6, 10, v7" % vX[0],
      "v_xor_b32 v%d, 64, v%d" % (vX[1], vX[0]), "v_add_u32 v%d, 7168, v%d" % (vX[1], vX[1]),
      "v_add_u32 v%d, 14336, v%d" % (vX[2], vX[0]), "v_add_u32 v%d, 14336, v%d" % (vX[3], vX[1]))
    sXrow, sXlds, sXrot = 76, 77, 78
    M("s_lshl_b32 s%d, s%d, 15" % (sXrow, sBLK), "s_lshl_b32 s%d, s%d, 15" % (sXlds, sW), "s_add_u32 s%d, s%d, 32768" % (sXlds, sXlds),
      "s_lshl_b32 s%d, s%d, 8" % (sXrot, sROT), "s_waitcnt lgkmcnt(0)")
    srd(sXS, 4, 2048 * 1024)
    xl = []
    for c in range(8):
        for rq in range(4):
            def f(c=c, rq=rq):
                if rq == 0:
                    M("s_add_u32 m0, s%d, %d" % (sXlds, c * 4096), "s_add_u32 s79, s%d, %d" % (sXrot, c * 128), "s_and_b32 s79, s79, 1023", "s_add_u32 s79, s79, s%d" % sXrow)
                vm.issue("buffer_load_dwordx4 v%d, s[%d:%d], s79 offen offset:%d lds" % (vX[rq], sXS, sXS + 3, rq * 1024), "x%d" % c)
            xl.append(f)
    if OPT.get("xst"): stamp("pre")
    for _ in range(OPT["pro_first"]): xl.pop(0)()
    for e in range(OPT["xpf"]):
        M("s_lshl_b32 s79, s%d, 7" % sTy, "s_add_u32 s79, s79, s%d" % sXrot, "s_add_u32 s79, s79, %d" % ((OPT["pro_first"] // 4 + 4 * e) * 128), "s_and_b32 s79, s79, 1023", "s_add_u32 s79, s79, s%d" % sXrow)
        for rq in range(4): vm.issue("buffer_load_dword v60, v%d, s[%d:%d], s79 offen offset:%d" % (vX[rq], sXS, sXS + 3, rq * 1024), "xpf")
    if OPT.get("xst"): stamp("iss")

    SB = []
    def blk(f): SB.append(f); return f
    @blk
    def _():
        srd(sWQ, 6, 512 * 3072); srd(sWS, 48, WS_BYTES)
        M("s_lshr_b32 s%d, s3, 1" % sP, "s_lshl_b32 s%d, s%d, 1" % (sIQ, sP), "s_lshl_b32 s%d, s%d, 2" % (sP, sP), "s_add_u32 s%d, s%d, s%d" % (sP, sP, sTy),
          "s_and_b32 s4, s%d, 1" % sTy, "s_add_u32 s%d, s%d, s4" % (sIQ, sIQ), "s_lshr_b32 s%d, s%d, 1" % (sTy, sTy),
          "s_and_b32 s4, s3, 1", "s_lshl_b32 s4, s4, 4", "s_lshr_b32 s%d, s3, 1" % sR, "s_lshl_b32 s%d, s%d, 2" % (sR, sR), "s_add_u32 s%d, s%d, s4" % (sR, sR),
          "s_and_b32 s4, s%d, 3" % sIdx, "s_add_u32 s%d, s%d, s4" % (sR, sR), "s_lshr_b32 s%d, s%d, 2" % (sC2, sIdx))
    @blk
    def _():
        M("s_cmp_ge_u32 s%d, 2" % sW, "s_cselect_b32 s%d, s66, s64" % sGU, "s_cselect_b32 s%d, s67, s65" % (sGU + 1),
          "s_mov_b32 s%d, %d" % (sGU + 2, 512 * 3584), "s_mov_b32 s%d, 0x20000" % (sGU + 3))
        srd(sDN, 68, 1792 * 1024); srd(sWO, 72, 512 * 1024)
        srd(sOUT, 70, 2048 * 1024); srd(sDBG, 74, 256)
    @blk
    def _():
        M("s_and_b32 s5, s%d, 1" % sW, "s_lshr_b32 s6, s%d, 1" % sW, "s_lshl_b32 s7, s%d, 7" % sIQ)
        M("s_mul_i32 s3, s%d, 320" % sIQ, "s_add_u32 s3, s3, 1024", "s_and_b32 s4, s%d, 1" % sIQ, "s_lshl_b32 s4, s4, 6", "s_add_u32 s%d, s3, s4" % sHa,
          "s_add_u32 s%d, s%d, 128" % (sHb, sHa), "s_lshl_b32 s4, s4, 2", "s_sub_u32 s4, 256, s4", "s_add_u32 s%d, s3, s4" % sH1,
          "s_cmp_eq_u32 s%d, 0" % sTy, "s_cselect_b32 s%d, s7, s%d" % (sHa, sHa))
        for t in range(4):
            M("s_add_u32 s4, s%d, %d" % (sROT, t), "s_and_b32 s4, s4, 3", "s_mul_i32 s%d, s4, %d" % (sKq + t, 128 * 3072), "s_mul_i32 s%d, s4, %d" % (sKg + t, 128 * 3584))
    @blk
    def _():
        M("s_mul_i32 s%d, s5, %d" % (sQb, 64 * 3072), "s_add_u32 s%d, s%d, s7" % (sQb, sQb),
          "s_lshl_b32 s3, s6, 10", "s_add_u32 s%d, s%d, s3" % (sKVb, sQb), "s_add_u32 s%d, s%d, 1024" % (sKVb, sKVb),
          "s_mul_i32 s3, s5, %d" % (64 * 3584), "s_add_u32 s%d, s3, s%d" % (sGa, sHa), "s_add_u32 s%d, s3, s%d" % (sGb, sHb), "s_mov_b32 s%d, s%d" % (sG1, sH1))
    @blk
    def _():
        A("s_mov_b32 s4, 0x%x" % EOFF)
        vm.issue("buffer_load_dwordx2 %s, off, s[%d:%d], s4 sc1" % (v(vTag, 2), sWS, sWS + 3), "ep")
    @blk
    def _():
        M("v_and_b32 v40, 31, v%d" % vLane, "v_lshrrev_b32 v41, 5, v%d" % vLane, "v_bfe_u32 v42, v40, 1, 3", "v_xor_b32 v42, v42, v41",
          "v_lshlrev_b32 v42, 4, v42", "v_lshl_add_u32 v42, v40, 7, v42", "v_add_u32 v%d, s%d, v42" % (vXR, sXlds))
        for b in range(1, 4): A("v_xor_b32 v%d, %d, v%d" % (vXR + b, b << 5, vXR))
    @blk
    def _():
        for i in range(8): A("v_mov_b32 v%d, 0" % (vSt + i))
        M("s_mov_b32 s%d, 0x3f803f80" % sOne, "s_mov_b32 s%d, 0xffff0000" % sMsk, "s_lshl_b32 s%d, s%d, 13" % (sLW, sW))
    @blk
    def _():
        M("v_lshrrev_b32 v40, 3, v%d" % vLane, "v_and_b32 v41, 7, v%d" % vLane, "v_bfe_u32 v42, v%d, 4, 1" % vLane, "v_lshlrev_b32 v42, 2, v42",
          "v_xor_b32 v41, v41, v42", "v_lshlrev_b32 v41, 4, v41", "v_mul_u32_u24 v42, 3584, v40", "v_add_u32 v%d, v42, v41" % vD2[0],
          "v_mul_u32_u24 v42, 3072, v40", "v_add_u32 v43, v42, v41", "v_lshl_add_u32 v61, v40, 10, v41")
    @blk
    def _():
        M("v_lshrrev_b32 v40, 2, v%d" % vLane, "v_and_b32 v41, 3, v%d" % vLane, "v_lshlrev_b32 v41, 4, v41", "v_mul_u32_u24 v42, 3584, v40", "v_add_u32 v42, v42, v41",
          "s_cmp_eq_u32 s%d, 0" % sTy, "s_cselect_b64 vcc, -1, 0", "s_mov_b32 s4, %d" % (8 * 3072 - 1024), "s_cselect_b32 s4, s4, %d" % (16 * 3584 - 1024),
          "v_cndmask_b32 v%d, v42, v43, vcc" % vD1[0])
        for j in range(1, 4):
            M("v_add_u32 v%d, s4, v%d" % (vD1[j], vD1[j - 1]), "v_add_u32 v%d, %d, v%d" % (vD2[j], j * (8 * 3584 - 1024), vD2[0]))
    NCRIT = len(SB)
    @blk
    def _():
        M("v_lshlrev_b32 v%d, 4, v%d" % (vL16, vLane), "v_lshlrev_b32 v%d, 3, v%d" % (vL8, vLane), "v_add_u32 v%d, 4096, v%d" % (vL16b, vL16))
        M("s_cmp_eq_u32 s%d, 0" % sTy, "s_cselect_b32 s3, s6, s5", "s_mov_b32 s7, %d" % (128 * 3072), "s_cselect_b32 s7, s7, %d" % (128 * 3584), "s_add_u32 s3, s3, s%d" % sROT)
        for t in range(2): M("s_add_u32 s4, s3, %d" % (2 * t), "s_and_b32 s4, s4, 3", "s_mul_i32 s%d, s4, s7" % (sK2 + t))
    @blk
    def _():
        M("v_lshrrev_b32 v40, 5, v%d" % vLane, "v_bfe_u32 v41, v%d, 2, 2" % vLane, "v_lshl_add_u32 v42, v40, 3, v41", "v_lshl_add_u32 v39, v40, 2, v41",
          "v_bfe_u32 v43, v%d, 4, 1" % vLane, "v_lshlrev_b32 v43, 5, v43", "v_and_b32 v38, 3, v%d" % vLane, "v_lshl_add_u32 v43, v38, 3, v43",
          "v_lshl_add_u32 v%d, v42, 6, v43" % vRP[0])
    @blk
    def _():
        M("v_bfe_u32 v38, v41, 1, 1", "v_lshl_add_u32 v43, v38, 6, v43", "v_lshl_add_u32 v%d, v42, 7, v43" % vRA[0], "v_xor_b32 v%d, 64, v%d" % (vRB[0], vRA[0]))
        for R in (vRA, vRB, vRP): A("v_add_u32 v%d, 0x10000, v%d" % (R[1], R[0]))
        M("s_add_u32 s%d, s%d, 131072" % (sStg, sLW), "v_lshl_add_u32 v%d, v39, 7, v43" % vBA, "v_add_u32 v%d, s%d, v%d" % (vBA, sStg, vBA), "v_xor_b32 v%d, 64, v%d" % (vBB, vBA))
    @blk
    def _():
        A("s_mul_i32 s3, s%d, %d" % (sBLK, 144 * 1024))
        for sr in (sHa, sHb, sH1): M("s_lshl_b32 s%d, s%d, 5" % (sr, sr), "s_add_u32 s%d, s%d, s3" % (sr, sr))
        M("s_lshl_b32 s3, s%d, 7" % sC2, "s_mul_i32 s%d, s%d, %d" % (sBd, sW, 448 * 1024), "s_add_u32 s%d, s%d, s3" % (sBd, sBd),
          "s_lshl_b32 s%d, s%d, 17" % (sBo, sW), "s_add_u32 s%d, s%d, s3" % (sBo, sBo))
        if OPT["rot2"]:
            M("s_and_b32 s3, s%d, 3" % sR, "s_lshl_b32 s3, s3, 1", "s_add_u32 s3, s3, s%d" % sC2, "s_cmp_ge_u32 s3, 7", "s_cselect_b32 s4, 7, 0", "s_sub_u32 s3, s3, s4",
              "s_cmp_ge_u32 s3, 7", "s_cselect_b32 s4, 7, 0", "s_sub_u32 s%d, s3, s4" % sRot2)
        else: A("s_mov_b32 s%d, 0" % sRot2)
    order = [0, 1, 2, 3, 6, 7, 8]
    for i in order: SB[i]()
    late = [f for i, f in enumerate(SB) if i not in order]

    def dma_stage(kind, t, slot, tag, mixed=False):
        res = []
        for i in range(8):
            grp, j = i // 4, i % 4
            def f(grp=grp, j=j):
                if kind == "KV": base, sk, add, srd_, vd = sKVb, sKq + t, 32 * 3072, sWQ, vD1
                elif kind == "Q": base, sk, add, srd_, vd = sQb, sK2 + t, 32 * 3072, sWQ, vD1
                elif kind == "Pa": base, sk, add, srd_, vd = sGa, sKg + t, 32 * 3584, sGU, vD2
                elif kind == "Pb": base, sk, add, srd_, vd = sGb, sKg + t, 32 * 3584, sGU, vD2
                elif kind == "P1": base, sk, add, srd_, vd = sG1, sK2 + t, 64 * 3584, sGU, vD1
                if j == 0 or mixed:
                    A("s_add_u32 m0, s%d, %d" % (sLW, slot * 32768 + grp * 4096))
                if j == 0:
                    if grp == 0: A("s_add_u32 s%d, s%d, s%d" % (sTmp, base, sk))
                    else: A("s_add_u32 s%d, s%d, %d" % (sTmp, sTmp, add))
                vm.issue("buffer_load_dwordx4 v%d, s[%d:%d], s%d offen offset:%d lds" % (vd[j], srd_, srd_ + 3, sTmp, j * 1024), tag)
            res.append(f)
        return res

    def touch(kind, t):
        base, sk, srd_, st = {"KV": (sKVb, sKq + t, sWQ, 3072), "Q": (sQb, sK2 + t, sWQ, 3072), "Pa": (sGa, sKg + t, sGU, 3584),
                              "Pb": (sGb, sKg + t, sGU, 3584), "P1": (sG1, sK2 + t, sGU, 3584)}[kind]
        def f():
            M("v_mul_u32_u24 v57, %d, v%d" % (st, vLane), "s_add_u32 s4, s%d, s%d" % (base, sk))
            vm.issue("buffer_load_dword v60, v57, s[%d:%d], s4 offen" % (srd_, srd_ + 3), "tch")
            if kind == "P1":
                A("s_add_u32 s4, s4, %d" % (64 * 3584))
                vm.issue("buffer_load_dword v60, v57, s[%d:%d], s4 offen" % (srd_, srd_ + 3), "tch")
        return f
    def quad(kind, t, slot, q):
        res = []
        sb = slot * 32768; bi = sb // 65536; so = sb % 65536
        for j in range(4):
            if kind in ("KV", "Pa", "Pb"):
                res.append((j, 8 * t + q, (vRA if j % 2 == 0 else vRB)[bi], so + (j >> 1) * 16384 + q * 2048, 512))
            elif kind == "Q":
                kk = 2 * q + (j >> 1)
                res.append((j & 1, 16 * t + kk, (vRA if j % 2 == 0 else vRB)[bi], so + kk * 2048, 512))
            else:
                kk = 2 * q + (j >> 1)
                res.append((j & 1, 16 * t + kk, vRP[bi], so + (j & 1) * 16384 + kk * 1024, 256))
        return res

    def rd(q4, j, buf, tag):
        _, _, ar, off, d2 = q4[j]
        lg.issue("ds_read_b64_tr_b16 %s, v%d offset:%d" % (a(buf * 16 + j * 4, 2), ar, off), tag)
        lg.issue("ds_read_b64_tr_b16 %s, v%d offset:%d" % (a(buf * 16 + j * 4 + 2, 2), ar, off + d2), tag)

    def store(P, soff, off, tag):
        if OPT.get("nostore") and tag != "sto":
            vm.ops.append("?" + tag); vm.ops.append(tag); vm.ops.pop(); vm.ops[-1] = tag if False else vm.ops[-1]
            A("s_nop 0"); vm.ops[-1] = tag; A("buffer_load_dword v28, off, s[%d:%d], 0" % (sWS, sWS + 3)); return
        vm.issue("buffer_store_dwordx4 %s, v%d, s[%d:%d], s%d offen offset:%d%s" % (v(P, 4), vL16, sWS, sWS + 3, soff, off, SC), tag)

    def I(text, cost=4): return (cost, (lambda t=text: A(t)))
    PK = [T + 8, T + 12]
    def st_swiglu(acc, ncf, uoff, sH, tag):
        els = []
        for cf in range(ncf):
            for i in range(16): els.append((acc + cf * 16 + i, acc + uoff + cf * 16 + i))
        N = len(els); out = []
        ta = lambda e: T + (e % 6)
        for e in range(N + 6):
            if 0 <= e - 1 < N: out.append(I("v_exp_f32 v%d, v%d" % (ta(e - 1), ta(e - 1)), 8))
            if e < N: out.append(I("v_mul_f32 v%d, %s, v%d" % (ta(e), f32(-LOG2E), els[e][0])))
            if 0 <= e - 2 < N: out.append(I("v_add_f32 v%d, 1.0, v%d" % (ta(e - 2), ta(e - 2))))
            if 0 <= e - 3 < N: out.append(I("v_rcp_f32 v%d, v%d" % (ta(e - 3), ta(e - 3)), 8))
            if 0 <= e - 1 < N: out.append(I("v_mul_f32 v%d, v%d, v%d" % (els[e - 1][1], els[e - 1][0], els[e - 1][1])))
            if 0 <= e - 4 < N: out.append(I("v_mul_f32 v%d, v%d, v%d" % (els[e - 4][1], ta(e - 4), els[e - 4][1])))
            k = e - 5
            if 0 <= k < N and k % 2 == 1:
                fr = k // 8
                out.append(I("v_cvt_pk_bf16_f32 v%d, v%d, v%d" % (PK[fr % 2] + (k % 8) // 2, els[k - 1][1], els[k][1])))
                if k % 8 == 7: out.append((-8, (lambda fr=fr: store(PK[fr % 2], sH, fr * 1024, tag))))
        return out
    def st_kv(acc):
        out = [(2, lambda: M("s_lshl_b32 s%d, s%d, 18" % (sSt, sIQ), "s_lshl_b32 s%d, s%d, 10" % (sSt + 1, sBLK),
                             "s_add_u32 s%d, s%d, s%d" % (sSt + 2, sSt, sSt + 1), "s_add_u32 s%d, s%d, s%d" % (sSt, sSt + 2, sSt + 1)))]
        n = 0
        for f in (0, 2, 1, 3):
            for hf in range(2):
                r0 = acc + f * 16 + hf * 8; P = PK[n % 2]; n += 1
                for i in range(4): out.append(I("v_cvt_pk_bf16_f32 v%d, v%d, v%d" % (P + i, r0 + 2 * i, r0 + 2 * i + 1)))
                def g(P=P, f=f, hf=hf):
                    if f < 2:
                        A("s_add_u32 s%d, s%d, 0x%x" % (sSt + 3, sSt + 2, KF + (2 * f + hf) * 65536)); store(P, sSt + 3, 0, "stkv")
                    else:
                        if hf == 0: A("s_add_u32 s%d, s%d, 0x%x" % (sSt + 3, sSt, VF + (f - 2) * 131072))
                        store(P, sSt + 3, hf * 1024, "stkv")
                out.append((-8, g))
        return out
    def st_q(acc):
        out = []; n = 0
        for f in range(2):
            for hf in range(2):
                r0 = acc + f * 16 + hf * 8; P = PK[n % 2]; n += 1
                for i in range(8): out.append(I("v_mul_f32 v%d, %s, v%d" % (r0 + i, f32(0.25 * LOG2E), r0 + i)))
                for i in range(4): out.append(I("v_cvt_pk_bf16_f32 v%d, v%d, v%d" % (P + i, r0 + 2 * i, r0 + 2 * i + 1)))
                def g(P=P, f=f, hf=hf):
                    A("s_add_u32 s%d, s%d, 0x%x" % (sSt + 3, sSt + 2, QF + (2 * f + hf) * 65536)); store(P, sSt + 3, 0, "stq")
                out.append((-8, g))
        return out
    def st_norm(s_):
        out = []; x = Xraw(s_)
        for i in range(4):
            out.append(I("v_lshlrev_b32 v%d, 16, v%d" % (T + 2 * i, x + i))); out.append(I("v_and_b32 v%d, s%d, v%d" % (T + 1 + 2 * i, sMsk, x + i)))
        for i in range(8): out.append(I("v_fma_f32 v%d, v%d, v%d, v%d" % (T + i, T + i, vRs, vMu)))
        for i in range(4): out.append(I("v_cvt_pk_bf16_f32 v%d, v%d, v%d" % (x + i, T + 2 * i, T + 1 + 2 * i)))
        if s_ >= 16:
            for i in range(4): out.append(I("v_accvgpr_write_b32 a%d, v%d" % (192 + 4 * (s_ - 16) + i, x + i)))
        return out

    def code_touch(sym, nl):
        def f():
            if not OPT["pf_code"]: return
            L = A.newlabel("L_ct")
            M("s_cmp_lg_u32 s%d, 0" % sW, "s_cbranch_scc1 %s" % L,
              "s_and_b32 s3, s%d, 15" % sIdx, "s_mul_i32 s3, s3, %d" % (nl * 128), "s_add_u32 s3, s3, OFF_%s" % sym,
              "v_lshlrev_b32 v58, 7, v%d" % vLane, "v_add_u32 v58, s3, v58", "v_min_u32 v58, CODE_SPAN, v58", "v_mov_b32 v59, s101",
              "v_add_co_u32 v58, vcc, s100, v58", "v_addc_co_u32 v59, vcc, 0, v59, vcc", "s_mov_b64 exec, %d" % ((1 << nl) - 1))
            A("global_load_dword v60, v[58:59], off")
            A("s_mov_b64 exec, -1")
            A.label(L)
            vm.ops.append("?ct")
        return f
    def publish(soff):
        A("s_mov_b64 exec, 1")
        vm.issue("buffer_store_dwordx2 %s, v%d, s[%d:%d], s%d offen%s" % (v(vTag, 2), vL16, sWS, sWS + 3, soff, SC), "?flag")
        A("s_mov_b64 exec, -1")
    def poll_issue(voff, soff, tag):
        vm.issue("buffer_load_dwordx2 %s, v%d, s[%d:%d], s%d offen sc1" % (v(vF, 2), voff, sWS, sWS + 3, soff), tag)
    def poll_check(voff, soff, tag):
        L = A.newlabel("L_poll"); D = A.newlabel("L_polld")
        chk = ["v_cmp_eq_u64 vcc, %s, %s" % (v(vF, 2), v(vTag, 2)), "s_and_b64 vcc, vcc, s[%d:%d]" % (sMask, sMask + 1),
               "s_cmp_eq_u64 vcc, s[%d:%d]" % (sMask, sMask + 1), "s_cbranch_scc1 %s" % D]
        stamp("pre_" + tag, True)
        vm.wait(tag)
        stamp("vm_" + tag, True)
        M(*chk)
        A("s_mov_b32 s%d, 0x20000" % sSpin)
        A.label(L)
        A("buffer_load_dwordx2 %s, v%d, s[%d:%d], s%d offen sc1" % (v(vF, 2), voff, sWS, sWS + 3, soff))
        A("s_waitcnt vmcnt(0)")
        M(*chk)
        M("s_sub_u32 s%d, s%d, 1" % (sSpin, sSpin), "s_cmp_lg_u32 s%d, 0" % sSpin, "s_cbranch_scc1 %s" % L)
        A.label(D)
        stamp("ok_" + tag, True)

    def Breg(p, cf):
        if p < 28: return a(32 + p * 8 + cf * 4, 4)
        return a(((p - 28) % 2) * 8 + cf * 4, 4)
    def b2_dma(n):
        res = []
        for j in range(4):
            def f(j=j):
                if j == 0:
                    if n >= 2: lg.wait("b2r%d" % (n - 2))
                    A("s_add_u32 m0, s%d, %d" % (sStg, (n % 2) * 4096))
                    if n % 2 == 0:
                        M("s_add_u32 s%d, s%d, %d" % (sBg, sRot2, n // 2), "s_cmp_ge_u32 s%d, 7" % sBg, "s_cselect_b32 s%d, 7, 0" % (sBg + 1),
                          "s_sub_u32 s%d, s%d, s%d" % (sBg, sBg, sBg + 1), "s_lshl_b32 s%d, s%d, 16" % (sBg, sBg), "s_add_u32 s%d, s%d, s%d" % (sBg, sBg, sBd))
                    else: A("s_add_u32 s%d, s%d, 32768" % (sBg, sBg))
                vm.issue("buffer_load_dwordx4 v%d, s[%d:%d], s%d offen offset:%d lds" % (vDB[j], sDN, sDN + 3, sBg, j * 1024), "b2d%d" % n)
            res.append(f)
        return res
    def b2_read(n):
        res = []
        for kk in range(2):
            for cf in range(2):
                def f(kk=kk, cf=cf):
                    if kk == 0 and cf == 0: vm.wait("b2d%d" % n)
                    R = vBA if cf == 0 else vBB
                    d = 32 + (2 * n + kk) * 8 + cf * 4
                    off = (n % 2) * 4096 + kk * 2048
                    lg.issue("ds_read_b64_tr_b16 %s, v%d offset:%d" % (a(d, 2), R, off), "b2r%d" % n)
                    lg.issue("ds_read_b64_tr_b16 %s, v%d offset:%d" % (a(d + 2, 2), R, off + 1024), "b2r%d" % n)
                res.append(f)
        return res
    sWl = 73
    def wo2():
        A("s_mov_b32 m0, s%d" % sWl)
        A("s_add_u32 s%d, s%d, 2048" % (sWl, sWl))
        vm.issue("buffer_load_dwordx4 v%d, s[%d:%d], s%d offen lds" % (vDB[0], sWO, sWO + 3, sTmp), "wo")
        vm.issue("buffer_load_dwordx4 v%d, s[%d:%d], s%d offen offset:1024 lds" % (vDB[1], sWO, sWO + 3, sTmp), "wo")
        A("s_add_u32 s%d, s%d, 16384" % (sTmp, sTmp))

    KVB = 65536
    def kv_dma():
        res = []
        def pre():
            M("s_lshl_b32 s3, s%d, 17" % sP, "s_lshl_b32 s4, s%d, 12" % sRB, "s_lshl_b32 s5, s%d, 16" % sW, "s_add_u32 s5, s5, s4", "s_add_u32 s5, s5, 0x%x" % (KF - 8192),
              "s_lshl_b32 s6, s4, 1", "s_mul_i32 s7, s%d, 12288" % sW, "s_add_u32 s6, s6, s7", "s_add_u32 s6, s6, 0x%x" % (VF - 16384 - 24576),
              "s_cmp_ge_u32 s%d, 2" % sW, "s_cselect_b32 s5, s6, s5", "s_add_u32 s5, s5, s3")
        res.append(pre)
        for i in range(12):
            def f(i=i):
                if i % 4 == 0: M("s_add_u32 m0, s7, %d" % (KVB + i * 1024), "s_add_u32 s6, s5, %d" % (i * 1024))
                vm.issue("buffer_load_dwordx4 v%d, s[%d:%d], s6 offen offset:%d%s lds" % (vL16, sWS, sWS + 3, (i % 4) * 1024, SC), "kv")
            res.append(f)
        return res

    Q0, Q1, K0, K1_ = 192, 196, 200, 204
    V0, V1 = 208, 216
    P = 224
    S0, S1, O0, O1, MD, ME = 128, 144, 160, 176, 232, 64

    def bulk():
        res = []
        if not OPT["bulk"]: return res
        def f0():
            M("s_lshl_b32 s3, s2, 2", "s_add_u32 s3, s3, s%d" % sW, "s_mul_i32 s4, s3, 1536", "s_and_b32 s5, s%d, 1" % sW, "s_lshl_b32 s6, s2, 1", "s_add_u32 s6, s6, s5", "s_mul_i32 s6, s6, 3584")
            vm.issue("buffer_load_dword v60, v%d, s[%d:%d], s4 offen" % (vL16, sWQ, sWQ + 3), "bulk")
        res.append(f0)
        res.append(lambda: (A("s_mov_b32 exec_hi, 0"), vm.issue("buffer_load_dword v60, v%d, s[%d:%d], s4 offen offset:1024" % (vL16, sWQ, sWQ + 3), "bulk"), A("s_mov_b32 exec_hi, -1")))
        for j in range(3):
            res.append(lambda j=j: vm.issue("buffer_load_dword v60, v%d, s[%d:%d], s6 offen offset:%d" % (vL16, sGU, sGU + 3, j * 1024), "bulk"))
        res.append(lambda: (A("s_mov_b32 exec_hi, 0"), vm.issue("buffer_load_dword v60, v%d, s[%d:%d], s6 offen offset:3072" % (vL16, sGU, sGU + 3), "bulk"), A("s_mov_b32 exec_hi, -1")))
        if OPT["bulkb"]:
            def g0():
                M("s_mul_i32 s4, s3, 1792", "s_lshl_b32 s5, s3, 9")
                vm.issue("buffer_load_dword v60, v%d, s[%d:%d], s4 offen" % (vL16, sDN, sDN + 3), "bulk")
            res.append(g0)
            res.append(lambda: vm.issue("buffer_load_dword v60, v%d, s[%d:%d], s4 offen offset:768" % (vL16, sDN, sDN + 3), "bulk"))
            res.append(lambda: (A("s_mov_b32 exec_hi, 0"), vm.issue("buffer_load_dword v60, v%d, s[%d:%d], s5 offen" % (vL16, sWO, sWO + 3), "bulk"), A("s_mov_b32 exec_hi, -1")))
        return res

    def stats(stage0, stages):
        if OPT["t0"]:
            M("v_mov_b32 v61, v57") if False else None
        if OPT["t0"]:
            kind, t = stages[0]
            base, sk, srd_, st = {"KV": (sKVb, sKq + t, sWQ, 3072), "Pa": (sGa, sKg + t, sGU, 3584)}[kind]
            M("v_mul_u32_u24 v38, %d, v%d" % (st, vLane), "s_add_u32 s4, s%d, s%d" % (base, sk))
            vm.issue("buffer_load_dword v60, v38, s[%d:%d], s4 offen" % (srd_, srd_ + 3), "tch")
        if OPT["bulk"] == 3:
            A("v_lshlrev_b32 v%d, 4, v%d" % (vL16, vLane))
            M("s_mov_b32 s90, s5", "s_mov_b32 s91, s6")
            for f in bulk(): f()
            M("s_mov_b32 s5, s90", "s_mov_b32 s6, s91")
        n0 = OPT["s0first"]
        for f in stage0[:n0]: f()
        for f in late: f()
        stamp("setup")
        rest = list(xl) + stage0[n0:] + (bulk() if OPT["bulk"] == 1 else [])
        for _ in range(OPT["xahead"]): rest.pop(0)()
        def rdx(c):
            vm.wait("x%d" % c)
            if OPT.get("xst"): stamp("x%d" % c)
            for sp in range(4):
                lg.issue("ds_read_b128 %s, v%d offset:%d" % (v(Xraw(4 * c + sp), 4), vXR + sp, c * 4096), "xr%d" % c)
        rdx(0)
        for c in range(8):
            for _ in range(4 if c < 4 else 2):
                if rest: rest.pop(0)()
            if c + 1 < 8: rdx(c + 1)
            lg.wait("xr%d" % c)
            for i in range(16):
                x = Xraw(4 * c) + i
                A("v_dot2_f32_bf16 v%d, v%d, s%d, v%d" % (vSt + i % 4, x, sOne, vSt + i % 4))
                A("v_dot2_f32_bf16 v%d, v%d, v%d, v%d" % (vSt + 4 + i % 4, x, x, vSt + 4 + i % 4))
                if i == 7 and c >= 4:
                    for _ in range(2):
                        if rest: rest.pop(0)()
        while rest: rest.pop(0)()
        stamp("stats")
        vm.wait("ep")
        A("s_barrier")

    def ln_scalar(dm):
        M("s_mov_b32 s4, 0x9e3779b9", "v_add_co_u32 v%d, vcc, 0x7f4a7c15, v%d" % (vTag, vTag), "v_mov_b32 v40, s4")
        seq = ["v_add_f32 v48, v48, v49", "v_add_f32 v50, v50, v51", "v_addc_co_u32 v%d, vcc, v40, v%d, vcc" % (vTag + 1, vTag + 1),
               "v_add_f32 v52, v52, v53", "v_add_f32 v54, v54, v55",
               "v_add_f32 v48, v48, v50", "v_add_f32 v52, v52, v54",
               "v_mov_b32 v49, v48", "v_mov_b32 v53, v52", None,
               "v_permlane32_swap_b32 v48, v49", "v_permlane32_swap_b32 v52, v53",
               "v_add_f32 v48, v48, v49", "v_add_f32 v52, v52, v53",
               "v_mul_f32 v48, %s, v48" % f32(1.0 / 512), "v_mul_f32 v52, %s, v52" % f32(1.0 / 512),
               "v_fma_f32 v52, -v48, v48, v52", "v_max_f32 v52, 0, v52",
               "v_cvt_pk_bf16_f32 v48, v48, v52",
               "v_and_b32 v52, 0xffff0000, v48", "v_lshlrev_b32 v48, 16, v48",
               "v_add_f32 v52, %s, v52" % f32(1e-5),
               "v_cvt_pk_bf16_f32 v52, v52, v52", "v_and_b32 v52, 0xffff0000, v52",
               "v_sqrt_f32 v52, v52", None,
               "v_cvt_pk_bf16_f32 v52, v52, v52", "v_and_b32 v52, 0xffff0000, v52",
               "v_rcp_f32 v%d, v52" % vRs, None,
               "v_mul_f32_e64 v%d, -v48, v%d" % (vMu, vRs)]
        for s_ in seq:
            if s_ is None:
                if dm: dm.pop(0)()
            else: A(s_)

    tyn = [0]
    B2PLAN = [[[0], [1], [2], [3], [4], [5], [6], [7, 8], [9, 10], [11]],
              [[0], [1], [2], [3], [4], [5], [6], [7], [8, 9], [10, 11]],
              [[0], [1], [2], [3], [4, 5], [6, 7], [8], [9], [10], [11]],
              [[], [0], [1], [2], [3], [4, 5], [6, 7], [8], [9, 10], [11]]][OPT["plan"]]
    def phase1(ty, stages, accs, streams, tail):
        tyn[0] = ty
        stats(dma_stage(stages[0][0], stages[0][1], 0, "s0"), stages)
        M("s_and_b32 s4, s%d, 1" % sW, "s_lshl_b32 s4, s4, 6", "v_xor_b32 v%d, s4, v%d" % (vBA, vBA), "v_xor_b32 v%d, s4, v%d" % (vBB, vBB))
        dm = []
        for sidx in range(1, 4): dm += dma_stage(stages[sidx][0], stages[sidx][1], sidx, "s%d" % sidx)
        if OPT["bulk"] == 2: dm = dm[:8] + bulk() + dm[8:]
        if OPT["t1"]:
            firsts = [st_ for i_, st_ in enumerate(stages) if i_ > 0 and st_[1] == 0]
            dm = dm[:OPT["t1"] - 1] + [touch(*x_) for x_ in firsts] + dm[OPT["t1"] - 1:]
        hold = []
        if not OPT["lndma"]: hold, dm = dm, []
        ln_scalar(dm)
        for j in range(1, 4): A("v_add_u32 v%d, %d, v61" % (vDB[j], j * 7168))
        A("v_mov_b32 v%d, v61" % vDB[0])
        for s_ in range(2):
            for i, (c, f) in enumerate(st_norm(s_)):
                f()
                if i % 8 == 7 and dm: dm.pop(0)()
        stamp("ln")
        vm.wait("s0")
        if OPT.get("xst"): stamp("s0")
        A("s_barrier")
        q4 = quad(stages[0][0], stages[0][1], 0, 0)
        n = 0
        for j in range(4): rd(q4, j, 0, "w%d_%d" % (n, j // 2))
        buf = 0
        wpend = dm + hold
        fill = []; fill_gaps = 0; fill_tot = 0; fill_done = 0; gap = 0
        for sidx, (kind, t) in enumerate(stages):
            slot = sidx % 4
            bx = []
            for n_ in B2PLAN[sidx]: bx += (b2_read(n_ - 2) if n_ >= 2 else []) + b2_dma(n_)
            if len(B2PLAN[sidx]) == 2:
                h_ = len(bx) // 2
                ex = bx[:h_] + list(wpend) + bx[h_:]
            else: ex = bx + list(wpend) if sidx else list(wpend) + bx
            wpend = []
            if sidx == 4: A.label("L_mid%d" % ty)
            if sidx == 2: ex.append(code_touch("L_mid%d" % ty, 6))
            if sidx == 7: ex.append(code_touch("L_ATT", 8))
            if sidx == OPT["wopf"]:
                def wp(j):
                    if j == 0: M("s_and_b32 s3, s%d, 3" % sR, "s_lshl_b32 s3, s3, 15", "s_add_u32 s%d, s3, s%d" % (sSpin, sBo), "s_sub_u32 s%d, s%d, 0" % (sSpin, sSpin))
                    vm.issue("buffer_load_dword v60, v%d, s[%d:%d], s%d offen offset:%d" % (vDB[j], sWO, sWO + 3, sSpin, j * 1024), "wopf")
                ex += [(lambda j=j: wp(j)) for j in range(4)]
            if ty == 0 and sidx == 6:
                def pubkv():
                    vm.wait("stkv")
                    M("s_lshl_b32 s3, s%d, 9" % sIQ, "s_lshl_b32 s4, s%d, 3" % sBLK, "s_add_u32 s3, s3, s4", "s_add_u32 s3, s3, 0x%x" % FK)
                    publish(3)
                ex.insert(8, pubkv)
            if ty == 0 and sidx == 8:
                def pubq():
                    vm.wait("stq")
                    M("s_lshl_b32 s3, s%d, 9" % sIQ, "s_lshl_b32 s4, s%d, 3" % sBLK, "s_add_u32 s3, s3, s4", "s_add_u32 s3, s3, 0x%x" % FQ)
                    publish(3)
                ex.insert(0, pubq)
            if sidx == OPT["kvst"] - 1:
                def pk():
                    M("s_lshr_b32 s3, s%d, 1" % sP, "s_lshl_b32 s3, s3, 9", "s_lshl_b32 s4, s%d, 5" % sRB, "s_add_u32 s3, s3, s4", "s_add_u32 s%d, s3, 0x%x" % (sFl, FK - 64),
                      "s_lshl_b32 s4, s%d, 2" % sRB, "s_sub_i32 s4, 8, s4", "s_max_i32 s4, s4, 0",
                      "s_lshl_b32 s%d, -1, s4" % sMask, "s_and_b32 s%d, s%d, 0xfff" % (sMask, sMask), "s_mov_b32 s%d, 0" % (sMask + 1))
                    poll_issue(vL8, sFl, "pk")
            if sidx == OPT["kvst"]:
                ex = [lambda: poll_check(vL8, sFl, "pk")] + kv_dma() + ex
            if sidx == OPT["kvst"] - 1: ex.insert(1, pk)
            if sidx == 9:
                def pq():
                    M("s_lshr_b32 s3, s%d, 1" % sP, "s_lshl_b32 s3, s3, 9", "s_lshl_b32 s4, s%d, 3" % sBLK, "s_add_u32 s3, s3, s4", "s_add_u32 s%d, s3, 0x%x" % (sFl, FQ),
                      "s_mov_b32 s%d, 1" % sMask, "s_mov_b32 s%d, 0" % (sMask + 1))
                    poll_issue(vL8, sFl, "pq")
                ex.insert(8, pq)
            if sidx in streams:
                while fill: fill.pop(0)[1]()
                fill, ns = streams[sidx]
                fill = list(fill); fill_gaps = ns * 32 - 6; fill_tot = sum(abs(c) for c, _ in fill); fill_done = 0; gap = -3
            nex = len(ex); exi = 0
            for q in range(8):
                cur = quad(kind, t, slot, q)
                if q == 7:
                    if sidx + 1 < len(stages):
                        vm.wait("s%d" % (sidx + 1)); A("s_barrier")
                        nxt = quad(stages[sidx + 1][0], stages[sidx + 1][1], (sidx + 1) % 4, 0)
                        if sidx >= 1 and sidx + 3 < len(stages):
                            wpend = dma_stage(stages[sidx + 3][0], stages[sidx + 3][1], (sidx + 3) % 4, "s%d" % (sidx + 3))
                    else:
                        nxt = None
                else:
                    nxt = quad(kind, t, slot, q + 1)
                lnf = st_norm(8 * sidx + q + 2) if (sidx < 4 and 8 * sidx + q + 2 < 32) else []
                for j in range(4):
                    acc, xi, _, _, _ = cur[j]
                    if j % 2 == 0: lg.wait("w%d_%d" % (n, j // 2))
                    d = v(accs[sidx] + acc * 16, 16)
                    c = d if xi > 0 else "0"
                    wf, xf = a(buf * 16 + j * 4, 4), Xr(xi)
                    if kind == "KV" and acc >= 2: A("%s %s, %s, %s, %s" % (MF, d, xf, wf, c))
                    else: A("%s %s, %s, %s, %s" % (MF, d, wf, xf, c))
                    if nxt is not None: rd(nxt, j, buf ^ 1, "w%d_%d" % (n + 1, j // 2))
                    g_in = q * 4 + j
                    used = 0
                    if fill and fill[0][0] < 0:
                        c_, f = fill.pop(0); f(); fill_done += -c_; used += -c_
                    elif exi < nex and exi * 30 <= g_in * nex:
                        ex[exi](); exi += 1; used += 6
                        while exi < nex and exi * 30 <= (g_in - 2) * nex:
                            ex[exi](); exi += 1; used += 6
                    k = -(-len(lnf) // (4 - j))
                    for _ in range(k): lnf.pop(0)[1]()
                    gap += 1
                    if fill and gap > 0:
                        lag = fill_tot * gap / fill_gaps - fill_done
                        lim = max(OPT["budget"], fill_tot / fill_gaps + 4)
                        while fill and fill[0][0] > 0 and lag > 0 and (used + fill[0][0] <= lim or lag > 24):
                            c_, f = fill.pop(0); f(); fill_done += c_; used += c_; lag -= c_
                buf ^= 1; n += 1
            while exi < nex: ex[exi](); exi += 1
            stamp("st%d" % sidx, sidx not in (3, 5, 7, 9))
        while fill: fill.pop(0)[1]()
        poll_check(vL8, sFl, "pq")
        M("s_lshl_b32 s3, s%d, 17" % sP, "s_lshl_b32 s4, s%d, 10" % sBLK, "s_add_u32 s4, s4, s3", "s_add_u32 s4, s4, 0x%x" % QF, "s_add_u32 s5, s4, 65536")
        vm.issue("buffer_load_dwordx4 %s, v%d, s[%d:%d], s4 offen%s" % (v(Q0, 4), vL16, sWS, sWS + 3, SC), "q")
        vm.issue("buffer_load_dwordx4 %s, v%d, s[%d:%d], s5 offen%s" % (v(Q1, 4), vL16, sWS, sWS + 3, SC), "q")
        for f in b2_read(10): f()
        for c_, f in tail: f()
        stamp("tail")

    M("s_cmp_eq_u32 s%d, 0" % sTy, "s_cbranch_scc0 L_HH")
    sv, sl, sn = vm.save(), lg.save(), nst[0]
    phase1(0, [("KV", t) for t in range(4)] + [("Q", t) for t in range(2)] + [("Pa", t) for t in range(4)],
           [ACA] * 4 + [ACB] * 2 + [ACA] * 4,
           {4: (st_kv(ACA), 2), 6: (st_q(ACB), 1)}, st_swiglu(ACA, 2, 32, sHa, "sth"))
    A("s_branch L_ATT")
    A.label("L_HH")
    vm.load(sv); lg.load(sl); nst[0] = sn
    phase1(1, [("Pa", t) for t in range(4)] + [("Pb", t) for t in range(4)] + [("P1", t) for t in range(2)],
           [ACA] * 4 + [ACB] * 4 + [ACA] * 2,
           {4: (st_swiglu(ACA, 2, 32, sHa, "sth"), 4), 8: (st_swiglu(ACB, 2, 32, sHb, "sth"), 2)}, st_swiglu(ACA, 1, 16, sH1, "sth"))
    A.label("L_ATT")
    vKA, vVA = 6, 7
    M("v_and_b32 v40, 31, v%d" % vLane, "v_lshrrev_b32 v41, 5, v%d" % vLane, "v_lshlrev_b32 v41, 2, v41", "v_sub_u32 v40, v40, v41",
      "v_mov_b32 v41, 0xff800000", "v_mov_b32 v42, 0")
    for rg in range(16):
        c = (rg // 4) * 8 + rg % 4
        A("v_cmp_le_i32 s[%d:%d], %d, v40" % (4 + 2 * (rg % 2), 5 + 2 * (rg % 2), c))
        A("v_mov_b32 v%d, 0x3f803f80" % (V0 + rg))
        if rg > 0:
            pr = rg - 1
            A("v_cndmask_b32 v%d, v41, v42, s[%d:%d]" % (MD + pr, 4 + 2 * (pr % 2), 5 + 2 * (pr % 2)))
            A("v_cndmask_b32 v%d, v42, v41, s[%d:%d]" % (ME + pr, 4 + 2 * (pr % 2), 5 + 2 * (pr % 2)))
    M("s_mov_b32 s%d, 0x0000ffff" % sE0, "s_mov_b32 s%d, 0x0000ffff" % (sE0 + 1))
    M("v_cndmask_b32 v%d, v41, v42, s[6:7]" % (MD + 15), "v_cndmask_b32 v%d, v42, v41, s[6:7]" % (ME + 15))
    M("s_mov_b32 s%d, 0xffff0000" % sE1, "s_mov_b32 s%d, 0xffff0000" % (sE1 + 1))
    M("s_sub_i32 s%d, 8, s%d" % (sI0, sBLK), "s_max_i32 s%d, s%d, 0" % (sI0, sI0))
    M("s_add_u32 s4, s%d, s%d" % (sI0, sW), "s_lshl_b32 s5, s4, 10", "s_add_u32 s5, s5, %d" % KVB, "v_add_u32 v%d, s5, v%d" % (vKA, vL16),
      "s_lshl_b32 s5, s4, 11", "s_add_u32 s5, s5, %d" % (KVB + 24576), "v_add_u32 v%d, s5, v%d" % (vVA, vL16),
      "v_mov_b32 v12, v%d" % vKA, "v_mov_b32 v13, v%d" % vVA)
    A("v_mov_b32 v%d, 1" % vRet)
    M("s_lshl_b32 s3, s%d, 7" % sBLK, "s_lshl_b32 s4, s%d, 3" % sP, "s_add_u32 s3, s3, s4", "s_add_u32 s%d, s3, 0x%x" % (sFl, FH))
    M("s_lshl_b32 s%d, s%d, 8" % (sXo, sR), "s_add_u32 s%d, s%d, 0x%x" % (sXo, sXo, FH), "s_mov_b32 s%d, -1" % sMask, "s_mov_b32 s%d, 0" % (sMask + 1))
    M("s_lshl_b32 s%d, s%d, 14" % (sSt, sW), "s_mov_b32 s%d, s%d" % (sWl, sSt), "s_mov_b32 s%d, s%d" % (sTmp, sBo))
    for f in b2_dma(12): f()
    for f in b2_read(11): f()
    vm.wait("q"); A("s_barrier")
    stamp("att0")
    def rdK(h, off): lg.issue("ds_read_b128 %s, v%d offset:%d" % (v(K0 if h == 0 else K1_, 4), vKA, h * 12288 + off), "k%d" % h)
    def rdV(h, off):
        A("s_mov_b64 exec, s[%d:%d]" % ((sE0, sE0 + 1) if h == 0 else (sE1, sE1 + 1)))
        R = V0 if h == 0 else V1
        lg.issue("ds_read_b128 %s, v%d offset:%d" % (v(R, 4), vVA, off), "v%d" % h)
        lg.issue("ds_read_b128 %s, v%d offset:%d" % (v(R + 4, 4), vVA, off + 1024), "v%d" % h)
        A("s_mov_b64 exec, -1")
    def mask(m): return {"0": "0", "D": v(MD, 16), "E": v(ME, 16)}[m]
    def ex_(r): A("v_exp_f32 v%d, v%d" % (r, r))
    def cv(d, s_): A("v_cvt_pk_bf16_f32 v%d, v%d, v%d" % (d, s_, s_ + 1))
    def half(h, mqk, last, first, extra):
        S, O, Vr = (S0, O0, V0) if h == 0 else (S1, O1, V1)
        So, Oo, Vo, Ko, Qo = (S1, O1, V1, K1_, Q1) if h == 0 else (S0, O0, V0, K0, Q0)
        ex_(S); ex_(S + 1)
        if not (first and h == 0): A("%s %s, %s, %s, %s" % (MF, v(Oo, 16), v(Vo + 4, 4), v(P + 4, 4), v(Oo, 16)))
        n_new = 0
        if not last: rdK(h, 1024); n_new += 1
        if mqk is not None: rdV(1 - h, 0 if h == 0 else 2048); n_new += 2
        ex_(S + 2); ex_(S + 3); ex_(S + 4); ex_(S + 5); cv(P, S); cv(P + 1, S + 2)
        A("s_waitcnt lgkmcnt(%d)" % n_new)
        if mqk is not None: A("%s %s, %s, %s, %s" % (MF, v(So, 16), v(Ko, 4), v(Qo, 4), mask(mqk)))
        ex_(S + 6); ex_(S + 7); ex_(S + 8); ex_(S + 9); cv(P + 2, S + 4); cv(P + 3, S + 6); ex_(S + 10); ex_(S + 11)
        A("%s %s, %s, %s, %s" % (MF, v(O, 16), v(Vr, 4), v(P, 4), "0" if first else v(O, 16)))
        for f in extra: f()
        ex_(S + 12); ex_(S + 13); cv(P + 4, S + 8); cv(P + 5, S + 10); ex_(S + 14); ex_(S + 15)
        if h == 1 and not last: M("v_add_u32 v%d, 1024, v%d" % (vKA, vKA), "v_add_u32 v%d, 2048, v%d" % (vVA, vVA))
        cv(P + 6, S + 12); cv(P + 7, S + 14)
    def body(m1, m0n, first=False, e0=(), e1=()):
        half(0, m1, m0n is None, first, e0); half(1, m0n, m0n is None, first, e1)
    rdK(0, 0); rdK(1, 0); rdV(0, 0)
    for f in b2_dma(13): f()
    M("s_cmp_lg_u32 s%d, 0" % sW, "s_cbranch_scc1 L_noat", "s_mov_b64 exec, 1")
    A("buffer_atomic_add v%d, v%d, s[%d:%d], 0 offen sc0" % (vRet, vL16, sDBG, sDBG + 3))
    A("s_mov_b64 exec, -1")
    A.label("L_noat")
    M("s_cmp_lg_u32 s%d, 0" % sI0, "s_cbranch_scc1 A_short")
    sv_short = vm.save()
    A("s_waitcnt lgkmcnt(3)")
    A("%s %s, %s, %s, %s" % (MF, v(S0, 16), v(K0, 4), v(Q0, 4), v(ME, 16)))
    A("s_mov_b32 s%d, 6" % sCnt)
    body("E", "0", True, [wo2])
    stamp("t0", True)
    A.label("A_mid")
    def pubh():
        L = A.newlabel("L_ph")
        M("s_cmp_lg_u32 s%d, %d" % (sCnt, 7 - OPT["pubh"]), "s_cbranch_scc1 %s" % L)
        for _ in range(OPT["pubh"] - 1): vm.ops += ["wo", "wo"]
        vm.wait("sth"); publish(sFl)
        A.label(L)
    body("0", "0", False, [wo2], [pubh])
    M("s_sub_u32 s%d, s%d, 1" % (sCnt, sCnt), "s_cmp_lg_u32 s%d, 0" % sCnt, "s_cbranch_scc1 A_mid")
    A.label("A_b7")
    body("0", "D", False, [wo2])
    A.label("A_b8")
    body("D", None, False, [lambda: poll_issue(vL8, sXo, "ph")])
    A("%s %s, %s, %s, %s" % (MF, v(O1, 16), v(V1 + 4, 4), v(P + 4, 4), v(O1, 16)))
    lg.mark_all()
    vm_main = vm.save()
    stamp("att")
    D2 = OPT["d2"]
    M("s_lshl_b32 s3, s%d, 1" % sR, "s_lshr_b32 s4, s%d, 1" % sW, "s_add_u32 s5, s3, s4", "s_xor_b32 s6, s5, 1",
      "s_mul_i32 s5, s5, %d" % (144 * 1024), "s_mul_i32 s6, s6, %d" % (144 * 1024),
      "s_mul_i32 s4, s%d, %d" % (sW, 28 * 1024), "s_add_u32 s%d, s5, s4" % sAd, "s_add_u32 s%d, s6, s4" % (sAd + 1),
      "s_lshl_b32 s4, s%d, 13" % sW, "s_add_u32 s4, s4, %d" % (112 * 1024), "s_add_u32 s%d, s5, s4" % sAo, "s_add_u32 s%d, s6, s4" % (sAo + 1))
    sAg = 76
    pool = list(range(80, 128, 4)) + [64, 68, 72, 76] + list(range(192, 224, 4))
    assert len(pool) >= 2 * D2
    def AFr(ks, rf): return pool[(ks % D2) * 2 + rf]
    def loadA(ks):
        kk = ks if ks < 28 else ks - 28
        if kk % 4 == 0:
            if ks < 28:
                M("s_add_u32 s78, s%d, %d" % (sRot2, ks // 4), "s_cmp_ge_u32 s78, 7", "s_cselect_b32 s79, 7, 0", "s_sub_u32 s78, s78, s79", "s_lshl_b32 s78, s78, 12",
                  "s_add_u32 s%d, s%d, s78" % (sAg, sAd), "s_add_u32 s%d, s%d, s78" % (sAg + 1, sAd + 1))
            else:
                M("s_add_u32 s%d, s%d, %d" % (sAg, sAo, kk * 1024), "s_add_u32 s%d, s%d, %d" % (sAg + 1, sAo + 1, kk * 1024))
        for rf in range(2):
            vm.issue("buffer_load_dwordx4 %s, v%d, s[%d:%d], s%d offen offset:%d%s" % (v(AFr(ks, rf), 4), vL16, sWS, sWS + 3, sAg + rf, (kk % 4) * 1024, SC), "a%d" % ks)
    poll_check(vL8, sXo, "ph")
    for ks in range(5): loadA(ks)
    for f in b2_read(12) + b2_read(13): f()
    M("v_rcp_f32 v40, v%d" % (O0 + 8), "v_rcp_f32 v41, v%d" % O1, "v_mov_b32 v42, 0x1f800000", "v_mov_b32 v43, 0x5f800000")
    M("v_cmp_le_f32 vcc, v42, v%d" % (O0 + 8), "v_cmp_ge_f32 s[4:5], v43, v%d" % (O0 + 8), "v_cmp_le_f32 s[6:7], v42, v%d" % O1, "s_and_b64 vcc, vcc, s[4:5]",
      "v_cmp_ge_f32 s[4:5], v43, v%d" % O1, "s_and_b64 vcc, vcc, s[6:7]")
    for i in range(8): M("v_mul_f32 v%d, v%d, v40" % (O0 + i, O0 + i), "v_mul_f32 v%d, v%d, v41" % (O1 + 8 + i, O1 + 8 + i))
    A("s_and_b64 s[6:7], vcc, s[4:5]")
    for i in range(4): A("v_pk_add_f32 %s, %s, %s" % (v(T + 2 * i, 2), v(O0 + 2 * i, 2), v(O1 + 8 + 2 * i, 2)))
    M("v_pk_add_f32 %s, %s, %s" % (v(T, 2), v(T, 2), v(T + 2, 2)), "v_pk_add_f32 %s, %s, %s" % (v(T + 4, 2), v(T + 4, 2), v(T + 6, 2)),
      "v_pk_add_f32 %s, %s, %s" % (v(T, 2), v(T, 2), v(T + 4, 2)), "v_add_f32 v%d, v%d, v%d" % (T, T, T + 1), "v_mov_b32 v42, 0x1f8", "v_cmp_class_f32 vcc, v%d, v42" % T)
    for i in range(4): cv(T + 8 + i, O0 + 2 * i); cv(T + 12 + i, O1 + 8 + 2 * i)
    A("s_and_b64 vcc, vcc, s[6:7]")
    if OPT["fb_force"]: A("s_mov_b64 vcc, 0")
    M("s_cmp_eq_u64 vcc, -1", "s_cbranch_scc0 A_fb")
    A.label("A_fin2")
    M("s_mul_i32 s3, s%d, %d" % (sBLK, 144 * 1024), "s_lshl_b32 s4, s%d, 11" % sP, "s_add_u32 s3, s3, s4", "s_add_u32 s3, s3, %d" % (112 * 1024))
    store(T + 8, 3, 0, "sto"); store(T + 12, 3, 1024, "sto")
    assert D2 >= 6
    AC2 = 128
    M("v_and_b32 v40, 31, v%d" % vLane, "v_lshrrev_b32 v41, 5, v%d" % vLane, "v_lshlrev_b32 v40, 10, v40", "v_lshl_add_u32 v%d, v41, 4, v40" % vXo,
      "s_lshr_b32 s3, s%d, 1" % sW, "s_lshl_b32 s4, s%d, 1" % sR, "s_add_u32 s3, s3, s4", "s_lshl_b32 s3, s3, 15",
      "s_and_b32 s4, s%d, 1" % sW, "s_lshl_b32 s4, s4, 6", "s_add_u32 s3, s3, s4", "s_lshl_b32 s4, s%d, 7" % sC2, "s_add_u32 s%d, s3, s4" % sCnt)
    nl = [5]
    M("s_sub_u32 s3, s%d, s%d" % (sSt, sStg), "v_add_u32 v%d, s3, v%d" % (vBA, vBA), "v_add_u32 v%d, s3, v%d" % (vBB, vBB))
    def rdO(kk):
        for cf in range(2):
            R = vBA if cf == 0 else vBB
            d = (kk % 2) * 8 + cf * 4
            lg.issue("ds_read_b64_tr_b16 %s, v%d offset:%d" % (a(d, 2), R, kk * 2048), "o%d" % kk)
            lg.issue("ds_read_b64_tr_b16 %s, v%d offset:%d" % (a(d + 2, 2), R, kk * 2048 + 1024), "o%d" % kk)
    stamp("p2go")
    KO = 28 - D2 + OPT.get("odelay", 0)
    for ks in range(36):
        if ks == 2:
            vm.wait("sto")
            M("s_lshl_b32 s3, s%d, 7" % sBLK, "s_lshl_b32 s4, s%d, 3" % sP, "s_add_u32 s3, s3, s4", "s_add_u32 s3, s3, 0x%x" % FO)
            publish(3)
        if ks == KO - 4:
            M("s_lshl_b32 s%d, s%d, 8" % (sXo, sR), "s_add_u32 s%d, s%d, 0x%x" % (sXo, sXo, FO),
              "s_lshl_b32 s3, s%d, 2" % sW, "s_lshl_b32 s%d, 0x000f000f, s3" % sMask, "s_mov_b32 s%d, 0" % (sMask + 1))
            poll_issue(vL8, sXo, "po")
        if ks == KO:
            stamp("p2a")
            poll_check(vL8, sXo, "po")
            stamp("p2b")
        if ks == 24:
            vm.issue("buffer_load_dwordx4 v[48:51], v%d, s[%d:%d], s%d offen" % (vXo, sXS, sXS + 3, sCnt), "xr")
            vm.issue("buffer_load_dwordx4 v[52:55], v%d, s[%d:%d], s%d offen offset:32" % (vXo, sXS, sXS + 3, sCnt), "xr")
        vm.wait("a%d" % ks)
        if ks == 0: lg.wait("b2r13")
        if ks >= 28: lg.wait("o%d" % (ks - 28))
        lim = min(36 if ks >= KO else 28, ks + D2 + 0)
        m = 0
        for cf in range(2):
            for rf in range(2):
                d = v(AC2 + (rf * 2 + cf) * 16, 16)
                A("%s %s, %s, %s, %s" % (MF, d, Breg(ks, cf), v(AFr(ks, rf), 4), d if ks else "0"))
                m += 1
                if m == 2 and 27 <= ks < 35: rdO(ks - 27)
                if m in (1, 3) and nl[0] < lim:
                    loadA(nl[0]); nl[0] += 1
    stamp("p2end")
    for i in range(1, 4): M("s_xor_b32 s3, s%d, %d" % (sW, i), "s_lshl_b32 s3, s3, 14", "v_add_u32 v%d, s3, v%d" % (40 + i, vL16))
    A("v_add_u32 v40, s%d, v%d" % (sSt, vL16))
    vm.wait("xr")
    for i in range(8): M("v_lshlrev_b32 v%d, 16, v%d" % (64 + 2 * i, 48 + i), "v_and_b32 v%d, s%d, v%d" % (65 + 2 * i, sMsk, 48 + i))
    for i in range(1, 4):
        for j in range(4): A("ds_write_b128 v40, %s offset:%d" % (v(AC2 + i * 16 + 4 * j, 4), (i - 1) * 4096 + j * 1024))
    M("s_waitcnt lgkmcnt(0)", "s_barrier")
    for i in range(1, 4):
        for j in range(4): lg.issue("ds_read_b128 %s, v%d offset:%d" % (v(AC2 + i * 16 + 4 * j, 4), 40 + i, (i - 1) * 4096 + j * 1024), "r%d" % i)
    M("s_cmp_lg_u32 s%d, 0" % sW, "s_cbranch_scc1 L_noep", "v_readfirstlane_b32 s3, v%d" % vRet, "s_cmp_lg_u32 s3, 255", "s_cbranch_scc1 L_noep",
      "s_mov_b32 s3, 0x%x" % EOFF, "s_mov_b64 exec, 1")
    A("buffer_store_dwordx2 %s, v%d, s[%d:%d], s3 offen" % (v(vTag, 2), vL16, sWS, sWS + 3))
    A("s_mov_b64 exec, -1")
    A.label("L_noep")
    lg.wait("r1")
    for i in range(16): A("v_add_f32 v%d, v%d, v%d" % (AC2 + i, AC2 + i, AC2 + 16 + i))
    lg.wait("r3")
    for i in range(16): A("v_add_f32 v%d, v%d, v%d" % (AC2 + 32 + i, AC2 + 32 + i, AC2 + 48 + i))
    for i in range(16): A("v_add_f32 v%d, v%d, v%d" % (AC2 + i, AC2 + i, AC2 + 32 + i))
    for jj in range(2):
        for i in range(4): A("v_permlane32_swap_b32 v%d, v%d" % (AC2 + 8 * jj + i, AC2 + 8 * jj + 4 + i))
    for i in range(16): A("v_add_f32 v%d, v%d, v%d" % (64 + i, 64 + i, AC2 + i))
    for i in range(8): cv(T + i, 64 + 2 * i)
    A("buffer_store_dwordx4 %s, v%d, s[%d:%d], s%d offen" % (v(T, 4), vXo, sOUT, sOUT + 3, sCnt))
    A("buffer_store_dwordx4 %s, v%d, s[%d:%d], s%d offen offset:32" % (v(T + 4, 4), vXo, sOUT, sOUT + 3, sCnt))
    stamp_flush()
    A("s_endpgm")
    A.label("A_short")
    vm.load(sv_short)
    for i in range(16): M("v_mov_b32 v%d, 0" % (O0 + i), "v_mov_b32 v%d, 0" % (O1 + i))
    for i in range(4): A("v_mov_b32 v%d, 0" % (P + 4 + i))
    M("s_cmp_le_u32 s%d, %d" % (sI0, OPT["pubh"]), "s_cbranch_scc1 A_sh1")
    vm.wait("sth"); publish(sFl)
    A.label("A_sh1")
    A("s_mov_b32 s%d, s%d" % (sCnt, sI0))
    A.label("A_sh2")
    wo2()
    M("s_sub_u32 s%d, s%d, 1" % (sCnt, sCnt), "s_cmp_lg_u32 s%d, 0" % sCnt, "s_cbranch_scc1 A_sh2")
    M("s_waitcnt lgkmcnt(0)", "s_cmp_eq_u32 s%d, 8" % sI0, "s_cbranch_scc1 A_sh3")
    A("%s %s, %s, %s, 0" % (MF, v(S0, 16), v(K0, 4), v(Q0, 4)))
    M("s_sub_u32 s%d, 7, s%d" % (sCnt, sI0), "s_nop 9", "s_cmp_eq_u32 s%d, 7" % sI0, "s_cbranch_scc1 A_b7", "s_branch A_mid")
    A.label("A_sh3")
    A("%s %s, %s, %s, %s" % (MF, v(S0, 16), v(K0, 4), v(Q0, 4), v(MD, 16)))
    M("s_nop 11", "s_branch A_b8")
    A.label("A_fb")
    for h in range(2):
        Qh, O, Vr = (Q0, O0, V0) if h == 0 else (Q1, O1, V1)
        vM = 44
        for pas in range(2):
            Lp = "A_fb%d%d" % (h, pas)
            M("v_mov_b32 v%d, v12" % vKA, "v_mov_b32 v%d, v13" % vVA, "s_mov_b32 s%d, s%d" % (sCnt, sI0))
            if pas == 0: A("v_mov_b32 v%d, 0xff800000" % vM)
            else:
                for i in range(16): A("v_mov_b32 v%d, 0" % (O + i))
            A.label(Lp)
            A("ds_read_b128 %s, v%d offset:%d" % (v(K0, 4), vKA, h * 12288))
            if pas == 1: rdV(h, 0)
            M("s_waitcnt lgkmcnt(0)", "s_cmp_eq_u32 s%d, 0" % sCnt, "s_cbranch_scc1 %s_e" % Lp, "s_cmp_eq_u32 s%d, 8" % sCnt, "s_cbranch_scc1 %s_d" % Lp)
            M("%s %s, %s, %s, 0" % (MF, v(S0, 16), v(K0, 4), v(Qh, 4)), "s_branch %s_j" % Lp)
            A.label(Lp + "_e"); M("%s %s, %s, %s, %s" % (MF, v(S0, 16), v(K0, 4), v(Qh, 4), v(ME, 16)), "s_branch %s_j" % Lp)
            A.label(Lp + "_d"); A("%s %s, %s, %s, %s" % (MF, v(S0, 16), v(K0, 4), v(Qh, 4), v(MD, 16)))
            A.label(Lp + "_j")
            A("s_nop 15")
            if pas == 0:
                for i in range(16): A("v_max_f32 v%d, v%d, v%d" % (vM, vM, S0 + i))
            else:
                for i in range(16): A("v_sub_f32 v%d, v%d, v%d" % (S0 + i, S0 + i, vM))
                for i in range(16): ex_(S0 + i)
                for i in range(8): cv(P + i, S0 + 2 * i)
                A("%s %s, %s, %s, %s" % (MF, v(O, 16), v(Vr, 4), v(P, 4), v(O, 16)))
                A("%s %s, %s, %s, %s" % (MF, v(O, 16), v(Vr + 4, 4), v(P + 4, 4), v(O, 16)))
            M("v_add_u32 v%d, 1024, v%d" % (vKA, vKA), "v_add_u32 v%d, 2048, v%d" % (vVA, vVA),
              "s_add_u32 s%d, s%d, 1" % (sCnt, sCnt), "s_cmp_le_u32 s%d, 8" % sCnt, "s_cbranch_scc1 %s" % Lp)
            if pas == 0: M("v_mov_b32 v45, v%d" % vM, "v_permlane32_swap_b32 v%d, v45" % vM, "v_max_f32 v%d, v%d, v45" % (vM, vM))
    A("s_nop 15")
    M("v_rcp_f32 v40, v%d" % (O0 + 8), "v_rcp_f32 v41, v%d" % O1)
    for i in range(8): M("v_mul_f32 v%d, v%d, v40" % (O0 + i, O0 + i), "v_mul_f32 v%d, v%d, v41" % (O1 + 8 + i, O1 + 8 + i))
    for i in range(4): cv(T + 8 + i, O0 + 2 * i); cv(T + 12 + i, O1 + 8 + 2 * i)
    M("s_nop 4", "s_branch A_fin2")
    A.label("L_end")
    A("s_endpgm")
    return A

def build():
    kn = NAME + "_kernel"
    lines = hazard.fix(gen().lines, True)
    t = "; generated by gen/v6.py\n; @launch grid=(256,1,1) block=(256,1,1) lds=163840\n"
    t += '.amdgcn_target "amdgcn-amd-amdhsa--gfx950"\n'
    t += kernel_header(kn) + "\n".join(lines) + "\n"
    t += kernel_desc(kn, 512, 102, 256)
    import subprocess, re
    open("_p1.s", "w").write(re.sub(r"OFF_L_\w+", "0x12345", t.replace("CODE_SPAN", "0x12345")))
    subprocess.run(["clang", "-x", "assembler", "-target", "amdgcn-amd-amdhsa", "-mcpu=gfx950", "-c", "_p1.s", "-o", "_p1.o"], check=True)
    h = subprocess.run(["llvm-objdump", "-h", "_p1.o"], capture_output=True, text=True).stdout
    size = int(re.search(r"\.text\s+([0-9a-f]+)", h).group(1), 16)
    syms = {}
    for ln in subprocess.run(["llvm-objdump", "-t", "_p1.o"], capture_output=True, text=True).stdout.splitlines():
        p = ln.split()
        if len(p) >= 5 and p[-1].startswith("L_"): syms[p[-1]] = int(p[0], 16)
    if "L_pc" in syms:
        for nm in set(re.findall(r"OFF_(L_\w+)", t)): t = t.replace("OFF_" + nm, "0x%x" % ((syms[nm] - syms["L_pc"]) | 0x10000000 & 0))
    print("code bytes:", size)
    t = t.replace("CODE_SPAN", "0x%x" % (size - 256))
    if OPT["stamp"]: t += "; STAMPS " + " ".join(NAMES[i] for i in sorted(NAMES)) + "\n"
    return t

if __name__ == "__main__":
    args = [x for x in sys.argv[1:] if not x.startswith("--")]
    for x in sys.argv[1:]:
        if x.startswith("--"):
            k, _, val = x[2:].partition("=")
            OPT[k] = (val if "," in val else int(val)) if val else True
    out = args[0] if args else "cdna_kernels/%s.s" % NAME
    open(out, "w").write(build())
```

```python
import sys, struct
from asmlib import *
import hazard

NAME = "parallel_sum__sliding_block__swiglu_ffn__prompt"
A2F = 0
B2T = 0xA00000
QF = 0x1000000
KF = QF + 0x200000
VF = QF + 0x400000
STAMP_OFF = 0x1600000
FLG = 0x1700000
FK = FLG + 0x100; FQ = FLG + 0x1200; FH = FLG + 0x4000; FO = FLG + 0x6000; FE = FLG + 0x8000; EOFF = FLG + 0xA000
WS_BYTES = 0x1710000
LOG2E = 1.4426950408889634
MF = "v_mfma_f32_32x32x16_bf16"
OPT = dict(stamp=False, fine=False, pf_code=True, rot=True, d2=7, rot2=True, fb_force=False, touch=False,
           pro_first=12, budget=12, bulk=1, s0first=0, xahead=4, kvst=9, early=True, rmap=True, pubh=1, wopf=-1, bulkb=0, xpf=0, plan=0, t0=0, t1=0, lndma=1, pubo=2, elate=1, odelay=5, s0swap=0, wsoff=0)
NAMES = {}

def f32(x):
    return "0x%08x" % struct.unpack("<I", struct.pack("<f", x))[0]

class Track:
    def __init__(self, A, name, maxn):
        self.A = A; self.ops = []; self.done = -1; self.name = name; self.maxn = maxn
    def issue(self, text, tag):
        self.A(text); self.ops.append(tag)
    def wait(self, tag):
        idx = max(i for i, t in enumerate(self.ops) if t == tag)
        if idx <= self.done: return
        n = sum(1 for t in self.ops[idx + 1:] if not t.startswith("?"))
        self.done = idx
        self.A("s_waitcnt %s(%d)" % (self.name, min(n, self.maxn)))
    def mark_all(self): self.done = len(self.ops) - 1
    def save(self): return (list(self.ops), self.done)
    def load(self, st): self.ops = list(st[0]); self.done = st[1]

def gen():
    A = Asm(); vm = Track(A, "vmcnt", 63); lg = Track(A, "lgkmcnt", 15)
    SC = " sc1"
    def srd(d, lo, nbytes):
        A("s_mov_b32 s%d, s%d" % (d, lo)); A("s_mov_b32 s%d, s%d" % (d + 1, lo + 1))
        A("s_mov_b32 s%d, 0x%x" % (d + 2, nbytes)); A("s_mov_b32 s%d, 0x20000" % (d + 3))
    def M(*lines):
        for l in lines: A(l)
    sXS, sWQ, sGU, sWS, sDBG, sOUT, sDN, sWO = 8, 12, 16, 20, 44, 52, 56, 80
    sW, sRB, sIQ, sP, sBLK, sTy, sROT = 24, 25, 26, 27, 28, 29, 30
    sR, sC2, sLW, sTmp, sIdx = 31, 32, 33, 34, 35
    sKVb, sQb, sGa, sGb, sG1 = 36, 37, 38, 39, 40
    sHa, sHb, sH1 = 41, 42, 43
    sMsk, sFl = 50, 51
    sSt = 60
    sKq, sKg, sK2 = 64, 68, 72
    sBd, sPk0, sBo, sStg, sPk1 = 74, 75, 99, 48, 49
    sBg = 76
    sE0, sE1 = 64, 66
    sCnt, sI0, sMask = 84, 85, 86
    sAd, sAo = 88, 90
    sXo, sSpin, sOne = 92, 93, 98
    sPtr = 64
    vLane, vL16, vL8, vTag = 1, 2, 3, 4
    vRA = [6, 7]; vRB = [9, 10]; vRP = [12, 13]; vBA, vBB = 8, 11; vL16b = 15
    vD1 = [16, 17, 18, 19]; vD2 = [20, 21, 22, 23]
    vF, vRet, vXo, vPF, vFo = 24, 26, 27, 28, 29
    vRs, vSd = 0, 61
    vC1, vS2, vQs = 28, 29, 30
    CM, DT, AI = 24, 40, 184
    T = 32
    vDB = [56, 57, 58, 59]
    vX = [56, 57, 58, 59]; vBT = 60; vXR = 44; vSt = 48
    ACA, ACB = 64, 128
    def Xr(s_): return v(192 + 4 * s_, 4) if s_ < 16 else a(192 + 4 * (s_ - 16), 4)
    def Xraw(s_): return 192 + 4 * s_ if s_ < 16 else 128 + 4 * (s_ - 16)
    nst = [0]
    def stamp(name, fine=False):
        if not OPT["stamp"] or (fine and not OPT["fine"]): return
        NAMES[nst[0]] = name
        M("s_memtime s[94:95]", "s_waitcnt lgkmcnt(0)"); lg.mark_all()
        A("v_writelane_b32 v63, s94, %d" % nst[0]); nst[0] += 1
    def stamp_flush():
        if not OPT["stamp"]: return
        A("s_waitcnt vmcnt(0)"); stamp("end")
        M("s_memrealtime s[94:95]", "s_waitcnt lgkmcnt(0)", "v_writelane_b32 v63, s94, 63", "v_writelane_b32 v63, s96, 62")
        M("s_lshl_b32 s3, s2, 2", "s_add_u32 s3, s3, s%d" % sW, "s_lshl_b32 s3, s3, 8", "s_add_u32 s3, s3, 0x%x" % STAMP_OFF)
        A("v_lshlrev_b32 v62, 2, v%d" % vLane)
        A("buffer_store_dword v63, v62, s[%d:%d], s3 offen" % (sWS, sWS + 3))

    M("s_cmp_ge_u32 s2, 256", "s_cbranch_scc1 L_end")
    M("s_load_dwordx4 s[4:7], s[0:1], 0", "s_load_dwordx2 s[48:49], s[0:1], 72", "s_load_dwordx4 s[64:67], s[0:1], 32",
      "s_load_dwordx4 s[68:71], s[0:1], 48", "s_load_dwordx2 s[72:73], s[0:1], 16", "s_load_dwordx2 s[74:75], s[0:1], 64")
    sPC = 46
    if OPT["pf_code"]:
        M("s_getpc_b64 s[100:101]")
        A.label("L_pc")
        M("v_and_b32 v%d, 63, v0" % vLane, "s_lshr_b32 s3, s2, 3", "s_lshl_b32 s3, s3, 11", "s_sub_u32 s3, s3, 6144", "v_lshlrev_b32 v6, 7, v%d" % vLane,
          "v_cmp_lt_u32 vcc, 47, v%d" % vLane, "v_mov_b32 v7, s3", "v_mov_b32 v9, s101", "v_cndmask_b32 v7, 0, v7, vcc", "v_add_u32 v6, v6, v7",
          "v_min_u32 v6, CODE_SPAN, v6", "v_add_co_u32 v8, vcc, s100, v6", "v_addc_co_u32 v9, vcc, 0, v9, vcc", "v_cmp_gt_u32 vcc, 64, v0", "s_and_saveexec_b64 s[88:89], vcc",
          "s_cbranch_execz L_pf0")
        A("global_load_dword v%d, v[8:9], off" % vXo)
        A.label("L_pf0")
        A("s_mov_b64 exec, -1")
        vm.ops.append("?pfc")
    if OPT["stamp"]:
        M("s_memrealtime s[96:97]", "v_mov_b32 v63, 0"); stamp("t0")
    M("v_lshrrev_b32 v3, 6, v0", "v_and_b32 v%d, 63, v0" % vLane, "v_readfirstlane_b32 s%d, v3" % sW)
    M("s_and_b32 s3, s2, 7", "s_lshr_b32 s%d, s2, 3" % sIdx)
    M("s_and_b32 s%d, s3, 1" % sRB, "s_lshl_b32 s%d, s%d, 3" % (sRB, sRB), "s_and_b32 s%d, s%d, 7" % (sTmp, sIdx), "s_add_u32 s%d, s%d, s%d" % (sRB, sRB, sTmp))
    A("s_lshr_b32 s%d, s%d, 3" % (sTy, sIdx))
    if OPT["rot"] == 2: M("s_add_u32 s%d, s%d, s%d" % (sROT, sRB, sTy), "s_and_b32 s%d, s%d, 3" % (sROT, sROT))
    elif OPT["rot"]: A("s_and_b32 s%d, s%d, 3" % (sROT, sRB))
    else: A("s_mov_b32 s%d, 0" % sROT)
    M("s_lshl_b32 s%d, s%d, 2" % (sBLK, sRB), "s_add_u32 s%d, s%d, s%d" % (sBLK, sBLK, sW))
    M("v_lshrrev_b32 v6, 3, v%d" % vLane, "v_and_b32 v7, 7, v%d" % vLane, "v_lshrrev_b32 v8, 4, v%d" % vLane,
      "v_xor_b32 v7, v7, v8", "v_lshlrev_b32 v7, 4, v7", "v_lshl_add_u32 v%d, v6, 10, v7" % vX[0],
      "v_xor_b32 v%d, 64, v%d" % (vX[1], vX[0]), "v_add_u32 v%d, 7168, v%d" % (vX[1], vX[1]),
      "v_add_u32 v%d, 14336, v%d" % (vX[2], vX[0]), "v_add_u32 v%d, 14336, v%d" % (vX[3], vX[1]))
    sXrow, sXlds, sXrot = 76, 77, 78
    M("s_lshl_b32 s%d, s%d, 15" % (sXrow, sBLK), "s_lshl_b32 s%d, s%d, 15" % (sXlds, sW), "s_add_u32 s%d, s%d, 32768" % (sXlds, sXlds),
      "s_lshl_b32 s%d, s%d, 8" % (sXrot, sROT), "s_waitcnt lgkmcnt(0)")
    srd(sXS, 4, 2048 * 1024)
    xl = []
    for c in range(8):
        for rq in range(4):
            def f(c=c, rq=rq):
                if rq == 0:
                    M("s_add_u32 m0, s%d, %d" % (sXlds, c * 4096), "s_add_u32 s79, s%d, %d" % (sXrot, c * 128), "s_and_b32 s79, s79, 1023", "s_add_u32 s79, s79, s%d" % sXrow)
                vm.issue("buffer_load_dwordx4 v%d, s[%d:%d], s79 offen offset:%d lds" % (vX[rq], sXS, sXS + 3, rq * 1024), "x%d" % c)
            xl.append(f)
    if OPT.get("xst"): stamp("pre")
    for _ in range(OPT["pro_first"]): xl.pop(0)()
    for e in range(OPT["xpf"]):
        M("s_lshl_b32 s79, s%d, 7" % sTy, "s_add_u32 s79, s79, s%d" % sXrot, "s_add_u32 s79, s79, %d" % ((OPT["pro_first"] // 4 + 4 * e) * 128), "s_and_b32 s79, s79, 1023", "s_add_u32 s79, s79, s%d" % sXrow)
        for rq in range(4): vm.issue("buffer_load_dword v60, v%d, s[%d:%d], s79 offen offset:%d" % (vX[rq], sXS, sXS + 3, rq * 1024), "xpf")
    if OPT.get("xst"): stamp("iss")

    SB = []
    def blk(f): SB.append(f); return f
    @blk
    def _():
        if OPT["wsoff"]: M("s_add_u32 s48, s48, 0x%x" % (OPT["wsoff"] << 20), "s_addc_u32 s49, s49, 0")
        srd(sWQ, 6, 512 * 3072); srd(sWS, 48, WS_BYTES)
        M("s_lshr_b32 s%d, s3, 1" % sP, "s_lshl_b32 s%d, s%d, 1" % (sIQ, sP), "s_lshl_b32 s%d, s%d, 2" % (sP, sP), "s_add_u32 s%d, s%d, s%d" % (sP, sP, sTy),
          "s_and_b32 s4, s%d, 1" % sTy, "s_add_u32 s%d, s%d, s4" % (sIQ, sIQ), "s_lshr_b32 s%d, s%d, 1" % (sTy, sTy),
          "s_and_b32 s4, s3, 1", "s_lshl_b32 s4, s4, 4", "s_lshr_b32 s%d, s3, 1" % sR, "s_lshl_b32 s%d, s%d, 2" % (sR, sR), "s_add_u32 s%d, s%d, s4" % (sR, sR),
          "s_and_b32 s4, s%d, 3" % sIdx, "s_add_u32 s%d, s%d, s4" % (sR, sR), "s_lshr_b32 s%d, s%d, 2" % (sC2, sIdx))
    @blk
    def _():
        M("s_cmp_ge_u32 s%d, 2" % sW, "s_cselect_b32 s%d, s66, s64" % sGU, "s_cselect_b32 s%d, s67, s65" % (sGU + 1),
          "s_mov_b32 s%d, %d" % (sGU + 2, 512 * 3584), "s_mov_b32 s%d, 0x20000" % (sGU + 3))
        srd(sDN, 68, 1792 * 1024); srd(sWO, 72, 512 * 1024)
        srd(sOUT, 70, 2048 * 1024); srd(sDBG, 74, 256)
    @blk
    def _():
        M("s_and_b32 s5, s%d, 1" % sW, "s_lshr_b32 s6, s%d, 1" % sW, "s_lshl_b32 s7, s%d, 7" % sIQ)
        M("s_mul_i32 s3, s%d, 320" % sIQ, "s_add_u32 s3, s3, 1024", "s_and_b32 s4, s%d, 1" % sIQ, "s_lshl_b32 s4, s4, 6", "s_add_u32 s%d, s3, s4" % sHa,
          "s_add_u32 s%d, s%d, 128" % (sHb, sHa), "s_lshl_b32 s4, s4, 2", "s_sub_u32 s4, 256, s4", "s_add_u32 s%d, s3, s4" % sH1,
          "s_cmp_eq_u32 s%d, 0" % sTy, "s_cselect_b32 s%d, s7, s%d" % (sHa, sHa))
        for t in range(4):
            M("s_add_u32 s4, s%d, %d" % (sROT, t), "s_and_b32 s4, s4, 3", "s_mul_i32 s%d, s4, %d" % (sKq + t, 128 * 3072), "s_mul_i32 s%d, s4, %d" % (sKg + t, 128 * 3584))
    @blk
    def _():
        M("s_mul_i32 s%d, s5, %d" % (sQb, 64 * 3072), "s_add_u32 s%d, s%d, s7" % (sQb, sQb),
          "s_lshl_b32 s3, s6, 10", "s_add_u32 s%d, s%d, s3" % (sKVb, sQb), "s_add_u32 s%d, s%d, 1024" % (sKVb, sKVb),
          "s_mul_i32 s3, s5, %d" % (64 * 3584), "s_add_u32 s%d, s3, s%d" % (sGa, sHa), "s_add_u32 s%d, s3, s%d" % (sGb, sHb), "s_mov_b32 s%d, s%d" % (sG1, sH1))
    @blk
    def _():
        A("s_mov_b32 s4, 0x%x" % EOFF)
        vm.issue("buffer_load_dwordx2 %s, off, s[%d:%d], s4 sc1" % (v(vTag, 2), sWS, sWS + 3), "ep")
    @blk
    def _():
        M("v_and_b32 v40, 31, v%d" % vLane, "v_lshrrev_b32 v41, 5, v%d" % vLane, "v_bfe_u32 v42, v40, 1, 3", "v_xor_b32 v42, v42, v41",
          "v_lshlrev_b32 v42, 4, v42", "v_lshl_add_u32 v42, v40, 7, v42", "v_add_u32 v%d, s%d, v42" % (vXR, sXlds))
        for b in range(1, 4): A("v_xor_b32 v%d, %d, v%d" % (vXR + b, b << 5, vXR))
    @blk
    def _():
        for i in range(8): A("v_mov_b32 v%d, 0" % (vSt + i))
        M("s_mov_b32 s%d, 0x3f803f80" % sOne, "s_mov_b32 s%d, 0xffff0000" % sMsk, "s_lshl_b32 s%d, s%d, 13" % (sLW, sW))
    @blk
    def _():
        M("v_lshrrev_b32 v40, 3, v%d" % vLane, "v_and_b32 v41, 7, v%d" % vLane, "v_bfe_u32 v42, v%d, 4, 1" % vLane, "v_lshlrev_b32 v42, 2, v42",
          "v_xor_b32 v41, v41, v42", "v_lshlrev_b32 v41, 4, v41", "v_mul_u32_u24 v42, 3584, v40", "v_add_u32 v%d, v42, v41" % vD2[0],
          "v_mul_u32_u24 v42, 3072, v40", "v_add_u32 v43, v42, v41", "v_lshl_add_u32 v61, v40, 10, v41")
    @blk
    def _():
        M("v_lshrrev_b32 v40, 2, v%d" % vLane, "v_and_b32 v41, 3, v%d" % vLane, "v_lshlrev_b32 v41, 4, v41", "v_mul_u32_u24 v42, 3584, v40", "v_add_u32 v42, v42, v41",
          "s_cmp_eq_u32 s%d, 0" % sTy, "s_cselect_b64 vcc, -1, 0", "s_mov_b32 s4, %d" % (8 * 3072 - 1024), "s_cselect_b32 s4, s4, %d" % (16 * 3584 - 1024),
          "v_cndmask_b32 v%d, v42, v43, vcc" % vD1[0])
        for j in range(1, 4):
            M("v_add_u32 v%d, s4, v%d" % (vD1[j], vD1[j - 1]), "v_add_u32 v%d, %d, v%d" % (vD2[j], j * (8 * 3584 - 1024), vD2[0]))
    NCRIT = len(SB)
    @blk
    def _():
        M("v_lshlrev_b32 v%d, 4, v%d" % (vL16, vLane), "v_lshlrev_b32 v%d, 3, v%d" % (vL8, vLane), "s_nop 0")
        M("s_cmp_eq_u32 s%d, 0" % sTy, "s_cselect_b32 s3, s6, s5", "s_mov_b32 s7, %d" % (128 * 3072), "s_cselect_b32 s7, s7, %d" % (128 * 3584), "s_add_u32 s3, s3, s%d" % sROT)
        for t in range(2): M("s_add_u32 s4, s3, %d" % (2 * t), "s_and_b32 s4, s4, 3", "s_mul_i32 s%d, s4, s7" % (sK2 + t))
    @blk
    def _():
        M("v_lshrrev_b32 v40, 5, v%d" % vLane, "v_bfe_u32 v41, v%d, 2, 2" % vLane, "v_lshl_add_u32 v42, v40, 3, v41", "v_lshl_add_u32 v39, v40, 2, v41",
          "v_bfe_u32 v43, v%d, 4, 1" % vLane, "v_lshlrev_b32 v43, 5, v43", "v_and_b32 v38, 3, v%d" % vLane, "v_lshl_add_u32 v43, v38, 3, v43",
          "v_lshl_add_u32 v%d, v39, 6, v43" % vRP[0])
    @blk
    def _():
        M("v_bfe_u32 v38, v41, 1, 1", "v_lshl_add_u32 v43, v38, 6, v43", "v_lshl_add_u32 v%d, v39, 7, v43" % vRA[0], "v_xor_b32 v%d, 64, v%d" % (vRB[0], vRA[0]))
        for R in (vRA, vRB, vRP): A("v_add_u32 v%d, 0x10000, v%d" % (R[1], R[0]))
        M("s_add_u32 s%d, s%d, 131072" % (sStg, sLW), "v_lshl_add_u32 v%d, v39, 7, v43" % vBA, "v_add_u32 v%d, s%d, v%d" % (vBA, sStg, vBA), "v_xor_b32 v%d, 64, v%d" % (vBB, vBA))
    @blk
    def _():
        A("s_mul_i32 s3, s%d, %d" % (sBLK, 144 * 1024))
        for sr in (sHa, sHb, sH1): M("s_lshl_b32 s%d, s%d, 5" % (sr, sr), "s_add_u32 s%d, s%d, s3" % (sr, sr))
        M("s_lshl_b32 s%d, s%d, 7" % (sBd, sC2), "s_lshl_b32 s%d, s%d, 17" % (sBo, sW), "s_add_u32 s%d, s%d, s%d" % (sBo, sBo, sBd))
    @blk
    def _():
        M("s_add_u32 s3, s%d, s%d" % (sC2, sR), "s_and_b32 s4, s3, 1", "s_mul_i32 s4, s4, 12", "s_mul_i32 s7, s%d, 20" % sW, "s_add_u32 s7, s7, 32",
          "s_add_u32 s%d, s7, s4" % sPk0, "s_sub_u32 s4, 12, s4", "s_add_u32 s4, s4, s7", "s_lshl_b32 s4, s4, 8", "s_or_b32 s%d, s%d, s4" % (sPk0, sPk0),
          "s_mul_i32 s%d, s%d, 0x10001" % (sPk0, sPk0), "s_add_u32 s%d, s%d, 0x04040000" % (sPk0, sPk0))
        M("s_mul_i32 s4, s3, 171", "s_lshr_b32 s4, s4, 9", "s_mul_i32 s4, s4, 3", "s_sub_u32 s3, s3, s4", "s_lshl_b32 s3, s3, 3",
          "s_add_u32 s7, s7, 8", "s_lshl_b32 s7, s7, 16", "s_mul_i32 s4, s%d, 0x808" % sW, "s_add_u32 s4, s4, 0x400", "s_or_b32 s7, s7, s4",
          "s_lshr_b32 s4, s7, s3", "s_sub_u32 s3, 24, s3", "s_lshl_b32 s7, s7, s3", "s_or_b32 s%d, s4, s7" % sPk1)
    @blk
    def _():
        M("v_and_b32 v32, 31, v%d" % vLane, "v_lshrrev_b32 v33, 5, v%d" % vLane, "v_lshlrev_b32 v33, 3, v33", "v_sub_u32 v32, v32, v33",
          "v_and_b32 v33, 1, v32", "v_lshlrev_b32 v33, 4, v33", "v_mov_b32 v34, 0x3f80", "v_lshlrev_b32 v33, v33, v34", "v_ashrrev_i32 v32, 1, v32")
        for j in range(8):
            jj = j if j < 4 else j + 4
            M("v_cmp_eq_u32 s[%d:%d], %d, v32" % (88 + 2 * (j % 2), 89 + 2 * (j % 2), jj))
            if j: M("v_cndmask_b32 v34, 0, v33, s[%d:%d]" % (88 + 2 * ((j - 1) % 2), 89 + 2 * ((j - 1) % 2)), "v_accvgpr_write_b32 a%d, v34" % (AI + j - 1))
        M("s_nop 0", "v_cndmask_b32 v34, 0, v33, s[90:91]", "v_accvgpr_write_b32 a%d, v34" % (AI + 7))
    def grp_base(dst, g):
        A("s_bfe_u32 s%d, s%d, 0x%x" % (dst, sPk0 if g < 4 else sPk1, (8 << 16) | (8 * (g % 4))))
    order = [0, 1, 2, 3, 6, 7, 8]
    for i in order: SB[i]()
    late = [f for i, f in enumerate(SB) if i not in order]

    def dma_stage(kind, t, slot, tag, mixed=False):
        res = []
        for i in range(8):
            grp, j = i // 4, i % 4
            def f(grp=grp, j=j):
                if kind == "KV": base, sk, add, srd_, vd = sKVb, sKq + t, 32 * 3072, sWQ, vD1
                elif kind == "Q": base, sk, add, srd_, vd = sQb, sK2 + t, 32 * 3072, sWQ, vD1
                elif kind == "Pa": base, sk, add, srd_, vd = sGa, sKg + t, 32 * 3584, sGU, vD2
                elif kind == "Pb": base, sk, add, srd_, vd = sGb, sKg + t, 32 * 3584, sGU, vD2
                elif kind == "P1": base, sk, add, srd_, vd = sG1, sK2 + t, 64 * 3584, sGU, vD1
                if tag == "s0" and OPT["s0swap"]:
                    if j == 0:
                        M("s_lshr_b32 s90, s%d, 2" % sRB, "s_and_b32 s90, s90, 1", "s_xor_b32 s90, s90, %d" % grp, "s_lshl_b32 s91, s90, 12", "s_add_u32 m0, s%d, s91" % sLW,
                          "s_mul_i32 s90, s90, %d" % add, "s_add_u32 s%d, s%d, s%d" % (sTmp, base, sk), "s_add_u32 s%d, s%d, s90" % (sTmp, sTmp))
                elif j == 0 or mixed:
                    A("s_add_u32 m0, s%d, %d" % (sLW, slot * 32768 + grp * 4096))
                if j == 0 and not (tag == "s0" and OPT["s0swap"]):
                    if grp == 0: A("s_add_u32 s%d, s%d, s%d" % (sTmp, base, sk))
                    else: A("s_add_u32 s%d, s%d, %d" % (sTmp, sTmp, add))
                vm.issue("buffer_load_dwordx4 v%d, s[%d:%d], s%d offen offset:%d lds" % (vd[j], srd_, srd_ + 3, sTmp, j * 1024), tag)
            res.append(f)
        return res

    def touch(kind, t):
        base, sk, srd_, st = {"KV": (sKVb, sKq + t, sWQ, 3072), "Q": (sQb, sK2 + t, sWQ, 3072), "Pa": (sGa, sKg + t, sGU, 3584),
                              "Pb": (sGb, sKg + t, sGU, 3584), "P1": (sG1, sK2 + t, sGU, 3584)}[kind]
        def f():
            M("v_mul_u32_u24 v57, %d, v%d" % (st, vLane), "s_add_u32 s4, s%d, s%d" % (base, sk))
            vm.issue("buffer_load_dword v60, v57, s[%d:%d], s4 offen" % (srd_, srd_ + 3), "tch")
            if kind == "P1":
                A("s_add_u32 s4, s4, %d" % (64 * 3584))
                vm.issue("buffer_load_dword v60, v57, s[%d:%d], s4 offen" % (srd_, srd_ + 3), "tch")
        return f
    def quad(kind, t, slot, q):
        res = []
        sb = slot * 32768; bi = sb // 65536; so = sb % 65536
        for j in range(4):
            if kind in ("KV", "Pa", "Pb"):
                res.append((j, 8 * t + q, (vRA if j % 2 == 0 else vRB)[bi], so + (j >> 1) * 16384 + q * 2048, 1024))
            elif kind == "Q":
                kk = 2 * q + (j >> 1)
                res.append((j & 1, 16 * t + kk, (vRA if j % 2 == 0 else vRB)[bi], so + kk * 2048, 1024))
            else:
                kk = 2 * q + (j >> 1)
                res.append((j & 1, 16 * t + kk, vRP[bi], so + (j & 1) * 16384 + kk * 1024, 512))
        return res

    def rd(q4, j, buf, tag):
        _, _, ar, off, d2 = q4[j]
        lg.issue("ds_read_b64_tr_b16 %s, v%d offset:%d" % (a(buf * 16 + j * 4, 2), ar, off), tag)
        lg.issue("ds_read_b64_tr_b16 %s, v%d offset:%d" % (a(buf * 16 + j * 4 + 2, 2), ar, off + d2), tag)

    def store(P, soff, off, tag):
        if OPT.get("nostore") and tag != "sto":
            vm.ops.append("?" + tag); vm.ops.append(tag); vm.ops.pop(); vm.ops[-1] = tag if False else vm.ops[-1]
            A("s_nop 0"); vm.ops[-1] = tag; A("buffer_load_dword v28, off, s[%d:%d], 0" % (sWS, sWS + 3)); return
        vm.issue("buffer_store_dwordx4 %s, v%d, s[%d:%d], s%d offen offset:%d%s" % (v(P, 4), vL16, sWS, sWS + 3, soff, off, SC), tag)

    def I(text, cost=4): return (cost, (lambda t=text: A(t)))
    PK = [T + 8, T + 12]
    def st_swiglu(acc, ncf, uoff, sH, tag):
        els = []
        for cf in range(ncf):
            for i in range(16): els.append((acc + cf * 16 + i, acc + uoff + cf * 16 + i))
        N = len(els); out = []
        ta = lambda e: T + (e % 6)
        for e in range(N + 6):
            if 0 <= e - 1 < N: out.append(I("v_exp_f32 v%d, v%d" % (ta(e - 1), ta(e - 1)), 8))
            if e < N: out.append(I("v_mul_f32 v%d, v%d, v%d" % (ta(e), vC1, els[e][0])))
            if 0 <= e - 2 < N: out.append(I("v_fma_f32 v%d, v%d, v%d, v%d" % (ta(e - 2), ta(e - 2), vS2, vS2)))
            if 0 <= e - 3 < N: out.append(I("v_rcp_f32 v%d, v%d" % (ta(e - 3), ta(e - 3)), 8))
            if 0 <= e - 1 < N: out.append(I("v_mul_f32 v%d, v%d, v%d" % (els[e - 1][1], els[e - 1][0], els[e - 1][1])))
            if 0 <= e - 4 < N: out.append(I("v_mul_f32 v%d, v%d, v%d" % (els[e - 4][1], ta(e - 4), els[e - 4][1])))
            k = e - 5
            if 0 <= k < N and k % 2 == 1:
                fr = k // 8
                out.append(I("v_cvt_pk_bf16_f32 v%d, v%d, v%d" % (PK[fr % 2] + (k % 8) // 2, els[k - 1][1], els[k][1])))
                if k % 8 == 7: out.append((-8, (lambda fr=fr: store(PK[fr % 2], sH, fr * 1024, tag))))
        return out
    def st_kv(acc):
        out = [(2, lambda: M("s_lshl_b32 s%d, s%d, 18" % (sSt, sIQ), "s_lshl_b32 s%d, s%d, 10" % (sSt + 1, sBLK),
                             "s_add_u32 s%d, s%d, s%d" % (sSt + 2, sSt, sSt + 1), "s_add_u32 s%d, s%d, s%d" % (sSt, sSt + 2, sSt + 1)))]
        RT = lambda i: (32 + i) if i < 8 else (40 + i)
        out.append(I("v_lshrrev_b32 v31, 5, v%d" % vLane)); out.append(I("v_lshlrev_b32 v31, 4, v31"))
        for i in range(0, 16, 2):
            def bp(i=i):
                for k in (i, i + 1): lg.issue("ds_bpermute_b32 v%d, v31, v%d offset:%d" % (RT(k), vRs, ((k // 4) * 8 + k % 4) * 4), "rt")
            out.append((-4, bp))
        n = 0
        for f in (0, 1, 2, 3):
            for hf in range(2):
                r0 = acc + f * 16 + hf * 8; P = PK[n % 2]; n += 1
                if f == 2 and hf == 0: out.append((2, lambda: lg.wait("rt")))
                for i in range(8): out.append(I("v_mul_f32 v%d, v%d, v%d" % (r0 + i, vRs if f < 2 else RT(hf * 8 + i), r0 + i)))
                for i in range(4): out.append(I("v_cvt_pk_bf16_f32 v%d, v%d, v%d" % (P + i, r0 + 2 * i, r0 + 2 * i + 1)))
                def g(P=P, f=f, hf=hf):
                    if f < 2:
                        A("s_add_u32 s%d, s%d, 0x%x" % (sSt + 3, sSt + 2, KF + (2 * f + hf) * 65536)); store(P, sSt + 3, 0, "stkv")
                    else:
                        if hf == 0: A("s_add_u32 s%d, s%d, 0x%x" % (sSt + 3, sSt, VF + (f - 2) * 131072))
                        store(P, sSt + 3, hf * 1024, "stkv")
                out.append((-8, g))
        return out
    def st_q(acc):
        out = []; n = 0
        for f in range(2):
            for hf in range(2):
                r0 = acc + f * 16 + hf * 8; P = PK[n % 2]; n += 1
                for i in range(8): out.append(I("v_mul_f32 v%d, v%d, v%d" % (r0 + i, vQs, r0 + i)))
                for i in range(4): out.append(I("v_cvt_pk_bf16_f32 v%d, v%d, v%d" % (P + i, r0 + 2 * i, r0 + 2 * i + 1)))
                def g(P=P, f=f, hf=hf):
                    A("s_add_u32 s%d, s%d, 0x%x" % (sSt + 3, sSt + 2, QF + (2 * f + hf) * 65536)); store(P, sSt + 3, 0, "stq")
                out.append((-8, g))
        return out
    def ctr_mfma(p, k):
        A("%s %s, %s, %s, %s" % (MF, v(DT, 16), a(AI + 4 * k, 4), v(Xraw(2 * p + k), 4), v(CM, 16) if k == 0 else v(DT, 16)))
    def ctr_cvt(p):
        out = []
        x = Xraw(2 * p)
        for i in range(8): out.append(I("v_cvt_pk_bf16_f32 v%d, v%d, v%d" % (x + i, DT + 2 * i, DT + 2 * i + 1)))
        if p >= 8:
            acc = [I("v_accvgpr_write_b32 a%d, v%d" % (192 + 8 * (p - 8) + i, x + i)) for i in range(8)]
            out = out[:4] + [acc[0], out[4], acc[1], out[5], acc[2], out[6], acc[3], out[7]]
            lagq.extend(acc[4:])
        return out
    lagq = []

    def code_touch(sym, nl):
        def f():
            if not OPT["pf_code"]: return
            L = A.newlabel("L_ct")
            M("s_cmp_lg_u32 s%d, 0" % sW, "s_cbranch_scc1 %s" % L,
              "s_and_b32 s3, s%d, 15" % sIdx, "s_mul_i32 s3, s3, %d" % (nl * 128), "s_add_u32 s3, s3, OFF_%s" % sym,
              "v_lshlrev_b32 v14, 7, v%d" % vLane, "v_add_u32 v14, s3, v14", "v_min_u32 v14, CODE_SPAN, v14", "v_mov_b32 v15, s101",
              "v_add_co_u32 v14, vcc, s100, v14", "v_addc_co_u32 v15, vcc, 0, v15, vcc", "s_mov_b64 exec, %d" % ((1 << nl) - 1))
            A("global_load_dword v60, v[14:15], off")
            A("s_mov_b64 exec, -1")
            A.label(L)
            vm.ops.append("?ct")
        return f
    def publish(soff):
        A("s_mov_b64 exec, 1")
        vm.issue("buffer_store_dwordx2 %s, v%d, s[%d:%d], s%d offen%s" % (v(vTag, 2), vL16, sWS, sWS + 3, soff, SC), "?flag")
        A("s_mov_b64 exec, -1")
    def poll_issue(voff, soff, tag, vF=vF):
        vm.issue("buffer_load_dwordx2 %s, v%d, s[%d:%d], s%d offen sc1" % (v(vF, 2), voff, sWS, sWS + 3, soff), tag)
    def poll_check(voff, soff, tag, vF=vF):
        L = A.newlabel("L_poll"); D = A.newlabel("L_polld")
        chk = ["v_cmp_eq_u64 vcc, %s, %s" % (v(vF, 2), v(vTag, 2)), "s_and_b64 vcc, vcc, s[%d:%d]" % (sMask, sMask + 1),
               "s_cmp_eq_u64 vcc, s[%d:%d]" % (sMask, sMask + 1), "s_cbranch_scc1 %s" % D]
        stamp("pre_" + tag, True)
        vm.wait(tag)
        stamp("vm_" + tag, True)
        M(*chk)
        A("s_mov_b32 s%d, 0x20000" % sSpin)
        A.label(L)
        A("buffer_load_dwordx2 %s, v%d, s[%d:%d], s%d offen sc1" % (v(vF, 2), voff, sWS, sWS + 3, soff))
        A("s_waitcnt vmcnt(0)")
        M(*chk)
        M("s_sub_u32 s%d, s%d, 1" % (sSpin, sSpin), "s_cmp_lg_u32 s%d, 0" % sSpin, "s_cbranch_scc1 %s" % L)
        A.label(D)
        stamp("ok_" + tag, True)

    def Breg(p, cf):
        if p < 28: return a(32 + p * 8 + cf * 4, 4)
        return a(((p - 28) % 2) * 8 + cf * 4, 4)
    def b2_dma(n):
        res = []
        for j in range(4):
            def f(j=j):
                if j == 0:
                    if n >= 2: lg.wait("b2r%d" % (n - 2))
                    A("s_add_u32 m0, s%d, %d" % (sStg, (n % 2) * 4096))
                    if n % 2 == 0:
                        grp_base(sBg, n // 2)
                        M("s_lshl_b32 s%d, s%d, 14" % (sBg, sBg), "s_add_u32 s%d, s%d, s%d" % (sBg, sBg, sBd))
                    else: A("s_add_u32 s%d, s%d, 32768" % (sBg, sBg))
                vm.issue("buffer_load_dwordx4 v%d, s[%d:%d], s%d offen offset:%d lds" % (vDB[j], sDN, sDN + 3, sBg, j * 1024), "b2d%d" % n)
            res.append(f)
        return res
    def b2_read(n):
        res = []
        for kk in range(2):
            for cf in range(2):
                def f(kk=kk, cf=cf):
                    if kk == 0 and cf == 0: vm.wait("b2d%d" % n)
                    R = vBA if cf == 0 else vBB
                    d = 32 + (2 * n + kk) * 8 + cf * 4
                    off = (n % 2) * 4096 + kk * 2048
                    lg.issue("ds_read_b64_tr_b16 %s, v%d offset:%d" % (a(d, 2), R, off), "b2r%d" % n)
                    lg.issue("ds_read_b64_tr_b16 %s, v%d offset:%d" % (a(d + 2, 2), R, off + 1024), "b2r%d" % n)
                res.append(f)
        return res
    sWl = 73
    def wo2():
        A("s_mov_b32 m0, s%d" % sWl)
        A("s_add_u32 s%d, s%d, 2048" % (sWl, sWl))
        vm.issue("buffer_load_dwordx4 v%d, s[%d:%d], s%d offen lds" % (vDB[0], sWO, sWO + 3, sTmp), "wo")
        vm.issue("buffer_load_dwordx4 v%d, s[%d:%d], s%d offen offset:1024 lds" % (vDB[1], sWO, sWO + 3, sTmp), "wo")
        A("s_add_u32 s%d, s%d, 16384" % (sTmp, sTmp))

    KVB = 65536
    def kv_dma():
        res = []
        def pre():
            M("s_lshl_b32 s3, s%d, 17" % sP, "s_lshl_b32 s4, s%d, 12" % sRB, "s_lshl_b32 s5, s%d, 16" % sW, "s_add_u32 s5, s5, s4", "s_add_u32 s5, s5, 0x%x" % (KF - 8192),
              "s_lshl_b32 s6, s4, 1", "s_mul_i32 s7, s%d, 12288" % sW, "s_add_u32 s6, s6, s7", "s_add_u32 s6, s6, 0x%x" % (VF - 16384 - 24576),
              "s_cmp_ge_u32 s%d, 2" % sW, "s_cselect_b32 s5, s6, s5", "s_add_u32 s5, s5, s3")
        res.append(pre)
        for i in range(12):
            def f(i=i):
                if i % 4 == 0: M("s_add_u32 m0, s7, %d" % (KVB + i * 1024), "s_add_u32 s6, s5, %d" % (i * 1024))
                vm.issue("buffer_load_dwordx4 v%d, s[%d:%d], s6 offen offset:%d%s lds" % (vL16, sWS, sWS + 3, (i % 4) * 1024, SC), "kv")
            res.append(f)
        return res

    Q0, Q1, K0, K1_ = 192, 196, 200, 204
    V0, V1 = 208, 216
    P = 224
    S0, S1, O0, O1, MD, ME = 128, 144, 160, 176, 232, 64

    def bulk():
        res = []
        if not OPT["bulk"]: return res
        def f0():
            M("s_lshl_b32 s3, s2, 2", "s_add_u32 s3, s3, s%d" % sW, "s_mul_i32 s4, s3, 1536", "s_and_b32 s5, s%d, 1" % sW, "s_lshl_b32 s6, s2, 1", "s_add_u32 s6, s6, s5", "s_mul_i32 s6, s6, 3584")
            vm.issue("buffer_load_dword v60, v%d, s[%d:%d], s4 offen" % (vL16, sWQ, sWQ + 3), "bulk")
        res.append(f0)
        res.append(lambda: (A("s_mov_b32 exec_hi, 0"), vm.issue("buffer_load_dword v60, v%d, s[%d:%d], s4 offen offset:1024" % (vL16, sWQ, sWQ + 3), "bulk"), A("s_mov_b32 exec_hi, -1")))
        for j in range(3):
            res.append(lambda j=j: vm.issue("buffer_load_dword v60, v%d, s[%d:%d], s6 offen offset:%d" % (vL16, sGU, sGU + 3, j * 1024), "bulk"))
        res.append(lambda: (A("s_mov_b32 exec_hi, 0"), vm.issue("buffer_load_dword v60, v%d, s[%d:%d], s6 offen offset:3072" % (vL16, sGU, sGU + 3), "bulk"), A("s_mov_b32 exec_hi, -1")))
        if OPT["bulkb"] == 1:
            def g0():
                M("s_mul_i32 s4, s3, 1792", "s_lshl_b32 s5, s3, 9")
                vm.issue("buffer_load_dword v60, v%d, s[%d:%d], s4 offen" % (vL16, sDN, sDN + 3), "bulk")
            res.append(g0)
            res.append(lambda: vm.issue("buffer_load_dword v60, v%d, s[%d:%d], s4 offen offset:768" % (vL16, sDN, sDN + 3), "bulk"))
            res.append(lambda: (A("s_mov_b32 exec_hi, 0"), vm.issue("buffer_load_dword v60, v%d, s[%d:%d], s5 offen" % (vL16, sWO, sWO + 3), "bulk"), A("s_mov_b32 exec_hi, -1")))
        return res

    def stats(stage0, stages):
        if OPT["t0"]:
            M("v_mov_b32 v61, v57") if False else None
        if OPT["t0"]:
            kind, t = stages[0]
            base, sk, srd_, st = {"KV": (sKVb, sKq + t, sWQ, 3072), "Pa": (sGa, sKg + t, sGU, 3584)}[kind]
            M("v_mul_u32_u24 v38, %d, v%d" % (st, vLane), "s_add_u32 s4, s%d, s%d" % (base, sk))
            vm.issue("buffer_load_dword v60, v38, s[%d:%d], s4 offen" % (srd_, srd_ + 3), "tch")
        if OPT["bulk"] == 3:
            A("v_lshlrev_b32 v%d, 4, v%d" % (vL16, vLane))
            M("s_mov_b32 s90, s5", "s_mov_b32 s91, s6")
            for f in bulk(): f()
            M("s_mov_b32 s5, s90", "s_mov_b32 s6, s91")
        n0 = OPT["s0first"]
        for f in stage0[:n0]: f()
        for f in late: f()
        stamp("setup")
        rest = list(xl) + stage0[n0:] + (bulk() if OPT["bulk"] == 1 else [])
        for _ in range(OPT["xahead"]): rest.pop(0)()
        def rdx(c):
            vm.wait("x%d" % c)
            if OPT.get("xst"): stamp("x%d" % c)
            for sp in range(4):
                lg.issue("ds_read_b128 %s, v%d offset:%d" % (v(Xraw(4 * c + sp), 4), vXR + sp, c * 4096), "xr%d" % c)
        rdx(0)
        for c in range(8):
            for _ in range(4 if c < 4 else 2):
                if rest: rest.pop(0)()
            if c + 1 < 8: rdx(c + 1)
            lg.wait("xr%d" % c)
            for i in range(16):
                x = Xraw(4 * c) + i
                A("v_dot2_f32_bf16 v%d, v%d, s%d, v%d" % (vSt + i % 4, x, sOne, vSt + i % 4))
                A("v_dot2_f32_bf16 v%d, v%d, v%d, v%d" % (vSt + 4 + i % 4, x, x, vSt + 4 + i % 4))
                if i == 7 and c >= 4:
                    for _ in range(2):
                        if rest: rest.pop(0)()
        while rest: rest.pop(0)()
        stamp("stats")
        vm.wait("ep")
        A("s_barrier")

    def ln_scalar(dm):
        M("s_mov_b32 s4, 0x9e3779b9", "v_add_co_u32 v%d, vcc, 0x7f4a7c15, v%d" % (vTag, vTag), "v_mov_b32 v40, s4")
        seq = ["v_add_f32 v48, v48, v49", "v_add_f32 v50, v50, v51", "v_addc_co_u32 v%d, vcc, v40, v%d, vcc" % (vTag + 1, vTag + 1),
               "v_add_f32 v52, v52, v53", "v_add_f32 v54, v54, v55",
               "v_add_f32 v48, v48, v50", "v_add_f32 v52, v52, v54",
               "v_mov_b32 v49, v48", "v_mov_b32 v53, v52", None,
               "v_permlane32_swap_b32 v48, v49", "v_permlane32_swap_b32 v52, v53",
               "v_add_f32 v48, v48, v49", "v_add_f32 v52, v52, v53",
               "v_mul_f32 v48, %s, v48" % f32(1.0 / 512), "v_mul_f32 v52, %s, v52" % f32(1.0 / 512),
               "v_fma_f32 v52, -v48, v48, v52", "v_max_f32 v52, 0, v52",
               "v_cvt_pk_bf16_f32 v48, v48, v52",
               "v_and_b32 v52, 0xffff0000, v48", "v_lshlrev_b32 v48, 16, v48",
               "v_add_f32 v52, %s, v52" % f32(1e-5),
               "v_cvt_pk_bf16_f32 v52, v52, v52", "v_and_b32 v52, 0xffff0000, v52",
               "v_sqrt_f32 v52, v52", None,
               "v_cvt_pk_bf16_f32 v52, v52, v52", "v_and_b32 v%d, 0xffff0000, v52" % vSd,
               "v_rcp_f32 v%d, v%d" % (vRs, vSd)]
        k_ = seq.index("v_add_f32 v52, %s, v52" % f32(1e-5))
        seq[k_:k_] = ["v_xor_b32 v%d, 0x80000000, v48" % CM]
        fillm = ["v_mov_b32 v%d, v%d" % (CM + i, CM) for i in range(1, 16)]
        tailseq = seq[k_ + 1:]; seq = seq[:k_ + 1]
        for x_ in tailseq:
            seq.append(x_); seq += fillm[:2]; fillm = fillm[2:]
        seq += fillm
        for s_ in seq:
            if s_ is None:
                if dm: dm.pop(0)()
            else: A(s_)

    tyn = [0]
    B2PLAN = [[[0], [1], [2], [3], [4], [5], [6], [7, 8], [9, 10], [11]],
              [[0], [1], [2], [3], [4], [5], [6], [7], [8, 9], [10, 11]],
              [[0], [1], [2], [3], [4, 5], [6, 7], [8], [9], [10], [11]],
              [[], [0], [1], [2], [3], [4, 5], [6, 7], [8], [9, 10], [11]]][OPT["plan"]]
    def phase1(ty, stages, accs, streams, tail):
        tyn[0] = ty
        stats(dma_stage(stages[0][0], stages[0][1], 0, "s0"), stages)
        M("s_and_b32 s4, s%d, 1" % sW, "s_lshl_b32 s4, s4, 6", "v_xor_b32 v%d, s4, v%d" % (vBA, vBA), "v_xor_b32 v%d, s4, v%d" % (vBB, vBB))
        dm = []
        for sidx in range(1, 4): dm += dma_stage(stages[sidx][0], stages[sidx][1], sidx, "s%d" % sidx)
        if OPT["bulk"] == 2: dm = dm[:8] + bulk() + dm[8:]
        if OPT["t1"]:
            firsts = [st_ for i_, st_ in enumerate(stages) if i_ > 0 and st_[1] == 0]
            dm = dm[:OPT["t1"] - 1] + [touch(*x_) for x_ in firsts] + dm[OPT["t1"] - 1:]
        for j in range(1, 4): A("v_add_u32 v%d, %d, v61" % (vDB[j], j * 7168))
        A("v_mov_b32 v%d, v61" % vDB[0])
        hold = []
        if not OPT["lndma"]: hold, dm = dm, []
        ln_scalar(dm)
        ctr_mfma(0, 0); ctr_mfma(0, 1)
        for _ in range(4):
            if dm: dm.pop(0)()
        for c, f in ctr_cvt(0): f()
        stamp("ln")
        vm.wait("s0")
        if OPT.get("xst"): stamp("s0")
        A("s_barrier")
        q4 = quad(stages[0][0], stages[0][1], 0, 0)
        n = 0
        for j in range(4): rd(q4, j, 0, "w%d_%d" % (n, j // 2))
        buf = 0
        wpend = dm + hold
        fill = []; fill_gaps = 0; fill_tot = 0; fill_done = 0; gap = 0
        for sidx, (kind, t) in enumerate(stages):
            slot = sidx % 4
            bx = []
            for n_ in B2PLAN[sidx]: bx += (b2_read(n_ - 2) if n_ >= 2 else []) + b2_dma(n_)
            if len(B2PLAN[sidx]) == 2:
                h_ = len(bx) // 2
                ex = bx[:h_] + list(wpend) + bx[h_:]
            else: ex = bx + list(wpend) if sidx else list(wpend) + bx
            wpend = []
            if OPT["bulkb"] >= 2 and sidx == OPT["bulkb"] - 2:
                def g0():
                    M("s_lshl_b32 s3, s2, 2", "s_add_u32 s3, s3, s%d" % sW, "s_mul_i32 s4, s3, 1792", "s_lshl_b32 s5, s3, 9")
                    vm.issue("buffer_load_dword v60, v%d, s[%d:%d], s4 offen" % (vL16, sDN, sDN + 3), "bulk")
                ex += [g0, lambda: vm.issue("buffer_load_dword v60, v%d, s[%d:%d], s4 offen offset:768" % (vL16, sDN, sDN + 3), "bulk"),
                       lambda: (A("s_mov_b32 exec_hi, 0"), vm.issue("buffer_load_dword v60, v%d, s[%d:%d], s5 offen" % (vL16, sWO, sWO + 3), "bulk"), A("s_mov_b32 exec_hi, -1"))]
            if sidx == 4: A.label("L_mid%d" % ty)
            if sidx == 2: ex.append(code_touch("L_mid%d" % ty, 6))
            if sidx == 7: ex.append(code_touch("L_ATT", 8))
            if sidx == OPT["wopf"]:
                def wp(j):
                    if j == 0: M("s_and_b32 s3, s%d, 3" % sR, "s_lshl_b32 s3, s3, 15", "s_add_u32 s%d, s3, s%d" % (sSpin, sBo), "s_sub_u32 s%d, s%d, 0" % (sSpin, sSpin))
                    vm.issue("buffer_load_dword v60, v%d, s[%d:%d], s%d offen offset:%d" % (vDB[j], sWO, sWO + 3, sSpin, j * 1024), "wopf")
                ex += [(lambda j=j: wp(j)) for j in range(4)]
            if ty == 0 and sidx == 6:
                def pubkv():
                    vm.wait("stkv")
                    M("s_lshl_b32 s3, s%d, 9" % sIQ, "s_lshl_b32 s4, s%d, 3" % sBLK, "s_add_u32 s3, s3, s4", "s_add_u32 s3, s3, 0x%x" % FK)
                    publish(3)
                ex.insert(8, pubkv)
            if ty == 0 and sidx == 8:
                def pubq():
                    vm.wait("stq")
                    M("s_lshl_b32 s3, s%d, 9" % sIQ, "s_lshl_b32 s4, s%d, 3" % sBLK, "s_add_u32 s3, s3, s4", "s_add_u32 s3, s3, 0x%x" % FQ)
                    publish(3)
                ex.insert(0, pubq)
            if ty == 1 and sidx == 8:
                def pube():
                    vm.wait("sta")
                    M("s_lshl_b32 s3, s%d, 7" % sBLK, "s_lshl_b32 s4, s%d, 3" % sP, "s_add_u32 s3, s3, s4", "s_add_u32 s3, s3, 0x%x" % FE)
                    publish(3)
                ex.insert(len(ex) // 2, pube)
            if sidx == OPT["kvst"] - 1:
                def pk():
                    M("s_lshr_b32 s3, s%d, 1" % sP, "s_lshl_b32 s3, s3, 9", "s_lshl_b32 s4, s%d, 5" % sRB, "s_add_u32 s3, s3, s4", "s_add_u32 s%d, s3, 0x%x" % (sFl, FK - 64),
                      "s_lshl_b32 s4, s%d, 2" % sRB, "s_sub_i32 s4, 8, s4", "s_max_i32 s4, s4, 0",
                      "s_lshl_b32 s%d, -1, s4" % sMask, "s_and_b32 s%d, s%d, 0xfff" % (sMask, sMask), "s_mov_b32 s%d, 0" % (sMask + 1))
                    poll_issue(vL8, sFl, "pk")
            if sidx == OPT["kvst"]:
                ex = [lambda: poll_check(vL8, sFl, "pk")] + kv_dma() + ex
            if sidx == OPT["kvst"] - 1: ex.insert(1, pk)
            if sidx == 9:
                def pq():
                    M("s_lshr_b32 s3, s%d, 1" % sP, "s_lshl_b32 s3, s3, 9", "s_lshl_b32 s4, s%d, 3" % sBLK, "s_add_u32 s3, s3, s4", "s_add_u32 s%d, s3, 0x%x" % (sFl, FQ),
                      "s_mov_b32 s%d, 1" % sMask, "s_mov_b32 s%d, 0" % (sMask + 1))
                    poll_issue(vL8, sFl, "pq")
                ex.insert(8, pq)
            if sidx in streams:
                while fill: fill.pop(0)[1]()
                fill, ns = streams[sidx]
                fill = list(fill); fill_gaps = ns * 32 - 6; fill_tot = sum(abs(c) for c, _ in fill); fill_done = 0; gap = -3
            nex = len(ex); exi = 0
            for q in range(8):
                cur = quad(kind, t, slot, q)
                if q == 7:
                    if sidx + 1 < len(stages):
                        vm.wait("s%d" % (sidx + 1)); A("s_barrier")
                        nxt = quad(stages[sidx + 1][0], stages[sidx + 1][1], (sidx + 1) % 4, 0)
                        if sidx >= 1 and sidx + 3 < len(stages):
                            wpend = dma_stage(stages[sidx + 3][0], stages[sidx + 3][1], (sidx + 3) % 4, "s%d" % (sidx + 3))
                    else:
                        nxt = None
                else:
                    nxt = quad(kind, t, slot, q + 1)
                pc = (8 * sidx + q) // 2 + 1
                if q % 2 == 0: lag_now = list(lagq); del lagq[:]
                if sidx < 4 and pc < 16 and q % 2 == 0: cq = ctr_cvt(pc)
                docm = sidx < 4 and pc < 16
                for j in range(4):
                    acc, xi, _, _, _ = cur[j]
                    if j % 2 == 0: lg.wait("w%d_%d" % (n, j // 2))
                    d = v(accs[sidx] + acc * 16, 16)
                    c = d if xi > 0 else "0"
                    wf, xf = a(buf * 16 + j * 4, 4), Xr(xi)
                    if kind == "KV" and acc >= 2: A("%s %s, %s, %s, %s" % (MF, d, xf, wf, c))
                    else: A("%s %s, %s, %s, %s" % (MF, d, wf, xf, c))
                    if nxt is not None: rd(nxt, j, buf ^ 1, "w%d_%d" % (n + 1, j // 2))
                    g_in = q * 4 + j
                    used = 0
                    if fill and fill[0][0] < 0:
                        c_, f = fill.pop(0); f(); fill_done += -c_; used += -c_
                    elif exi < nex and exi * 30 <= g_in * nex:
                        ex[exi](); exi += 1; used += 6
                        while exi < nex and exi * 30 <= (g_in - 2) * nex:
                            ex[exi](); exi += 1; used += 6
                    if q % 2 == 0 and lag_now: lag_now.pop(0)[1]()
                    if docm:
                        g8 = (q % 2) * 4 + j
                        if g8 in (0, 1): ctr_mfma(pc, g8)
                        if g8 >= 4:
                            k = -(-len(cq) // (8 - g8))
                            for _ in range(k): cq.pop(0)[1]()
                    if sidx == 3 and q == 7 and j == 0:
                        M("v_mul_f32 v%d, %s, v%d" % (vC1, f32(-LOG2E), vRs), "v_mul_f32 v%d, v%d, v%d" % (vS2, vSd, vSd), "v_mul_f32 v%d, %s, v%d" % (vQs, f32(0.25 * LOG2E), vRs))
                    gap += 1
                    if fill and gap > 0:
                        lag = fill_tot * gap / fill_gaps - fill_done
                        lim = max(OPT["budget"], fill_tot / fill_gaps + 4)
                        while fill and fill[0][0] > 0 and lag > 0 and (used + fill[0][0] <= lim or lag > 24):
                            c_, f = fill.pop(0); f(); fill_done += c_; used += c_; lag -= c_
                buf ^= 1; n += 1
            while exi < nex: ex[exi](); exi += 1
            stamp("st%d" % sidx, sidx not in (3, 5, 7, 9))
        while fill: fill.pop(0)[1]()
        poll_check(vL8, sFl, "pq")
        M("s_lshl_b32 s3, s%d, 17" % sP, "s_lshl_b32 s4, s%d, 10" % sBLK, "s_add_u32 s4, s4, s3", "s_add_u32 s4, s4, 0x%x" % QF, "s_add_u32 s5, s4, 65536")
        vm.issue("buffer_load_dwordx4 %s, v%d, s[%d:%d], s4 offen%s" % (v(Q0, 4), vL16, sWS, sWS + 3, SC), "q")
        vm.issue("buffer_load_dwordx4 %s, v%d, s[%d:%d], s5 offen%s" % (v(Q1, 4), vL16, sWS, sWS + 3, SC), "q")
        M("s_lshl_b32 s%d, s%d, 8" % (sXo, sR), "s_add_u32 s%d, s%d, 0x%x" % (sXo, sXo, FE))
        poll_issue(vL8, sXo, "pe", 14)
        for f in b2_read(10): f()
        for c_, f in tail: f()
        stamp("tail")

    M("s_cmp_eq_u32 s%d, 0" % sTy, "s_cbranch_scc0 L_HH")
    sv, sl, sn = vm.save(), lg.save(), nst[0]
    phase1(0, [("KV", t) for t in range(4)] + [("Q", t) for t in range(2)] + [("Pa", t) for t in range(4)],
           [ACA] * 4 + [ACB] * 2 + [ACA] * 4,
           {4: (st_kv(ACA), 2), 6: (st_q(ACB), 1)}, st_swiglu(ACA, 2, 32, sHa, "sth"))
    A("s_branch L_ATT")
    A.label("L_HH")
    vm.load(sv); lg.load(sl); nst[0] = sn
    phase1(1, [("Pa", t) for t in range(4)] + [("Pb", t) for t in range(4)] + [("P1", t) for t in range(2)],
           [ACA] * 4 + [ACB] * 4 + [ACA] * 2,
           {4: (st_swiglu(ACA, 2, 32, sHa, "sta"), 4), 8: (st_swiglu(ACB, 2, 32, sHb, "sth"), 2)}, st_swiglu(ACA, 1, 16, sH1, "sth"))
    A.label("L_ATT")
    vKA, vVA = 6, 7
    M("v_and_b32 v40, 31, v%d" % vLane, "v_lshrrev_b32 v41, 5, v%d" % vLane, "v_lshlrev_b32 v41, 2, v41", "v_sub_u32 v40, v40, v41",
      "v_mov_b32 v41, 0xff800000", "v_mov_b32 v42, 0")
    for rg in range(16):
        c = (rg // 4) * 8 + rg % 4
        A("v_cmp_le_i32 s[%d:%d], %d, v40" % (4 + 2 * (rg % 2), 5 + 2 * (rg % 2), c))
        A("v_mov_b32 v%d, 0x3f803f80" % (V0 + rg))
        if rg > 0:
            pr = rg - 1
            A("v_cndmask_b32 v%d, v41, v42, s[%d:%d]" % (MD + pr, 4 + 2 * (pr % 2), 5 + 2 * (pr % 2)))
            A("v_cndmask_b32 v%d, v42, v41, s[%d:%d]" % (ME + pr, 4 + 2 * (pr % 2), 5 + 2 * (pr % 2)))
    M("s_mov_b32 s%d, 0x0000ffff" % sE0, "s_mov_b32 s%d, 0x0000ffff" % (sE0 + 1))
    M("v_cndmask_b32 v%d, v41, v42, s[6:7]" % (MD + 15), "v_cndmask_b32 v%d, v42, v41, s[6:7]" % (ME + 15))
    M("s_mov_b32 s%d, 0xffff0000" % sE1, "s_mov_b32 s%d, 0xffff0000" % (sE1 + 1))
    M("s_sub_i32 s%d, 8, s%d" % (sI0, sBLK), "s_max_i32 s%d, s%d, 0" % (sI0, sI0))
    M("s_add_u32 s4, s%d, s%d" % (sI0, sW), "s_lshl_b32 s5, s4, 10", "s_add_u32 s5, s5, %d" % KVB, "v_add_u32 v%d, s5, v%d" % (vKA, vL16),
      "s_lshl_b32 s5, s4, 11", "s_add_u32 s5, s5, %d" % (KVB + 24576), "v_add_u32 v%d, s5, v%d" % (vVA, vL16),
      "v_mov_b32 v12, v%d" % vKA, "v_mov_b32 v13, v%d" % vVA)
    A("v_mov_b32 v%d, 1" % vRet)
    M("s_lshl_b32 s3, s%d, 7" % sBLK, "s_lshl_b32 s4, s%d, 3" % sP, "s_add_u32 s3, s3, s4", "s_add_u32 s%d, s3, 0x%x" % (sFl, FH))
    D2 = OPT["d2"]
    M("s_lshl_b32 s3, s%d, 1" % sR, "s_lshr_b32 s4, s%d, 1" % sW, "s_add_u32 s5, s3, s4", "s_xor_b32 s6, s5, 1",
      "s_mul_i32 s%d, s5, %d" % (sAd, 144 * 1024), "s_mul_i32 s%d, s6, %d" % (sAd + 1, 144 * 1024),
      "s_lshl_b32 s4, s%d, 13" % sW, "s_add_u32 s4, s4, %d" % (112 * 1024), "s_add_u32 s%d, s%d, s4" % (sAo, sAd), "s_add_u32 s%d, s%d, s4" % (sAo + 1, sAd + 1),
      "s_lshl_b32 s3, s%d, 2" % sW, "s_lshl_b32 s%d, 0x000c000c, s3" % sMask, "s_mov_b32 s%d, 0" % (sMask + 1))
    sAg = 78
    pool = [64, 68, 72, 76] + list(range(192, 256, 4))
    assert len(pool) >= 2 * D2
    def AFr(ks, rf):
        if ks < 6: return v(80 + ks * 8 + rf * 4, 4)
        if ks < 8: return a(16 + (ks - 6) * 8 + rf * 4, 4)
        return v(pool[((ks - 8) % D2) * 2 + rf], 4)
    def loadA(ks):
        kk = ks if ks < 28 else ks - 28
        if kk % 4 == 0:
            if ks < 28:
                grp_base(sAg, ks // 4)
                M("s_lshl_b32 s%d, s%d, 10" % (sAg, sAg), "s_add_u32 s%d, s%d, s%d" % (sAg + 1, sAg, sAd + 1), "s_add_u32 s%d, s%d, s%d" % (sAg, sAg, sAd))
            else:
                M("s_add_u32 s%d, s%d, %d" % (sAg, sAo, kk * 1024), "s_add_u32 s%d, s%d, %d" % (sAg + 1, sAo + 1, kk * 1024))
        for rf in range(2):
            vm.issue("buffer_load_dwordx4 %s, v%d, s[%d:%d], s%d offen offset:%d%s" % (AFr(ks, rf), vL16, sWS, sWS + 3, sAg + rf, (kk % 4) * 1024, SC), "a%d" % ks)
    LA = lambda ks: (lambda: loadA(ks))
    M("s_lshl_b32 s%d, s%d, 14" % (sSt, sW), "s_mov_b32 s%d, s%d" % (sWl, sSt), "s_mov_b32 s%d, s%d" % (sTmp, sBo))
    for f in b2_dma(12): f()
    for f in b2_read(11): f()
    poll_check(vL8, sXo, "pe", 14)
    EL = OPT["elate"]
    if not EL: loadA(0); loadA(1)
    M("s_add_u32 s%d, s%d, 0x%x" % (sXo, sXo, FH - FE + (1 << 32) if FH < FE else FH - FE), "s_lshl_b32 s3, s%d, 2" % sW, "s_lshl_b32 s%d, 0x000f000f, s3" % sMask)
    vm.wait("q"); A("s_barrier")
    stamp("att0")
    def rdK(h, off): lg.issue("ds_read_b128 %s, v%d offset:%d" % (v(K0 if h == 0 else K1_, 4), vKA, h * 12288 + off), "k%d" % h)
    def rdV(h, off):
        A("s_mov_b64 exec, s[%d:%d]" % ((sE0, sE0 + 1) if h == 0 else (sE1, sE1 + 1)))
        R = V0 if h == 0 else V1
        lg.issue("ds_read_b128 %s, v%d offset:%d" % (v(R, 4), vVA, off), "v%d" % h)
        lg.issue("ds_read_b128 %s, v%d offset:%d" % (v(R + 4, 4), vVA, off + 1024), "v%d" % h)
        A("s_mov_b64 exec, -1")
    def mask(m): return {"0": "0", "D": v(MD, 16), "E": v(ME, 16)}[m]
    def ex_(r): A("v_exp_f32 v%d, v%d" % (r, r))
    def cv(d, s_): A("v_cvt_pk_bf16_f32 v%d, v%d, v%d" % (d, s_, s_ + 1))
    def half(h, mqk, last, first, extra):
        S, O, Vr = (S0, O0, V0) if h == 0 else (S1, O1, V1)
        So, Oo, Vo, Ko, Qo = (S1, O1, V1, K1_, Q1) if h == 0 else (S0, O0, V0, K0, Q0)
        ex_(S); ex_(S + 1)
        if not (first and h == 0): A("%s %s, %s, %s, %s" % (MF, v(Oo, 16), v(Vo + 4, 4), v(P + 4, 4), v(Oo, 16)))
        n_new = 0
        if not last: rdK(h, 1024); n_new += 1
        if mqk is not None: rdV(1 - h, 0 if h == 0 else 2048); n_new += 2
        ex_(S + 2); ex_(S + 3); ex_(S + 4); ex_(S + 5); cv(P, S); cv(P + 1, S + 2)
        A("s_waitcnt lgkmcnt(%d)" % n_new)
        if mqk is not None: A("%s %s, %s, %s, %s" % (MF, v(So, 16), v(Ko, 4), v(Qo, 4), mask(mqk)))
        ex_(S + 6); ex_(S + 7); ex_(S + 8); ex_(S + 9); cv(P + 2, S + 4); cv(P + 3, S + 6); ex_(S + 10); ex_(S + 11)
        A("%s %s, %s, %s, %s" % (MF, v(O, 16), v(Vr, 4), v(P, 4), "0" if first else v(O, 16)))
        for f in extra: f()
        ex_(S + 12); ex_(S + 13); cv(P + 4, S + 8); cv(P + 5, S + 10); ex_(S + 14); ex_(S + 15)
        if h == 1 and not last: M("v_add_u32 v%d, 1024, v%d" % (vKA, vKA), "v_add_u32 v%d, 2048, v%d" % (vVA, vVA))
        cv(P + 6, S + 12); cv(P + 7, S + 14)
    def body(m1, m0n, first=False, e0=(), e1=()):
        half(0, m1, m0n is None, first, e0); half(1, m0n, m0n is None, first, e1)
    rdK(0, 0); rdK(1, 0); rdV(0, 0)
    for f in b2_dma(13): f()
    M("s_cmp_lg_u32 s%d, 0" % sW, "s_cbranch_scc1 L_noat", "s_mov_b64 exec, 1")
    A("buffer_atomic_add v%d, v%d, s[%d:%d], 0 offen sc0" % (vRet, vL16, sDBG, sDBG + 3))
    A("s_mov_b64 exec, -1")
    A.label("L_noat")
    M("s_cmp_lg_u32 s%d, 0" % sI0, "s_cbranch_scc1 A_short")
    sv_short = vm.save()
    A("s_waitcnt lgkmcnt(3)")
    A("%s %s, %s, %s, %s" % (MF, v(S0, 16), v(K0, 4), v(Q0, 4), v(ME, 16)))
    A("s_mov_b32 s%d, 6" % sCnt)
    body("E", "0", True, *(([wo2], []) if EL else ([wo2, LA(2)], [LA(3)])))
    stamp("t0", True)
    A.label("A_mid")
    def pubh():
        L = A.newlabel("L_ph")
        M("s_cmp_lg_u32 s%d, %d" % (sCnt, 7 - OPT["pubh"]), "s_cbranch_scc1 %s" % L)
        for _ in range(OPT["pubh"] - 1): vm.ops += ["wo", "wo"]
        vm.wait("sth"); publish(sFl)
        A.label(L)
    body("0", "0", False, [wo2], [pubh])
    M("s_sub_u32 s%d, s%d, 1" % (sCnt, sCnt), "s_cmp_lg_u32 s%d, 0" % sCnt, "s_cbranch_scc1 A_mid")
    A.label("A_b7")
    body("0", "D", False, *(([wo2, LA(0)], [LA(1), LA(2)]) if EL else ([wo2, LA(4)], [LA(5)])))
    A.label("A_b8")
    PH = lambda: poll_issue(vL8, sXo, "ph")
    body("D", None, False, *(([PH, LA(3), LA(4)], [LA(5), LA(6)]) if EL else ([PH, LA(6)], [LA(7)])))
    if EL: loadA(7)
    A("%s %s, %s, %s, %s" % (MF, v(O1, 16), v(V1 + 4, 4), v(P + 4, 4), v(O1, 16)))
    lg.mark_all()
    vm_main = vm.save()
    stamp("att")
    for f in b2_read(12) + b2_read(13): f()
    M("v_rcp_f32 v40, v%d" % (O0 + 8), "v_rcp_f32 v41, v%d" % O1, "v_mov_b32 v42, 0x1f800000", "v_mov_b32 v43, 0x5f800000")
    M("v_cmp_le_f32 vcc, v42, v%d" % (O0 + 8), "v_cmp_ge_f32 s[4:5], v43, v%d" % (O0 + 8), "v_cmp_le_f32 s[6:7], v42, v%d" % O1, "s_and_b64 vcc, vcc, s[4:5]",
      "v_cmp_ge_f32 s[4:5], v43, v%d" % O1, "s_and_b64 vcc, vcc, s[6:7]")
    for i in range(8): M("v_mul_f32 v%d, v%d, v40" % (O0 + i, O0 + i), "v_mul_f32 v%d, v%d, v41" % (O1 + 8 + i, O1 + 8 + i))
    A("s_and_b64 s[6:7], vcc, s[4:5]")
    for i in range(4): A("v_pk_add_f32 %s, %s, %s" % (v(T + 2 * i, 2), v(O0 + 2 * i, 2), v(O1 + 8 + 2 * i, 2)))
    M("v_pk_add_f32 %s, %s, %s" % (v(T, 2), v(T, 2), v(T + 2, 2)), "v_pk_add_f32 %s, %s, %s" % (v(T + 4, 2), v(T + 4, 2), v(T + 6, 2)),
      "v_pk_add_f32 %s, %s, %s" % (v(T, 2), v(T, 2), v(T + 4, 2)), "v_add_f32 v%d, v%d, v%d" % (T, T, T + 1), "v_mov_b32 v42, 0x1f8", "v_cmp_class_f32 vcc, v%d, v42" % T)
    for i in range(4): cv(T + 8 + i, O0 + 2 * i); cv(T + 12 + i, O1 + 8 + 2 * i)
    A("s_and_b64 vcc, vcc, s[6:7]")
    if OPT["fb_force"]: A("s_mov_b64 vcc, 0")
    M("s_cmp_eq_u64 vcc, -1", "s_cbranch_scc0 A_fb")
    A.label("A_fin2")
    M("s_mul_i32 s3, s%d, %d" % (sBLK, 144 * 1024), "s_lshl_b32 s4, s%d, 11" % sP, "s_add_u32 s3, s3, s4", "s_add_u32 s3, s3, %d" % (112 * 1024))
    store(T + 8, 3, 0, "sto"); store(T + 12, 3, 1024, "sto")
    poll_check(vL8, sXo, "ph")
    for ks in range(8, 13): loadA(ks)
    assert D2 >= 6
    AC2 = 128
    M("v_and_b32 v40, 31, v%d" % vLane, "v_lshrrev_b32 v41, 5, v%d" % vLane, "v_lshlrev_b32 v40, 10, v40", "v_lshl_add_u32 v%d, v41, 4, v40" % vXo,
      "s_lshr_b32 s3, s%d, 1" % sW, "s_lshl_b32 s4, s%d, 1" % sR, "s_add_u32 s3, s3, s4", "s_lshl_b32 s3, s3, 15",
      "s_and_b32 s4, s%d, 1" % sW, "s_lshl_b32 s4, s4, 6", "s_add_u32 s3, s3, s4", "s_lshl_b32 s4, s%d, 7" % sC2, "s_add_u32 s%d, s3, s4" % sCnt)
    nl = [13]
    M("s_sub_u32 s3, s%d, s%d" % (sSt, sStg), "v_add_u32 v%d, s3, v%d" % (vBA, vBA), "v_add_u32 v%d, s3, v%d" % (vBB, vBB))
    def rdO(kk):
        for cf in range(2):
            R = vBA if cf == 0 else vBB
            d = (kk % 2) * 8 + cf * 4
            lg.issue("ds_read_b64_tr_b16 %s, v%d offset:%d" % (a(d, 2), R, kk * 2048), "o%d" % kk)
            lg.issue("ds_read_b64_tr_b16 %s, v%d offset:%d" % (a(d + 2, 2), R, kk * 2048 + 1024), "o%d" % kk)
    stamp("p2go")
    KO = 28 - D2 + OPT.get("odelay", 0)
    for ks in range(36):
        if ks == OPT["pubo"]:
            vm.wait("sto")
            M("s_lshl_b32 s3, s%d, 7" % sBLK, "s_lshl_b32 s4, s%d, 3" % sP, "s_add_u32 s3, s3, s4", "s_add_u32 s3, s3, 0x%x" % FO)
            publish(3)
        if ks == KO - 4:
            M("s_lshl_b32 s%d, s%d, 8" % (sXo, sR), "s_add_u32 s%d, s%d, 0x%x" % (sXo, sXo, FO),
              "s_lshl_b32 s3, s%d, 2" % sW, "s_lshl_b32 s%d, 0x000f000f, s3" % sMask, "s_mov_b32 s%d, 0" % (sMask + 1))
            poll_issue(vL8, sXo, "po")
        if ks == KO:
            stamp("p2a")
            poll_check(vL8, sXo, "po")
            stamp("p2b")
        if ks == 24:
            vm.issue("buffer_load_dwordx4 v[48:51], v%d, s[%d:%d], s%d offen" % (vXo, sXS, sXS + 3, sCnt), "xr")
            vm.issue("buffer_load_dwordx4 v[52:55], v%d, s[%d:%d], s%d offen offset:32" % (vXo, sXS, sXS + 3, sCnt), "xr")
        vm.wait("a%d" % ks)
        if ks == 0: lg.wait("b2r13")
        if ks >= 28: lg.wait("o%d" % (ks - 28))
        lim = min(36 if ks >= KO else 28, max(ks, 8) + D2)
        m = 0
        for cf in range(2):
            for rf in range(2):
                d = v(AC2 + (rf * 2 + cf) * 16, 16)
                A("%s %s, %s, %s, %s" % (MF, d, Breg(ks, cf), AFr(ks, rf), d if ks else "0"))
                m += 1
                if m == 2 and 27 <= ks < 35: rdO(ks - 27)
                if m in (1, 3) and nl[0] < lim:
                    loadA(nl[0]); nl[0] += 1
    stamp("p2end")
    for i in range(1, 4): M("s_xor_b32 s3, s%d, %d" % (sW, i), "s_lshl_b32 s3, s3, 14", "v_add_u32 v%d, s3, v%d" % (40 + i, vL16))
    A("v_add_u32 v40, s%d, v%d" % (sSt, vL16))
    vm.wait("xr")
    for i in range(8): M("v_lshlrev_b32 v%d, 16, v%d" % (64 + 2 * i, 48 + i), "v_and_b32 v%d, s%d, v%d" % (65 + 2 * i, sMsk, 48 + i))
    for i in range(1, 4):
        for j in range(4): A("ds_write_b128 v40, %s offset:%d" % (v(AC2 + i * 16 + 4 * j, 4), (i - 1) * 4096 + j * 1024))
    M("s_waitcnt lgkmcnt(0)", "s_barrier")
    for i in range(1, 4):
        for j in range(4): lg.issue("ds_read_b128 %s, v%d offset:%d" % (v(AC2 + i * 16 + 4 * j, 4), 40 + i, (i - 1) * 4096 + j * 1024), "r%d" % i)
    M("s_cmp_lg_u32 s%d, 0" % sW, "s_cbranch_scc1 L_noep", "v_readfirstlane_b32 s3, v%d" % vRet, "s_cmp_lg_u32 s3, 255", "s_cbranch_scc1 L_noep",
      "s_mov_b32 s3, 0x%x" % EOFF, "s_mov_b64 exec, 1")
    A("buffer_store_dwordx2 %s, v%d, s[%d:%d], s3 offen" % (v(vTag, 2), vL16, sWS, sWS + 3))
    A("s_mov_b64 exec, -1")
    A.label("L_noep")
    lg.wait("r1")
    for i in range(16): A("v_add_f32 v%d, v%d, v%d" % (AC2 + i, AC2 + i, AC2 + 16 + i))
    lg.wait("r3")
    for i in range(16): A("v_add_f32 v%d, v%d, v%d" % (AC2 + 32 + i, AC2 + 32 + i, AC2 + 48 + i))
    for i in range(16): A("v_add_f32 v%d, v%d, v%d" % (AC2 + i, AC2 + i, AC2 + 32 + i))
    for jj in range(2):
        for i in range(4): A("v_permlane32_swap_b32 v%d, v%d" % (AC2 + 8 * jj + i, AC2 + 8 * jj + 4 + i))
    for i in range(16): A("v_add_f32 v%d, v%d, v%d" % (64 + i, 64 + i, AC2 + i))
    for i in range(8): cv(T + i, 64 + 2 * i)
    A("buffer_store_dwordx4 %s, v%d, s[%d:%d], s%d offen" % (v(T, 4), vXo, sOUT, sOUT + 3, sCnt))
    A("buffer_store_dwordx4 %s, v%d, s[%d:%d], s%d offen offset:32" % (v(T + 4, 4), vXo, sOUT, sOUT + 3, sCnt))
    stamp_flush()
    A("s_endpgm")
    A.label("A_short")
    vm.load(sv_short)
    for i in range(16): M("v_mov_b32 v%d, 0" % (O0 + i), "v_mov_b32 v%d, 0" % (O1 + i))
    for i in range(4): A("v_mov_b32 v%d, 0" % (P + 4 + i))
    M("s_cmp_le_u32 s%d, %d" % (sI0, OPT["pubh"]), "s_cbranch_scc1 A_sh1")
    vm.wait("sth"); publish(sFl)
    A.label("A_sh1")
    if not EL: loadA(2); loadA(3)
    M("s_cmp_lg_u32 s%d, 8" % sI0, "s_cbranch_scc1 A_sh1b")
    if EL: loadA(0); loadA(1); loadA(2)
    else: loadA(4); loadA(5)
    A.label("A_sh1b")
    A("s_mov_b32 s%d, s%d" % (sCnt, sI0))
    A.label("A_sh2")
    wo2()
    M("s_sub_u32 s%d, s%d, 1" % (sCnt, sCnt), "s_cmp_lg_u32 s%d, 0" % sCnt, "s_cbranch_scc1 A_sh2")
    M("s_waitcnt lgkmcnt(0)", "s_cmp_eq_u32 s%d, 8" % sI0, "s_cbranch_scc1 A_sh3")
    A("%s %s, %s, %s, 0" % (MF, v(S0, 16), v(K0, 4), v(Q0, 4)))
    M("s_sub_u32 s%d, 7, s%d" % (sCnt, sI0), "s_nop 9", "s_cmp_eq_u32 s%d, 7" % sI0, "s_cbranch_scc1 A_b7", "s_branch A_mid")
    A.label("A_sh3")
    A("%s %s, %s, %s, %s" % (MF, v(S0, 16), v(K0, 4), v(Q0, 4), v(MD, 16)))
    M("s_nop 11", "s_branch A_b8")
    A.label("A_fb")
    for h in range(2):
        Qh, O, Vr = (Q0, O0, V0) if h == 0 else (Q1, O1, V1)
        vM = 44
        for pas in range(2):
            Lp = "A_fb%d%d" % (h, pas)
            M("v_mov_b32 v%d, v12" % vKA, "v_mov_b32 v%d, v13" % vVA, "s_mov_b32 s%d, s%d" % (sCnt, sI0))
            if pas == 0: A("v_mov_b32 v%d, 0xff800000" % vM)
            else:
                for i in range(16): A("v_mov_b32 v%d, 0" % (O + i))
            A.label(Lp)
            A("ds_read_b128 %s, v%d offset:%d" % (v(K0, 4), vKA, h * 12288))
            if pas == 1: rdV(h, 0)
            M("s_waitcnt lgkmcnt(0)", "s_cmp_eq_u32 s%d, 0" % sCnt, "s_cbranch_scc1 %s_e" % Lp, "s_cmp_eq_u32 s%d, 8" % sCnt, "s_cbranch_scc1 %s_d" % Lp)
            M("%s %s, %s, %s, 0" % (MF, v(S0, 16), v(K0, 4), v(Qh, 4)), "s_branch %s_j" % Lp)
            A.label(Lp + "_e"); M("%s %s, %s, %s, %s" % (MF, v(S0, 16), v(K0, 4), v(Qh, 4), v(ME, 16)), "s_branch %s_j" % Lp)
            A.label(Lp + "_d"); A("%s %s, %s, %s, %s" % (MF, v(S0, 16), v(K0, 4), v(Qh, 4), v(MD, 16)))
            A.label(Lp + "_j")
            A("s_nop 15")
            if pas == 0:
                for i in range(16): A("v_max_f32 v%d, v%d, v%d" % (vM, vM, S0 + i))
            else:
                for i in range(16): A("v_sub_f32 v%d, v%d, v%d" % (S0 + i, S0 + i, vM))
                for i in range(16): ex_(S0 + i)
                for i in range(8): cv(P + i, S0 + 2 * i)
                A("%s %s, %s, %s, %s" % (MF, v(O, 16), v(Vr, 4), v(P, 4), v(O, 16)))
                A("%s %s, %s, %s, %s" % (MF, v(O, 16), v(Vr + 4, 4), v(P + 4, 4), v(O, 16)))
            M("v_add_u32 v%d, 1024, v%d" % (vKA, vKA), "v_add_u32 v%d, 2048, v%d" % (vVA, vVA),
              "s_add_u32 s%d, s%d, 1" % (sCnt, sCnt), "s_cmp_le_u32 s%d, 8" % sCnt, "s_cbranch_scc1 %s" % Lp)
            if pas == 0: M("v_mov_b32 v45, v%d" % vM, "v_permlane32_swap_b32 v%d, v45" % vM, "v_max_f32 v%d, v%d, v45" % (vM, vM))
    A("s_nop 15")
    M("v_rcp_f32 v40, v%d" % (O0 + 8), "v_rcp_f32 v41, v%d" % O1)
    for i in range(8): M("v_mul_f32 v%d, v%d, v40" % (O0 + i, O0 + i), "v_mul_f32 v%d, v%d, v41" % (O1 + 8 + i, O1 + 8 + i))
    for i in range(4): cv(T + 8 + i, O0 + 2 * i); cv(T + 12 + i, O1 + 8 + 2 * i)
    M("s_nop 4", "s_branch A_fin2")
    A.label("L_end")
    A("s_endpgm")
    return A

def build():
    kn = NAME + "_kernel"
    lines = hazard.fix(gen().lines, True)
    t = "; generated by gen/v8.py\n; @launch grid=(256,1,1) block=(256,1,1) lds=163840\n"
    t += '.amdgcn_target "amdgcn-amd-amdhsa--gfx950"\n'
    t += kernel_header(kn) + "\n".join(lines) + "\n"
    t += kernel_desc(kn, 512, 102, 256)
    import subprocess, re
    open("_p1.s", "w").write(re.sub(r"OFF_L_\w+", "0x12345", t.replace("CODE_SPAN", "0x12345")))
    subprocess.run(["clang", "-x", "assembler", "-target", "amdgcn-amd-amdhsa", "-mcpu=gfx950", "-c", "_p1.s", "-o", "_p1.o"], check=True)
    h = subprocess.run(["llvm-objdump", "-h", "_p1.o"], capture_output=True, text=True).stdout
    size = int(re.search(r"\.text\s+([0-9a-f]+)", h).group(1), 16)
    syms = {}
    for ln in subprocess.run(["llvm-objdump", "-t", "_p1.o"], capture_output=True, text=True).stdout.splitlines():
        p = ln.split()
        if len(p) >= 5 and p[-1].startswith("L_"): syms[p[-1]] = int(p[0], 16)
    if "L_pc" in syms:
        for nm in set(re.findall(r"OFF_(L_\w+)", t)): t = t.replace("OFF_" + nm, "0x%x" % ((syms[nm] - syms["L_pc"]) | 0x10000000 & 0))
    print("code bytes:", size)
    t = t.replace("CODE_SPAN", "0x%x" % (size - 256))
    if OPT["stamp"]: t += "; STAMPS " + " ".join(NAMES[i] for i in sorted(NAMES)) + "\n"
    return t

if __name__ == "__main__":
    args = [x for x in sys.argv[1:] if not x.startswith("--")]
    for x in sys.argv[1:]:
        if x.startswith("--"):
            k, _, val = x[2:].partition("=")
            OPT[k] = (val if "," in val else int(val)) if val else True
    out = args[0] if args else "cdna_kernels/%s.s" % NAME
    open(out, "w").write(build())
```

```python
import sys, struct
from asmlib import *
import hazard

NAME = "parallel_sum__sliding_block__swiglu_ffn__prompt"
A2F = 0
B2T = 0xA00000
QF = 0x900000
KF = QF + 0x200000
VF = QF + 0x400000
STAMP_OFF = 0x1600000
FLG = 0xF00000
FK = FLG + 0x1000; FQ = FK + 512; FH = FLG + 0x50000; FO = FLG + 0x70000; FE = FLG + 0x90000; EOFF = FLG + 0xB0000
WS_BYTES = 0x1700000
LOG2E = 1.4426950408889634
MF = "v_mfma_f32_32x32x16_bf16"
OPT = dict(stamp=False, fine=False, pf_code=True, rot=True, d2=7, rot2=True, fb_force=False, touch=False,
           pro_first=12, budget=16, bulk=1, s0first=0, xahead=4, kvst=9, early=True, rmap=True, pubh=1, wopf=-1, bulkb=3, xpf=0, plan=0, t0=0, t1=0, lndma=1, pubo=2, elate=1, odelay=5, s0swap=0, wsoff=0, b2ord=0, atouch=0, ptouch=0, satom=0)
NAMES = {}

def f32(x):
    return "0x%08x" % struct.unpack("<I", struct.pack("<f", x))[0]

class Track:
    def __init__(self, A, name, maxn):
        self.A = A; self.ops = []; self.done = -1; self.name = name; self.maxn = maxn; self.hook = None; self.pre = None
    def issue(self, text, tag):
        self.A(text); self.ops.append(tag)
    def wait(self, tag):
        idx = max(i for i, t in enumerate(self.ops) if t == tag)
        if idx <= self.done: return
        if self.pre: self.pre()
        n = sum(1 for t in self.ops[idx + 1:] if not t.startswith("?"))
        self.done = idx
        if self.hook: self.hook("<" + tag)
        self.A("s_waitcnt %s(%d)" % (self.name, min(n, self.maxn)))
        if self.hook: self.hook(tag + ">")
    def mark_all(self): self.done = len(self.ops) - 1
    def save(self): return (list(self.ops), self.done)
    def load(self, st): self.ops = list(st[0]); self.done = st[1]

def gen():
    A = Asm(); vm = Track(A, "vmcnt", 63); lg = Track(A, "lgkmcnt", 15)
    SC = " sc1"
    def srd(d, lo, nbytes):
        A("s_mov_b32 s%d, s%d" % (d, lo)); A("s_mov_b32 s%d, s%d" % (d + 1, lo + 1))
        A("s_mov_b32 s%d, 0x%x" % (d + 2, nbytes)); A("s_mov_b32 s%d, 0x20000" % (d + 3))
    held = []
    def flush_held():
        A.lines.extend(held); del held[:]
    vm.pre = flush_held
    def run_hold(f):
        flush_held()
        n0 = len(A.lines)
        f()
        if len(A.lines) > n0 and A.lines[-1].strip().startswith(("buffer_load", "buffer_store")) and not (len(A.lines) - n0 >= 2 and A.lines[-2].strip().startswith(("buffer_", "s_waitcnt vmcnt"))):
            held.append(A.lines.pop())
    def M(*lines):
        for l in lines: A(l)
    sXS, sWQ, sGU, sWS, sDBG, sOUT, sDN, sWO = 8, 12, 16, 20, 44, 52, 56, 80
    sW, sRB, sIQ, sP, sBLK, sTy, sROT = 24, 25, 26, 27, 28, 29, 30
    sR, sC2, sLW, sTmp, sIdx = 31, 32, 33, 34, 35
    sKVb, sQb, sGa, sGb, sG1 = 36, 37, 38, 39, 40
    sHa, sHb, sH1 = 41, 42, 43
    sMsk, sFl = 50, 51
    sSt = 60
    sKq, sKg, sK2 = 64, 68, 72
    sBd, sPk0, sBo, sStg, sPk1 = 74, 75, 99, 48, 49
    sBg = 76
    sE0, sE1 = 64, 66
    sCnt, sI0, sMask = 84, 85, 86
    sAd, sAo = 88, 90
    sXo, sSpin, sOne = 92, 93, 98
    sPtr = 64
    vLane, vL16, vL8, vTag = 1, 2, 3, 4
    vRA = [6, 7]; vRB = [9, 10]; vRP = [12, 13]; vBA, vBB = 8, 11; vL16b = 15
    vD1 = [16, 17, 18, 19]; vD2 = [20, 21, 22, 23]
    vF, vRet, vXo, vPF, vFo = 24, 26, 27, 28, 29
    vRs, vSd = 0, 61
    vC1, vS2, vQs = 28, 29, 30
    CM, DT, AI = 24, 40, 184
    T = 32
    vDB = [56, 57, 58, 59]
    vX = [56, 57, 58, 59]; vBT = 60; vXR = 44; vSt = 48
    ACA, ACB = 64, 128
    def Xr(s_): return v(192 + 4 * s_, 4) if s_ < 16 else a(192 + 4 * (s_ - 16), 4)
    def Xraw(s_): return 192 + 4 * s_ if s_ < 16 else 128 + 4 * (s_ - 16)
    nst = [0]
    def stamp(name, fine=False):
        if not OPT["stamp"] or (fine and not OPT["fine"]): return
        NAMES.setdefault(nst[0], name)
        if NAMES[nst[0]].split("|")[0] != name: NAMES[nst[0]] = NAMES[nst[0]].split("|")[0] + "|" + name
        M("s_memtime s[94:95]", "s_waitcnt lgkmcnt(0)"); lg.mark_all()
        A("v_writelane_b32 v63, s94, %d" % nst[0]); nst[0] += 1
    def stamp_flush():
        if not OPT["stamp"]: return
        A("s_waitcnt vmcnt(0)"); stamp("end")
        M("s_memrealtime s[94:95]", "s_waitcnt lgkmcnt(0)", "v_writelane_b32 v63, s94, 63", "v_writelane_b32 v63, s96, 62")
        M("s_lshl_b32 s3, s2, 2", "s_add_u32 s3, s3, s%d" % sW, "s_lshl_b32 s3, s3, 8", "s_add_u32 s3, s3, 0x%x" % STAMP_OFF)
        A("v_lshlrev_b32 v62, 2, v%d" % vLane)
        A("buffer_store_dword v63, v62, s[%d:%d], s3 offen" % (sWS, sWS + 3))

    M("s_cmp_ge_u32 s2, 256", "s_cbranch_scc1 L_end")
    M("s_load_dwordx4 s[4:7], s[0:1], 0", "s_load_dwordx2 s[48:49], s[0:1], 72", "s_load_dwordx4 s[64:67], s[0:1], 32",
      "s_load_dwordx4 s[68:71], s[0:1], 48", "s_load_dwordx2 s[72:73], s[0:1], 16", "s_load_dwordx2 s[74:75], s[0:1], 64")
    sPC = 46
    if OPT["pf_code"]:
        M("s_getpc_b64 s[100:101]")
        A.label("L_pc")
        M("v_and_b32 v%d, 63, v0" % vLane, "s_lshr_b32 s3, s2, 3", "s_lshl_b32 s3, s3, 11", "s_sub_u32 s3, s3, 6144", "v_lshlrev_b32 v6, 7, v%d" % vLane,
          "v_cmp_lt_u32 vcc, 47, v%d" % vLane, "v_mov_b32 v7, s3", "v_mov_b32 v9, s101", "v_cndmask_b32 v7, 0, v7, vcc", "v_add_u32 v6, v6, v7",
          "v_min_u32 v6, CODE_SPAN, v6", "v_add_co_u32 v8, vcc, s100, v6", "v_addc_co_u32 v9, vcc, 0, v9, vcc", "v_cmp_gt_u32 vcc, 64, v0", "s_and_saveexec_b64 s[88:89], vcc",
          "s_cbranch_execz L_pf0")
        A("global_load_dword v%d, v[8:9], off" % vXo)
        A.label("L_pf0")
        A("s_mov_b64 exec, -1")
        vm.ops.append("?pfc")
    if OPT["stamp"]:
        M("s_memrealtime s[96:97]", "v_mov_b32 v63, 0"); stamp("t0")
    M("v_lshrrev_b32 v3, 6, v0", "v_and_b32 v%d, 63, v0" % vLane, "v_readfirstlane_b32 s%d, v3" % sW)
    M("s_and_b32 s3, s2, 7", "s_lshr_b32 s%d, s2, 3" % sIdx)
    M("s_and_b32 s%d, s3, 1" % sRB, "s_lshl_b32 s%d, s%d, 3" % (sRB, sRB), "s_and_b32 s%d, s%d, 7" % (sTmp, sIdx), "s_add_u32 s%d, s%d, s%d" % (sRB, sRB, sTmp))
    A("s_lshr_b32 s%d, s%d, 3" % (sTy, sIdx))
    if OPT["rot"] == 2: M("s_add_u32 s%d, s%d, s%d" % (sROT, sRB, sTy), "s_and_b32 s%d, s%d, 3" % (sROT, sROT))
    elif OPT["rot"]: A("s_and_b32 s%d, s%d, 3" % (sROT, sRB))
    else: A("s_mov_b32 s%d, 0" % sROT)
    M("s_lshl_b32 s%d, s%d, 2" % (sBLK, sRB), "s_add_u32 s%d, s%d, s%d" % (sBLK, sBLK, sW))
    M("v_lshrrev_b32 v6, 3, v%d" % vLane, "v_and_b32 v7, 7, v%d" % vLane, "v_lshrrev_b32 v8, 4, v%d" % vLane,
      "v_xor_b32 v7, v7, v8", "v_lshlrev_b32 v7, 4, v7", "v_lshl_add_u32 v%d, v6, 10, v7" % vX[0],
      "v_xor_b32 v%d, 64, v%d" % (vX[1], vX[0]), "v_add_u32 v%d, 7168, v%d" % (vX[1], vX[1]),
      "v_add_u32 v%d, 14336, v%d" % (vX[2], vX[0]), "v_add_u32 v%d, 14336, v%d" % (vX[3], vX[1]))
    sXrow, sXlds, sXrot = 76, 77, 78
    M("s_lshl_b32 s%d, s%d, 15" % (sXrow, sBLK), "s_lshl_b32 s%d, s%d, 15" % (sXlds, sW), "s_add_u32 s%d, s%d, 32768" % (sXlds, sXlds),
      "s_lshl_b32 s%d, s%d, 8" % (sXrot, sROT), "s_waitcnt lgkmcnt(0)")
    srd(sXS, 4, 2048 * 1024)
    xl = []
    for c in range(8):
        for rq in range(4):
            def f(c=c, rq=rq):
                if rq == 0:
                    M("s_add_u32 m0, s%d, %d" % (sXlds, c * 4096), "s_add_u32 s79, s%d, %d" % (sXrot, c * 128), "s_and_b32 s79, s79, 1023", "s_add_u32 s79, s79, s%d" % sXrow)
                vm.issue("buffer_load_dwordx4 v%d, s[%d:%d], s79 offen offset:%d lds" % (vX[rq], sXS, sXS + 3, rq * 1024), "x%d" % c)
            xl.append(f)
    if OPT.get("xst"): stamp("pre")
    for _ in range(OPT["pro_first"]): xl.pop(0)()
    if OPT["ptouch"]:
        for i in range(8):
            M("s_mov_b32 s86, 0x%x" % (i * 0x200000 + (0x100000 if i == 7 else 0)), "s_load_dword s87, s[48:49], s86")
        M("s_load_dword s87, s[70:71], 0", "s_mov_b32 s86, 0x1ffffc", "s_load_dword s87, s[70:71], s86", "s_load_dword s87, s[68:69], 0", "s_load_dword s87, s[72:73], 0",
          "s_load_dword s87, s[74:75], 0", "s_load_dword s87, s[6:7], 0", "s_load_dword s87, s[64:65], 0", "s_load_dword s87, s[66:67], 0")
    for e in range(OPT["xpf"]):
        M("s_lshl_b32 s79, s%d, 7" % sTy, "s_add_u32 s79, s79, s%d" % sXrot, "s_add_u32 s79, s79, %d" % ((OPT["pro_first"] // 4 + 4 * e) * 128), "s_and_b32 s79, s79, 1023", "s_add_u32 s79, s79, s%d" % sXrow)
        for rq in range(4): vm.issue("buffer_load_dword v60, v%d, s[%d:%d], s79 offen offset:%d" % (vX[rq], sXS, sXS + 3, rq * 1024), "xpf")
    if OPT.get("xst"): stamp("iss")

    SB = []
    def blk(f): SB.append(f); return f
    @blk
    def _():
        if OPT["wsoff"]: M("s_add_u32 s48, s48, 0x%x" % (OPT["wsoff"] << 20), "s_addc_u32 s49, s49, 0")
        srd(sWQ, 6, 512 * 3072); srd(sWS, 48, WS_BYTES)
        M("s_lshr_b32 s%d, s3, 1" % sP, "s_lshl_b32 s%d, s%d, 1" % (sIQ, sP), "s_lshl_b32 s%d, s%d, 2" % (sP, sP), "s_add_u32 s%d, s%d, s%d" % (sP, sP, sTy),
          "s_and_b32 s4, s%d, 1" % sTy, "s_add_u32 s%d, s%d, s4" % (sIQ, sIQ), "s_lshr_b32 s%d, s%d, 1" % (sTy, sTy),
          "s_and_b32 s4, s3, 1", "s_lshl_b32 s4, s4, 4", "s_lshr_b32 s%d, s3, 1" % sR, "s_lshl_b32 s%d, s%d, 2" % (sR, sR), "s_add_u32 s%d, s%d, s4" % (sR, sR),
          "s_and_b32 s4, s%d, 3" % sIdx, "s_add_u32 s%d, s%d, s4" % (sR, sR), "s_lshr_b32 s%d, s%d, 2" % (sC2, sIdx))
    @blk
    def _():
        M("s_cmp_ge_u32 s%d, 2" % sW, "s_cselect_b32 s%d, s66, s64" % sGU, "s_cselect_b32 s%d, s67, s65" % (sGU + 1),
          "s_mov_b32 s%d, %d" % (sGU + 2, 512 * 3584), "s_mov_b32 s%d, 0x20000" % (sGU + 3))
        srd(sDN, 68, 1792 * 1024); srd(sWO, 72, 512 * 1024)
        srd(sOUT, 70, 2048 * 1024); srd(sDBG, 74, 256)
    @blk
    def _():
        M("s_and_b32 s5, s%d, 1" % sW, "s_lshr_b32 s6, s%d, 1" % sW, "s_lshl_b32 s7, s%d, 7" % sIQ)
        M("s_mul_i32 s3, s%d, 320" % sIQ, "s_add_u32 s3, s3, 1024", "s_and_b32 s4, s%d, 1" % sIQ, "s_lshl_b32 s4, s4, 6", "s_add_u32 s%d, s3, s4" % sHa,
          "s_add_u32 s%d, s%d, 128" % (sHb, sHa), "s_lshl_b32 s4, s4, 2", "s_sub_u32 s4, 256, s4", "s_add_u32 s%d, s3, s4" % sH1,
          "s_cmp_eq_u32 s%d, 0" % sTy, "s_cselect_b32 s%d, s7, s%d" % (sHa, sHa))
        for t in range(4):
            M("s_add_u32 s4, s%d, %d" % (sROT, t), "s_and_b32 s4, s4, 3", "s_mul_i32 s%d, s4, %d" % (sKq + t, 128 * 3072), "s_mul_i32 s%d, s4, %d" % (sKg + t, 128 * 3584))
    @blk
    def _():
        M("s_mul_i32 s%d, s5, %d" % (sQb, 64 * 3072), "s_add_u32 s%d, s%d, s7" % (sQb, sQb),
          "s_lshl_b32 s3, s6, 10", "s_add_u32 s%d, s%d, s3" % (sKVb, sQb), "s_add_u32 s%d, s%d, 1024" % (sKVb, sKVb),
          "s_mul_i32 s3, s5, %d" % (64 * 3584), "s_add_u32 s%d, s3, s%d" % (sGa, sHa), "s_add_u32 s%d, s3, s%d" % (sGb, sHb), "s_mov_b32 s%d, s%d" % (sG1, sH1))
    @blk
    def _():
        A("s_mov_b32 s4, 0x%x" % EOFF)
        vm.issue("buffer_load_dwordx2 %s, off, s[%d:%d], s4 sc1" % (v(vTag, 2), sWS, sWS + 3), "ep")
    @blk
    def _():
        M("v_and_b32 v40, 31, v%d" % vLane, "v_lshrrev_b32 v41, 5, v%d" % vLane, "v_bfe_u32 v42, v40, 1, 3", "v_xor_b32 v42, v42, v41",
          "v_lshlrev_b32 v42, 4, v42", "v_lshl_add_u32 v42, v40, 7, v42", "v_add_u32 v%d, s%d, v42" % (vXR, sXlds))
        for b in range(1, 4): A("v_xor_b32 v%d, %d, v%d" % (vXR + b, b << 5, vXR))
    @blk
    def _():
        for i in range(8): A("v_mov_b32 v%d, 0" % (vSt + i))
        M("s_mov_b32 s%d, 0x3f803f80" % sOne, "s_mov_b32 s%d, 0xffff0000" % sMsk, "s_lshl_b32 s%d, s%d, 13" % (sLW, sW))
    @blk
    def _():
        M("v_lshrrev_b32 v40, 3, v%d" % vLane, "v_and_b32 v41, 7, v%d" % vLane, "v_bfe_u32 v42, v%d, 4, 1" % vLane, "v_lshlrev_b32 v42, 2, v42",
          "v_xor_b32 v41, v41, v42", "v_lshlrev_b32 v41, 4, v41", "v_mul_u32_u24 v42, 3584, v40", "v_add_u32 v%d, v42, v41" % vD2[0],
          "v_mul_u32_u24 v42, 3072, v40", "v_add_u32 v43, v42, v41", "v_lshl_add_u32 v61, v40, 10, v41")
    @blk
    def _():
        M("v_lshrrev_b32 v40, 2, v%d" % vLane, "v_and_b32 v41, 3, v%d" % vLane, "v_lshlrev_b32 v41, 4, v41", "v_mul_u32_u24 v42, 3584, v40", "v_add_u32 v42, v42, v41",
          "s_cmp_eq_u32 s%d, 0" % sTy, "s_cselect_b64 vcc, -1, 0", "s_mov_b32 s4, %d" % (8 * 3072 - 1024), "s_cselect_b32 s4, s4, %d" % (16 * 3584 - 1024),
          "v_cndmask_b32 v%d, v42, v43, vcc" % vD1[0])
        for j in range(1, 4):
            M("v_add_u32 v%d, s4, v%d" % (vD1[j], vD1[j - 1]), "v_add_u32 v%d, %d, v%d" % (vD2[j], j * (8 * 3584 - 1024), vD2[0]))
    NCRIT = len(SB)
    @blk
    def _():
        M("v_lshlrev_b32 v%d, 4, v%d" % (vL16, vLane), "v_lshlrev_b32 v%d, 3, v%d" % (vL8, vLane), "s_nop 0")
        M("s_cmp_eq_u32 s%d, 0" % sTy, "s_cselect_b32 s3, s6, s5", "s_mov_b32 s7, %d" % (128 * 3072), "s_cselect_b32 s7, s7, %d" % (128 * 3584), "s_add_u32 s3, s3, s%d" % sROT)
        for t in range(2): M("s_add_u32 s4, s3, %d" % (2 * t), "s_and_b32 s4, s4, 3", "s_mul_i32 s%d, s4, s7" % (sK2 + t))
    @blk
    def _():
        M("v_lshrrev_b32 v40, 5, v%d" % vLane, "v_bfe_u32 v41, v%d, 2, 2" % vLane, "v_lshl_add_u32 v42, v40, 3, v41", "v_lshl_add_u32 v39, v40, 2, v41",
          "v_bfe_u32 v43, v%d, 4, 1" % vLane, "v_lshlrev_b32 v43, 5, v43", "v_and_b32 v38, 3, v%d" % vLane, "v_lshl_add_u32 v43, v38, 3, v43",
          "v_lshl_add_u32 v%d, v39, 6, v43" % vRP[0])
    @blk
    def _():
        M("v_bfe_u32 v38, v41, 1, 1", "v_lshl_add_u32 v43, v38, 6, v43", "v_lshl_add_u32 v%d, v39, 7, v43" % vRA[0], "v_xor_b32 v%d, 64, v%d" % (vRB[0], vRA[0]))
        for R in (vRA, vRB, vRP): A("v_add_u32 v%d, 0x10000, v%d" % (R[1], R[0]))
        M("s_add_u32 s%d, s%d, 131072" % (sStg, sLW), "v_lshl_add_u32 v%d, v39, 7, v43" % vBA, "v_add_u32 v%d, s%d, v%d" % (vBA, sStg, vBA), "v_xor_b32 v%d, 64, v%d" % (vBB, vBA))
    @blk
    def _():
        A("s_mul_i32 s3, s%d, %d" % (sBLK, 144 * 1024))
        for sr in (sHa, sHb, sH1): M("s_lshl_b32 s%d, s%d, 5" % (sr, sr), "s_add_u32 s%d, s%d, s3" % (sr, sr))
        M("s_lshl_b32 s%d, s%d, 7" % (sBd, sC2), "s_lshl_b32 s%d, s%d, 17" % (sBo, sW), "s_add_u32 s%d, s%d, s%d" % (sBo, sBo, sBd))
    @blk
    def _():
        M("s_add_u32 s3, s%d, s%d" % (sC2, sR), "s_and_b32 s4, s3, 1", "s_mul_i32 s4, s4, 12", "s_mul_i32 s7, s%d, 20" % sW, "s_add_u32 s7, s7, 32",
          "s_add_u32 s%d, s7, s4" % sPk0, "s_sub_u32 s4, 12, s4", "s_add_u32 s4, s4, s7", "s_lshl_b32 s4, s4, 8", "s_or_b32 s%d, s%d, s4" % (sPk0, sPk0),
          "s_mul_i32 s%d, s%d, 0x10001" % (sPk0, sPk0), "s_add_u32 s%d, s%d, 0x04040000" % (sPk0, sPk0))
        M("s_mul_i32 s4, s3, 171", "s_lshr_b32 s4, s4, 9", "s_mul_i32 s4, s4, 3", "s_sub_u32 s3, s3, s4", "s_lshl_b32 s3, s3, 3",
          "s_add_u32 s7, s7, 8", "s_lshl_b32 s7, s7, 16", "s_mul_i32 s4, s%d, 0x808" % sW, "s_add_u32 s4, s4, 0x400", "s_or_b32 s7, s7, s4",
          "s_lshr_b32 s4, s7, s3", "s_sub_u32 s3, 24, s3", "s_lshl_b32 s7, s7, s3", "s_or_b32 s%d, s4, s7" % sPk1)
    @blk
    def _():
        M("v_and_b32 v32, 31, v%d" % vLane, "v_lshrrev_b32 v33, 5, v%d" % vLane, "v_lshlrev_b32 v33, 3, v33", "v_sub_u32 v32, v32, v33",
          "v_and_b32 v33, 1, v32", "v_lshlrev_b32 v33, 4, v33", "v_mov_b32 v34, 0x3f80", "v_lshlrev_b32 v33, v33, v34", "v_ashrrev_i32 v32, 1, v32")
        for j in range(8):
            jj = j if j < 4 else j + 4
            M("v_cmp_eq_u32 s[%d:%d], %d, v32" % (88 + 2 * (j % 2), 89 + 2 * (j % 2), jj))
            if j: M("v_cndmask_b32 v34, 0, v33, s[%d:%d]" % (88 + 2 * ((j - 1) % 2), 89 + 2 * ((j - 1) % 2)), "v_accvgpr_write_b32 a%d, v34" % (AI + j - 1))
        M("s_nop 0", "v_cndmask_b32 v34, 0, v33, s[90:91]", "v_accvgpr_write_b32 a%d, v34" % (AI + 7))
    def grp_base(dst, g):
        A("s_bfe_u32 s%d, s%d, 0x%x" % (dst, sPk0 if g < 4 else sPk1, (8 << 16) | (8 * (g % 4))))
    order = [0, 1, 2, 3, 6, 7, 8]
    for i in order: SB[i]()
    late = [f for i, f in enumerate(SB) if i not in order]

    def dma_stage(kind, t, slot, tag, mixed=False):
        res = []
        for i in range(8):
            grp, j = i // 4, i % 4
            def f(grp=grp, j=j):
                if kind == "KV": base, sk, add, srd_, vd = sKVb, sKq + t, 32 * 3072, sWQ, vD1
                elif kind == "Q": base, sk, add, srd_, vd = sQb, sK2 + t, 32 * 3072, sWQ, vD1
                elif kind == "Pa": base, sk, add, srd_, vd = sGa, sKg + t, 32 * 3584, sGU, vD2
                elif kind == "Pb": base, sk, add, srd_, vd = sGb, sKg + t, 32 * 3584, sGU, vD2
                elif kind == "P1": base, sk, add, srd_, vd = sG1, sK2 + t, 64 * 3584, sGU, vD1
                if tag == "s0" and OPT["s0swap"]:
                    if j == 0:
                        M("s_lshr_b32 s90, s%d, 2" % sRB, "s_and_b32 s90, s90, 1", "s_xor_b32 s90, s90, %d" % grp, "s_lshl_b32 s91, s90, 12", "s_add_u32 m0, s%d, s91" % sLW,
                          "s_mul_i32 s90, s90, %d" % add, "s_add_u32 s%d, s%d, s%d" % (sTmp, base, sk), "s_add_u32 s%d, s%d, s90" % (sTmp, sTmp))
                elif j == 0 or mixed:
                    A("s_add_u32 m0, s%d, %d" % (sLW, slot * 32768 + grp * 4096))
                if j == 0 and not (tag == "s0" and OPT["s0swap"]):
                    if grp == 0: A("s_add_u32 s%d, s%d, s%d" % (sTmp, base, sk))
                    else: A("s_add_u32 s%d, s%d, %d" % (sTmp, sTmp, add))
                vm.issue("buffer_load_dwordx4 v%d, s[%d:%d], s%d offen offset:%d lds" % (vd[j], srd_, srd_ + 3, sTmp, j * 1024), tag)
            res.append(f)
        return res

    def touch(kind, t):
        base, sk, srd_, st = {"KV": (sKVb, sKq + t, sWQ, 3072), "Q": (sQb, sK2 + t, sWQ, 3072), "Pa": (sGa, sKg + t, sGU, 3584),
                              "Pb": (sGb, sKg + t, sGU, 3584), "P1": (sG1, sK2 + t, sGU, 3584)}[kind]
        def f():
            M("v_mul_u32_u24 v57, %d, v%d" % (st, vLane), "s_add_u32 s4, s%d, s%d" % (base, sk))
            vm.issue("buffer_load_dword v60, v57, s[%d:%d], s4 offen" % (srd_, srd_ + 3), "tch")
            if kind == "P1":
                A("s_add_u32 s4, s4, %d" % (64 * 3584))
                vm.issue("buffer_load_dword v60, v57, s[%d:%d], s4 offen" % (srd_, srd_ + 3), "tch")
        return f
    def quad(kind, t, slot, q):
        res = []
        sb = slot * 32768; bi = sb // 65536; so = sb % 65536
        for j in range(4):
            if kind in ("KV", "Pa", "Pb"):
                res.append((j, 8 * t + q, (vRA if j % 2 == 0 else vRB)[bi], so + (j >> 1) * 16384 + q * 2048, 1024))
            elif kind == "Q":
                kk = 2 * q + (j >> 1)
                res.append((j & 1, 16 * t + kk, (vRA if j % 2 == 0 else vRB)[bi], so + kk * 2048, 1024))
            else:
                kk = 2 * q + (j >> 1)
                res.append((j & 1, 16 * t + kk, vRP[bi], so + (j & 1) * 16384 + kk * 1024, 512))
        return res

    def rd(q4, j, buf, tag):
        _, _, ar, off, d2 = q4[j]
        lg.issue("ds_read_b64_tr_b16 %s, v%d offset:%d" % (a(buf * 16 + j * 4, 2), ar, off), tag)
        lg.issue("ds_read_b64_tr_b16 %s, v%d offset:%d" % (a(buf * 16 + j * 4 + 2, 2), ar, off + d2), tag)

    def store(P, soff, off, tag):
        if OPT.get("nostore") and tag != "sto":
            vm.ops.append("?" + tag); vm.ops.append(tag); vm.ops.pop(); vm.ops[-1] = tag if False else vm.ops[-1]
            A("s_nop 0"); vm.ops[-1] = tag; A("buffer_load_dword v28, off, s[%d:%d], 0" % (sWS, sWS + 3)); return
        vm.issue("buffer_store_dwordx4 %s, v%d, s[%d:%d], s%d offen offset:%d%s" % (v(P, 4), vL16, sWS, sWS + 3, soff, off, SC), tag)

    def I(text, cost=4): return (cost, (lambda t=text: A(t)))
    PK = [T + 8, T + 12]
    def st_swiglu(acc, ncf, uoff, sH, tag):
        els = []
        for cf in range(ncf):
            for i in range(16): els.append((acc + cf * 16 + i, acc + uoff + cf * 16 + i))
        N = len(els); out = []
        ta = lambda e: T + (e % 6)
        for e in range(N + 6):
            if 0 <= e - 1 < N: out.append(I("v_exp_f32 v%d, v%d" % (ta(e - 1), ta(e - 1)), 8))
            if e < N: out.append(I("v_mul_f32 v%d, v%d, v%d" % (ta(e), vC1, els[e][0])))
            if 0 <= e - 2 < N: out.append(I("v_fma_f32 v%d, v%d, v%d, v%d" % (ta(e - 2), ta(e - 2), vS2, vS2)))
            if 0 <= e - 3 < N: out.append(I("v_rcp_f32 v%d, v%d" % (ta(e - 3), ta(e - 3)), 8))
            if 0 <= e - 1 < N: out.append(I("v_mul_f32 v%d, v%d, v%d" % (els[e - 1][1], els[e - 1][0], els[e - 1][1])))
            if 0 <= e - 4 < N: out.append(I("v_mul_f32 v%d, v%d, v%d" % (els[e - 4][1], ta(e - 4), els[e - 4][1])))
            k = e - 5
            if 0 <= k < N and k % 2 == 1:
                fr = k // 8
                out.append(I("v_cvt_pk_bf16_f32 v%d, v%d, v%d" % (PK[fr % 2] + (k % 8) // 2, els[k - 1][1], els[k][1])))
                if k % 8 == 7: out.append((-8, (lambda fr=fr: store(PK[fr % 2], sH, fr * 1024, tag))))
        return out
    def st_kv(acc):
        out = [(2, lambda: M("s_lshl_b32 s%d, s%d, 18" % (sSt, sIQ), "s_lshl_b32 s%d, s%d, 10" % (sSt + 1, sBLK),
                             "s_add_u32 s%d, s%d, s%d" % (sSt + 2, sSt, sSt + 1), "s_add_u32 s%d, s%d, s%d" % (sSt, sSt + 2, sSt + 1)))]
        RT = lambda i: (32 + i) if i < 8 else (40 + i)
        out.append(I("v_lshrrev_b32 v27, 5, v%d" % vLane)); out.append(I("v_lshlrev_b32 v27, 4, v27"))
        bps = [(-4, (lambda k=k: lg.issue("ds_bpermute_b32 v%d, v27, v%d offset:%d" % (RT(k), vRs, ((k // 4) * 8 + k % 4) * 4), "rt"))) for k in range(16)]
        n = 0
        for f in (0, 1, 2, 3):
            for hf in range(2):
                r0 = acc + f * 16 + hf * 8; P = PK[n % 2]; n += 1
                if f == 2 and hf == 0: out.append((2, lambda: lg.wait("rt")))
                for i in range(8):
                    out.append(I("v_mul_f32 v%d, v%d, v%d" % (r0 + i, vRs if f < 2 else RT(hf * 8 + i), r0 + i)))
                    if i % 2 == 1 and bps: out.append(bps.pop(0))
                for i in range(4): out.append(I("v_cvt_pk_bf16_f32 v%d, v%d, v%d" % (P + i, r0 + 2 * i, r0 + 2 * i + 1)))
                def g(P=P, f=f, hf=hf):
                    if f < 2:
                        A("s_add_u32 s%d, s%d, 0x%x" % (sSt + 3, sSt + 2, KF + (2 * f + hf) * 65536)); store(P, sSt + 3, 0, "stkv")
                    else:
                        if hf == 0: A("s_add_u32 s%d, s%d, 0x%x" % (sSt + 3, sSt, VF + (f - 2) * 131072))
                        store(P, sSt + 3, hf * 1024, "stkv")
                out.append((-8, g))
        return out
    def st_q(acc):
        out = []; n = 0
        for f in range(2):
            for hf in range(2):
                r0 = acc + f * 16 + hf * 8; P = PK[n % 2]; n += 1
                for i in range(8): out.append(I("v_mul_f32 v%d, v%d, v%d" % (r0 + i, vQs, r0 + i)))
                for i in range(4): out.append(I("v_cvt_pk_bf16_f32 v%d, v%d, v%d" % (P + i, r0 + 2 * i, r0 + 2 * i + 1)))
                def g(P=P, f=f, hf=hf):
                    A("s_add_u32 s%d, s%d, 0x%x" % (sSt + 3, sSt + 2, QF + (2 * f + hf) * 65536)); store(P, sSt + 3, 0, "stq")
                out.append((-8, g))
        return out
    def ctr_mfma(p, k):
        A("%s %s, %s, %s, %s" % (MF, v(DT, 16), a(AI + 4 * k, 4), v(Xraw(2 * p + k), 4), v(CM, 16) if k == 0 else v(DT, 16)))
    def ctr_cvt(p):
        out = []
        x = Xraw(2 * p)
        for i in range(8): out.append(I("v_cvt_pk_bf16_f32 v%d, v%d, v%d" % (x + i, DT + 2 * i, DT + 2 * i + 1)))
        if p >= 8:
            acc = [I("v_accvgpr_write_b32 a%d, v%d" % (192 + 8 * (p - 8) + i, x + i)) for i in range(8)]
            out = out[:4] + [acc[0], out[4], acc[1], out[5], acc[2], out[6], acc[3], out[7]]
            lagq.extend(acc[4:])
        return out
    lagq = []

    def code_touch(sym, nl):
        def f():
            if not OPT["pf_code"]: return
            L = A.newlabel("L_ct")
            M("s_cmp_lg_u32 s%d, 0" % sW, "s_cbranch_scc1 %s" % L,
              "s_and_b32 s3, s%d, 15" % sIdx, "s_mul_i32 s3, s3, %d" % (nl * 128), "s_add_u32 s3, s3, OFF_%s" % sym,
              "v_lshlrev_b32 v14, 7, v%d" % vLane, "v_add_u32 v14, s3, v14", "v_min_u32 v14, CODE_SPAN, v14", "v_mov_b32 v15, s101",
              "v_add_co_u32 v14, vcc, s100, v14", "v_addc_co_u32 v15, vcc, 0, v15, vcc", "s_mov_b64 exec, %d" % ((1 << nl) - 1))
            A("global_load_dword v60, v[14:15], off")
            A("s_mov_b64 exec, -1")
            A.label(L)
            vm.ops.append("?ct")
        return f
    LANES = {"pk": 0xfff, "pq": 1, "pe": 0xff, "ph": 0xff, "po": 0xff}
    vPo = 31
    def publish(soff):
        A("s_mov_b64 exec, 0xffff")
        vm.issue("buffer_store_dwordx2 %s, v%d, s[%d:%d], s%d offen%s" % (v(vTag, 2), vL8, sWS, sWS + 3, soff, SC), "?flag")
        A("s_mov_b64 exec, -1")
    def poll_issue(voff, soff, tag, vF=vF):
        A("s_mov_b64 exec, 0x%x" % LANES[tag])
        vm.issue("buffer_load_dwordx2 %s, v%d, s[%d:%d], s%d offen sc1" % (v(vF, 2), voff, sWS, sWS + 3, soff), tag)
        A("s_mov_b64 exec, -1")
    def poll_check(voff, soff, tag, vF=vF):
        L = A.newlabel("L_poll"); D = A.newlabel("L_polld")
        chk = ["v_cmp_eq_u64 vcc, %s, %s" % (v(vF, 2), v(vTag, 2)), "s_and_b64 vcc, vcc, s[%d:%d]" % (sMask, sMask + 1),
               "s_cmp_eq_u64 vcc, s[%d:%d]" % (sMask, sMask + 1), "s_cbranch_scc1 %s" % D]
        stamp("pre_" + tag, True)
        vm.wait(tag)
        stamp("vm_" + tag, True)
        M(*chk)
        A("s_mov_b32 s%d, 0x20000" % sSpin)
        A.label(L)
        A("s_mov_b64 exec, 0x%x" % LANES[tag])
        A("buffer_load_dwordx2 %s, v%d, s[%d:%d], s%d offen sc1" % (v(vF, 2), voff, sWS, sWS + 3, soff))
        M("s_mov_b64 exec, -1", "s_waitcnt vmcnt(0)")
        M(*chk)
        M("s_sub_u32 s%d, s%d, 1" % (sSpin, sSpin), "s_cmp_lg_u32 s%d, 0" % sSpin, "s_cbranch_scc1 %s" % L)
        A.label(D)
        stamp("ok_" + tag, True)

    def Breg(p, cf):
        if p < 28: return a(32 + p * 8 + cf * 4, 4)
        return a(((p - 28) % 2) * 8 + cf * 4, 4)
    ORD = [[0, 1, 2, 3, 4, 5, 6, 7, 8, 9, 10, 11, 12, 13], [0, 1, 4, 5, 8, 9, 2, 3, 6, 7, 10, 11, 12, 13]][OPT["b2ord"]]
    def b2_dma(i):
        n = ORD[i]
        res = []
        for j in range(4):
            def f(j=j):
                if j == 0:
                    if i >= 2: lg.wait("b2r%d" % (i - 2))
                    A("s_add_u32 m0, s%d, %d" % (sStg, (i % 2) * 4096))
                    if n % 2 == 0:
                        grp_base(sBg, n // 2)
                        M("s_lshl_b32 s%d, s%d, 14" % (sBg, sBg), "s_add_u32 s%d, s%d, s%d" % (sBg, sBg, sBd))
                    else: A("s_add_u32 s%d, s%d, 32768" % (sBg, sBg))
                vm.issue("buffer_load_dwordx4 v%d, s[%d:%d], s%d offen offset:%d lds" % (vDB[j], sDN, sDN + 3, sBg, j * 1024), "b2d%d" % i)
            res.append(f)
        return res
    def b2_read(i):
        n = ORD[i]
        res = []
        for kk in range(2):
            for cf in range(2):
                for hh in range(2):
                    def f(kk=kk, cf=cf, hh=hh):
                        if kk == 0 and cf == 0 and hh == 0: vm.wait("b2d%d" % i)
                        R = vBA if cf == 0 else vBB
                        d = 32 + (2 * n + kk) * 8 + cf * 4 + 2 * hh
                        lg.issue("ds_read_b64_tr_b16 %s, v%d offset:%d" % (a(d, 2), R, (i % 2) * 4096 + kk * 2048 + hh * 1024), "b2r%d" % i)
                    f.is_ds = True
                    res.append(f)
        return res
    sWl = 73
    def wo2():
        vm.issue("buffer_load_dwordx4 v%d, s[%d:%d], s%d offen lds" % (vDB[0], sWO, sWO + 3, sTmp), "wo")
        vm.issue("buffer_load_dwordx4 v%d, s[%d:%d], s%d offen offset:1024 lds" % (vDB[1], sWO, sWO + 3, sTmp), "wo")
        M("s_add_u32 m0, m0, 2048", "s_add_u32 s%d, s%d, 16384" % (sTmp, sTmp))

    KVB = 65536
    def kv_dma():
        res = []
        def pre():
            M("s_lshl_b32 s3, s%d, 17" % sP, "s_lshl_b32 s4, s%d, 12" % sRB, "s_lshl_b32 s5, s%d, 16" % sW, "s_add_u32 s5, s5, s4", "s_add_u32 s5, s5, 0x%x" % (KF - 8192),
              "s_lshl_b32 s6, s4, 1", "s_mul_i32 s7, s%d, 12288" % sW, "s_add_u32 s6, s6, s7", "s_add_u32 s6, s6, 0x%x" % (VF - 16384 - 24576),
              "s_cmp_ge_u32 s%d, 2" % sW, "s_cselect_b32 s5, s6, s5", "s_add_u32 s5, s5, s3")
        res.append(pre)
        for i in range(12):
            def f(i=i):
                if i % 4 == 0: M("s_add_u32 m0, s7, %d" % (KVB + i * 1024), "s_add_u32 s6, s5, %d" % (i * 1024))
                vm.issue("buffer_load_dwordx4 v%d, s[%d:%d], s6 offen offset:%d%s lds" % (vL16, sWS, sWS + 3, (i % 4) * 1024, SC), "kv")
            res.append(f)
        return res

    Q0, Q1, K0, K1_ = 192, 196, 200, 204
    V0, V1 = 208, 216
    P = 224
    S0, S1, O0, O1, MD, ME = 128, 144, 160, 176, 232, 64

    def bulk():
        res = []
        if not OPT["bulk"]: return res
        def f0():
            M("s_lshl_b32 s3, s2, 2", "s_add_u32 s3, s3, s%d" % sW, "s_mul_i32 s4, s3, 1536", "s_and_b32 s5, s%d, 1" % sW, "s_lshl_b32 s6, s2, 1", "s_add_u32 s6, s6, s5", "s_mul_i32 s6, s6, 3584")
            vm.issue("buffer_load_dword v60, v%d, s[%d:%d], s4 offen" % (vL16, sWQ, sWQ + 3), "bulk")
        res.append(f0)
        res.append(lambda: (A("s_mov_b32 exec_hi, 0"), vm.issue("buffer_load_dword v60, v%d, s[%d:%d], s4 offen offset:1024" % (vL16, sWQ, sWQ + 3), "bulk"), A("s_mov_b32 exec_hi, -1")))
        for j in range(3):
            res.append(lambda j=j: vm.issue("buffer_load_dword v60, v%d, s[%d:%d], s6 offen offset:%d" % (vL16, sGU, sGU + 3, j * 1024), "bulk"))
        res.append(lambda: (A("s_mov_b32 exec_hi, 0"), vm.issue("buffer_load_dword v60, v%d, s[%d:%d], s6 offen offset:3072" % (vL16, sGU, sGU + 3), "bulk"), A("s_mov_b32 exec_hi, -1")))
        if OPT["bulkb"] == 1:
            def g0():
                M("s_mul_i32 s4, s3, 1792", "s_lshl_b32 s5, s3, 9")
                vm.issue("buffer_load_dword v60, v%d, s[%d:%d], s4 offen" % (vL16, sDN, sDN + 3), "bulk")
            res.append(g0)
            res.append(lambda: vm.issue("buffer_load_dword v60, v%d, s[%d:%d], s4 offen offset:768" % (vL16, sDN, sDN + 3), "bulk"))
            res.append(lambda: (A("s_mov_b32 exec_hi, 0"), vm.issue("buffer_load_dword v60, v%d, s[%d:%d], s5 offen" % (vL16, sWO, sWO + 3), "bulk"), A("s_mov_b32 exec_hi, -1")))
        return res

    def stats(stage0, stages):
        if OPT["t0"]:
            M("v_mov_b32 v61, v57") if False else None
        if OPT["t0"]:
            kind, t = stages[0]
            base, sk, srd_, st = {"KV": (sKVb, sKq + t, sWQ, 3072), "Pa": (sGa, sKg + t, sGU, 3584)}[kind]
            M("v_mul_u32_u24 v38, %d, v%d" % (st, vLane), "s_add_u32 s4, s%d, s%d" % (base, sk))
            vm.issue("buffer_load_dword v60, v38, s[%d:%d], s4 offen" % (srd_, srd_ + 3), "tch")
        if OPT["bulk"] == 3:
            A("v_lshlrev_b32 v%d, 4, v%d" % (vL16, vLane))
            M("s_mov_b32 s90, s5", "s_mov_b32 s91, s6")
            for f in bulk(): f()
            M("s_mov_b32 s5, s90", "s_mov_b32 s6, s91")
        n0 = OPT["s0first"]
        for f in stage0[:n0]: f()
        for f in late: f()
        stamp("setup")
        rest = list(xl) + stage0[n0:] + (bulk() if OPT["bulk"] == 1 else [])
        for _ in range(OPT["xahead"]): rest.pop(0)()
        def rdx(c):
            vm.wait("x%d" % c)
            if OPT.get("xst"): stamp("x%d" % c)
            for sp in range(4):
                lg.issue("ds_read_b128 %s, v%d offset:%d" % (v(Xraw(4 * c + sp), 4), vXR + sp, c * 4096), "xr%d" % c)
        rdx(0)
        for c in range(8):
            for _ in range(4 if c < 4 else 2):
                if rest: rest.pop(0)()
            if c + 1 < 8: rdx(c + 1)
            lg.wait("xr%d" % c)
            for i in range(16):
                x = Xraw(4 * c) + i
                A("v_dot2_f32_bf16 v%d, v%d, s%d, v%d" % (vSt + i % 4, x, sOne, vSt + i % 4))
                A("v_dot2_f32_bf16 v%d, v%d, v%d, v%d" % (vSt + 4 + i % 4, x, x, vSt + 4 + i % 4))
                if i == 7 and c >= 4:
                    for _ in range(2):
                        if rest: rest.pop(0)()
        while rest: rest.pop(0)()
        stamp("stats")
        if OPT["ptouch"]: A("s_waitcnt lgkmcnt(0)")
        vm.wait("ep")
        A("s_barrier")

    def ln_scalar(dm):
        M("s_mov_b32 s4, 0x9e3779b9", "v_add_co_u32 v%d, vcc, 0x7f4a7c15, v%d" % (vTag, vTag), "v_mov_b32 v40, s4")
        seq = ["v_add_f32 v48, v48, v49", "v_add_f32 v50, v50, v51", "v_addc_co_u32 v%d, vcc, v40, v%d, vcc" % (vTag + 1, vTag + 1),
               "v_add_f32 v52, v52, v53", "v_add_f32 v54, v54, v55",
               "v_add_f32 v48, v48, v50", "v_add_f32 v52, v52, v54",
               "v_mov_b32 v49, v48", "v_mov_b32 v53, v52", None,
               "v_permlane32_swap_b32 v48, v49", "v_permlane32_swap_b32 v52, v53",
               "v_add_f32 v48, v48, v49", "v_add_f32 v52, v52, v53",
               "v_mul_f32 v48, %s, v48" % f32(1.0 / 512), "v_mul_f32 v52, %s, v52" % f32(1.0 / 512),
               "v_fma_f32 v52, -v48, v48, v52", "v_max_f32 v52, 0, v52",
               "v_cvt_pk_bf16_f32 v48, v48, v52",
               "v_and_b32 v52, 0xffff0000, v48", "v_lshlrev_b32 v48, 16, v48",
               "v_add_f32 v52, %s, v52" % f32(1e-5),
               "v_cvt_pk_bf16_f32 v52, v52, v52", "v_and_b32 v52, 0xffff0000, v52",
               "v_sqrt_f32 v52, v52", None,
               "v_cvt_pk_bf16_f32 v52, v52, v52", "v_and_b32 v%d, 0xffff0000, v52" % vSd,
               "v_rcp_f32 v%d, v%d" % (vRs, vSd)]
        k_ = seq.index("v_add_f32 v52, %s, v52" % f32(1e-5))
        seq[k_:k_] = ["v_xor_b32 v%d, 0x80000000, v48" % CM]
        fillm = ["v_mov_b32 v%d, v%d" % (CM + i, CM) for i in range(1, 16)]
        tailseq = seq[k_ + 1:]; seq = seq[:k_ + 1]
        for x_ in tailseq:
            seq.append(x_); seq += fillm[:2]; fillm = fillm[2:]
        seq += fillm
        for s_ in seq:
            if s_ is None:
                if dm: dm.pop(0)()
            else: A(s_)

    tyn = [0]
    B2PLAN = [[[0], [1], [2], [3], [4], [5], [6], [7, 8], [9, 10], [11]],
              [[0], [1], [2], [3], [4], [5], [6], [7], [8, 9], [10, 11]],
              [[0], [1], [2], [3], [4, 5], [6, 7], [8], [9], [10], [11]],
              [[], [0], [1], [2], [3], [4, 5], [6, 7], [8], [9, 10], [11]],
              [[0], [1], [2], [3], [4], [5], [6], [7], [8], [9]],
              [[], [0, 1], [2], [3, 4], [5], [6], [7], [], [8], [9]],
              [[], [0, 1], [2], [3, 4], [5], [6], [7], [8], [9, 10], [11]]][OPT["plan"]]
    NP1 = max(max(x) for x in B2PLAN if x) + 1
    def phase1(ty, stages, accs, streams, tail):
        tyn[0] = ty
        stats(dma_stage(stages[0][0], stages[0][1], 0, "s0"), stages)
        M("s_and_b32 s4, s%d, 1" % sW, "s_lshl_b32 s4, s4, 6", "v_xor_b32 v%d, s4, v%d" % (vBA, vBA), "v_xor_b32 v%d, s4, v%d" % (vBB, vBB))
        dm = []
        for sidx in range(1, 4): dm += dma_stage(stages[sidx][0], stages[sidx][1], sidx, "s%d" % sidx)
        if OPT["bulk"] == 2: dm = dm[:8] + bulk() + dm[8:]
        if OPT["t1"]:
            firsts = [st_ for i_, st_ in enumerate(stages) if i_ > 0 and st_[1] == 0]
            dm = dm[:OPT["t1"] - 1] + [touch(*x_) for x_ in firsts] + dm[OPT["t1"] - 1:]
        for j in range(1, 4): A("v_add_u32 v%d, %d, v61" % (vDB[j], j * 7168))
        A("v_mov_b32 v%d, v61" % vDB[0])
        hold = []
        if not OPT["lndma"]: hold, dm = dm, []
        ln_scalar(dm)
        ctr_mfma(0, 0); ctr_mfma(0, 1)
        for _ in range(4):
            if dm: dm.pop(0)()
        for c, f in ctr_cvt(0): f()
        stamp("ln")
        vm.wait("s0")
        if OPT.get("xst"): stamp("s0")
        A("s_barrier")
        q4 = quad(stages[0][0], stages[0][1], 0, 0)
        n = 0
        for j in range(4): rd(q4, j, 0, "w%d_%d" % (n, j // 2))
        buf = 0
        wpend = dm + hold
        fill = []; fill_gaps = 0; fill_tot = 0; fill_done = 0; gap = 0
        for sidx, (kind, t) in enumerate(stages):
            slot = sidx % 4
            vm.hook = stamp if (OPT.get("wst") and OPT["wst"] <= sidx <= OPT["wst"] + 3) else None
            bx = []
            for n_ in B2PLAN[sidx]: bx += (b2_read(n_ - 2) if n_ >= 2 else []) + b2_dma(n_)
            if len(B2PLAN[sidx]) == 2:
                h_ = len(bx) // 2
                ex = bx[:h_] + list(wpend) + bx[h_:]
            else: ex = bx + list(wpend) if sidx else list(wpend) + bx
            wpend = []
            if OPT["bulkb"] >= 2 and sidx == OPT["bulkb"] - 2:
                def g0():
                    M("s_lshl_b32 s3, s2, 2", "s_add_u32 s3, s3, s%d" % sW, "s_mul_i32 s4, s3, 1792", "s_lshl_b32 s5, s3, 9")
                    vm.issue("buffer_load_dword v60, v%d, s[%d:%d], s4 offen" % (vL16, sDN, sDN + 3), "bulk")
                ex += [g0, lambda: vm.issue("buffer_load_dword v60, v%d, s[%d:%d], s4 offen offset:768" % (vL16, sDN, sDN + 3), "bulk"),
                       lambda: (A("s_mov_b32 exec_hi, 0"), vm.issue("buffer_load_dword v60, v%d, s[%d:%d], s5 offen" % (vL16, sWO, sWO + 3), "bulk"), A("s_mov_b32 exec_hi, -1"))]
            if sidx == 1 and OPT["satom"]:
                def at():
                    L = A.newlabel("L_at")
                    M("s_mov_b32 s%d, 1" % (sDBG + 2), "s_cmp_lg_u32 s%d, 0" % sW, "s_cbranch_scc1 %s" % L, "s_atomic_add s%d, s[%d:%d], 0 glc" % (sDBG + 2, sDBG, sDBG + 1))
                    A.label(L)
                ex.append(at)
            if sidx == 4: A.label("L_mid%d" % ty)
            if sidx == 2: ex.append(code_touch("L_mid%d" % ty, 6))
            if sidx == 7: ex.append(code_touch("L_ATT", 8))
            if sidx == OPT["wopf"]:
                def wp(j):
                    if j == 0: M("s_and_b32 s3, s%d, 3" % sR, "s_lshl_b32 s3, s3, 15", "s_add_u32 s%d, s3, s%d" % (sSpin, sBo), "s_sub_u32 s%d, s%d, 0" % (sSpin, sSpin))
                    vm.issue("buffer_load_dword v60, v%d, s[%d:%d], s%d offen offset:%d" % (vDB[j], sWO, sWO + 3, sSpin, j * 1024), "wopf")
                ex += [(lambda j=j: wp(j)) for j in range(4)]
            if ty == 0 and sidx == 6:
                def pubkv():
                    vm.wait("stkv")
                    M("s_lshl_b32 s3, s%d, 15" % sIQ, "s_lshl_b32 s4, s%d, 11" % sRB, "s_add_u32 s3, s3, s4", "s_lshl_b32 s4, s%d, 7" % sW, "s_add_u32 s3, s3, s4", "s_add_u32 s3, s3, 0x%x" % FK)
                    publish(3)
                ex.insert(12, pubkv)
            if ty == 0 and sidx == 8:
                def pubq():
                    vm.wait("stq")
                    M("s_lshl_b32 s3, s%d, 15" % sIQ, "s_lshl_b32 s4, s%d, 11" % sRB, "s_add_u32 s3, s3, s4", "s_lshl_b32 s4, s%d, 7" % sW, "s_add_u32 s3, s3, s4", "s_add_u32 s3, s3, 0x%x" % FQ)
                    publish(3)
                ex.insert(0, pubq)
            if ty == 1 and sidx == 8:
                def pube():
                    vm.wait("sta")
                    M("s_lshl_b32 s3, s%d, 11" % sBLK, "s_lshl_b32 s4, s%d, 7" % sP, "s_add_u32 s3, s3, s4", "s_add_u32 s3, s3, 0x%x" % FE)
                    publish(3)
                ex.insert(len(ex) // 2, pube)
            if sidx == OPT["kvst"] - 1:
                def pk():
                    M("s_lshr_b32 s3, s%d, 1" % sP, "s_lshl_b32 s3, s3, 15", "s_lshl_b32 s4, s%d, 11" % sRB, "s_add_u32 s3, s3, s4", "s_add_u32 s%d, s3, 0x%x" % (sFl, FK - 4096),
                      "s_lshl_b32 s4, s%d, 2" % sRB, "s_sub_i32 s4, 8, s4", "s_max_i32 s4, s4, 0",
                      "s_lshl_b32 s%d, -1, s4" % sMask, "s_and_b32 s%d, s%d, 0xfff" % (sMask, sMask), "s_mov_b32 s%d, 0" % (sMask + 1))
                    poll_issue(vPo, sFl, "pk")
            if sidx == OPT["kvst"]:
                ex = [lambda: poll_check(vPo, sFl, "pk")] + kv_dma() + ex
            if sidx == OPT["kvst"] - 1: ex.insert(1, pk)
            if sidx == 9:
                def pq():
                    M("s_lshr_b32 s3, s%d, 1" % sP, "s_lshl_b32 s3, s3, 15", "s_lshl_b32 s4, s%d, 11" % sRB, "s_add_u32 s3, s3, s4", "s_lshl_b32 s4, s%d, 7" % sW, "s_add_u32 s3, s3, s4", "s_add_u32 s%d, s3, 0x%x" % (sFl, FQ),
                      "s_mov_b32 s%d, 1" % sMask, "s_mov_b32 s%d, 0" % (sMask + 1))
                    poll_issue(vPo, sFl, "pq")
                ex.insert(8, pq)
            if sidx in streams:
                if fill: flush_held()
                while fill: fill.pop(0)[1]()
                fill, ns = streams[sidx]
                fill = list(fill); fill_gaps = ns * 32 - 6; fill_tot = sum(abs(c) for c, _ in fill); fill_done = 0; gap = -3
            nex = len(ex); exi = 0
            for q in range(8):
                cur = quad(kind, t, slot, q)
                if q == 7:
                    if sidx + 1 < len(stages):
                        vm.wait("s%d" % (sidx + 1))
                        if vm.hook: stamp("preb")
                        A("s_barrier")
                        if vm.hook: stamp("bar")
                        nxt = quad(stages[sidx + 1][0], stages[sidx + 1][1], (sidx + 1) % 4, 0)
                        if sidx >= 1 and sidx + 3 < len(stages):
                            wpend = dma_stage(stages[sidx + 3][0], stages[sidx + 3][1], (sidx + 3) % 4, "s%d" % (sidx + 3))
                    else:
                        nxt = None
                else:
                    nxt = quad(kind, t, slot, q + 1)
                pc = (8 * sidx + q) // 2 + 1
                if q % 2 == 0: lag_now = list(lagq); del lagq[:]
                if sidx < 4 and pc < 16 and q % 2 == 0: cq = ctr_cvt(pc)
                docm = sidx < 4 and pc < 16
                for j in range(4):
                    acc, xi, _, _, _ = cur[j]
                    if j % 2 == 0: lg.wait("w%d_%d" % (n, j // 2))
                    d = v(accs[sidx] + acc * 16, 16)
                    c = d if xi > 0 else "0"
                    wf, xf = a(buf * 16 + j * 4, 4), Xr(xi)
                    if kind == "KV" and acc >= 2: A("%s %s, %s, %s, %s" % (MF, d, xf, wf, c))
                    else: A("%s %s, %s, %s, %s" % (MF, d, wf, xf, c))
                    used = 4 if held else 0
                    flush_held()
                    if nxt is not None: rd(nxt, j, buf ^ 1, "w%d_%d" % (n + 1, j // 2))
                    g_in = q * 4 + j
                    due = lambda: exi < nex and exi * 29 <= g_in * nex
                    isds = lambda: getattr(ex[exi], "is_ds", False)
                    if fill and fill[0][0] == -4:
                        c_, f = fill.pop(0); f(); fill_done += 4; used += 4
                    elif due() and isds():
                        ex[exi](); exi += 1; used += 4
                        if exi < nex and exi * 29 <= (g_in - 3) * nex and isds():
                            ex[exi](); exi += 1; used += 4
                    if fill and fill[0][0] == -8:
                        c_, f = fill.pop(0); run_hold(f); fill_done += 8
                    elif due() and not isds():
                        run_hold(ex[exi]); exi += 1; used += 2
                    if q % 2 == 0 and lag_now: lag_now.pop(0)[1]()
                    if docm:
                        g8 = (q % 2) * 4 + j
                        if g8 in (0, 1): ctr_mfma(pc, g8)
                        if g8 >= 4:
                            k = -(-len(cq) // (8 - g8))
                            for _ in range(k): cq.pop(0)[1]()
                    if sidx == 3 and q == 7 and j == 0:
                        M("v_mul_f32 v%d, %s, v%d" % (vC1, f32(-LOG2E), vRs), "v_mul_f32 v%d, v%d, v%d" % (vS2, vSd, vSd), "v_mul_f32 v%d, %s, v%d" % (vQs, f32(0.25 * LOG2E), vRs))
                    if sidx == 3 and q == 7 and j == 1:
                        M("v_lshrrev_b32 v%d, 2, v%d" % (vPo, vLane), "v_and_b32 v27, 3, v%d" % vLane, "v_lshlrev_b32 v27, 7, v27", "v_lshl_add_u32 v%d, v%d, 11, v27" % (vPo, vPo))
                    gap += 1
                    if fill and gap > 0:
                        lag = fill_tot * gap / fill_gaps - fill_done
                        lim = max(OPT["budget"], fill_tot / fill_gaps + 4)
                        while fill and fill[0][0] > 0 and lag > 0 and (used + fill[0][0] <= lim or lag > 24):
                            c_, f = fill.pop(0); f(); fill_done += c_; used += c_; lag -= c_
                buf ^= 1; n += 1
            while exi < nex:
                flush_held(); ex[exi](); exi += 1
            if OPT["stamp"]: flush_held()
            stamp("st%d" % sidx, sidx not in (3, 5, 7, 9))
        vm.hook = None
        flush_held()
        while fill: fill.pop(0)[1]()
        poll_check(vPo, sFl, "pq")
        M("s_lshl_b32 s3, s%d, 17" % sP, "s_lshl_b32 s4, s%d, 10" % sBLK, "s_add_u32 s4, s4, s3", "s_add_u32 s4, s4, 0x%x" % QF, "s_add_u32 s5, s4, 65536")
        vm.issue("buffer_load_dwordx4 %s, v%d, s[%d:%d], s4 offen%s" % (v(Q0, 4), vL16, sWS, sWS + 3, SC), "q")
        vm.issue("buffer_load_dwordx4 %s, v%d, s[%d:%d], s5 offen%s" % (v(Q1, 4), vL16, sWS, sWS + 3, SC), "q")
        M("s_lshl_b32 s%d, s%d, 12" % (sXo, sR), "s_lshl_b32 s3, s%d, 9" % sW, "s_add_u32 s%d, s%d, s3" % (sXo, sXo), "s_add_u32 s%d, s%d, 0x%x" % (sXo, sXo, FE))
        poll_issue(vPo, sXo, "pe", 14)
        for f in b2_read(NP1 - 2): f()
        for c_, f in tail: f()
        stamp("tail")

    M("s_cmp_eq_u32 s%d, 0" % sTy, "s_cbranch_scc0 L_HH")
    sv, sl, sn = vm.save(), lg.save(), nst[0]
    phase1(0, [("KV", t) for t in range(4)] + [("Q", t) for t in range(2)] + [("Pa", t) for t in range(4)],
           [ACA] * 4 + [ACB] * 2 + [ACA] * 4,
           {4: (st_kv(ACA), 2), 6: (st_q(ACB), 1)}, st_swiglu(ACA, 2, 32, sHa, "sth"))
    A("s_branch L_ATT")
    A.label("L_HH")
    vm.load(sv); lg.load(sl); nst[0] = sn
    phase1(1, [("Pa", t) for t in range(4)] + [("Pb", t) for t in range(4)] + [("P1", t) for t in range(2)],
           [ACA] * 4 + [ACB] * 4 + [ACA] * 2,
           {4: (st_swiglu(ACA, 2, 32, sHa, "sta"), 4), 8: (st_swiglu(ACB, 2, 32, sHb, "sth"), 2)}, st_swiglu(ACA, 1, 16, sH1, "sth"))
    A.label("L_ATT")
    vKA, vVA = 6, 7
    M("v_and_b32 v40, 31, v%d" % vLane, "v_lshrrev_b32 v41, 5, v%d" % vLane, "v_lshlrev_b32 v41, 2, v41", "v_sub_u32 v40, v40, v41",
      "v_mov_b32 v41, 0xff800000", "v_mov_b32 v42, 0")
    for rg in range(16):
        c = (rg // 4) * 8 + rg % 4
        A("v_cmp_le_i32 s[%d:%d], %d, v40" % (4 + 2 * (rg % 2), 5 + 2 * (rg % 2), c))
        A("v_mov_b32 v%d, 0x3f803f80" % (V0 + rg))
        if rg > 0:
            pr = rg - 1
            A("v_cndmask_b32 v%d, v41, v42, s[%d:%d]" % (MD + pr, 4 + 2 * (pr % 2), 5 + 2 * (pr % 2)))
            A("v_cndmask_b32 v%d, v42, v41, s[%d:%d]" % (ME + pr, 4 + 2 * (pr % 2), 5 + 2 * (pr % 2)))
    M("s_mov_b32 s%d, 0x0000ffff" % sE0, "s_mov_b32 s%d, 0x0000ffff" % (sE0 + 1))
    M("v_cndmask_b32 v%d, v41, v42, s[6:7]" % (MD + 15), "v_cndmask_b32 v%d, v42, v41, s[6:7]" % (ME + 15))
    M("s_mov_b32 s%d, 0xffff0000" % sE1, "s_mov_b32 s%d, 0xffff0000" % (sE1 + 1))
    M("s_sub_i32 s%d, 8, s%d" % (sI0, sBLK), "s_max_i32 s%d, s%d, 0" % (sI0, sI0))
    M("s_add_u32 s4, s%d, s%d" % (sI0, sW), "s_lshl_b32 s5, s4, 10", "s_add_u32 s5, s5, %d" % KVB, "v_add_u32 v%d, s5, v%d" % (vKA, vL16),
      "s_lshl_b32 s5, s4, 11", "s_add_u32 s5, s5, %d" % (KVB + 24576), "v_add_u32 v%d, s5, v%d" % (vVA, vL16),
      "v_mov_b32 v12, v%d" % vKA, "v_mov_b32 v13, v%d" % vVA)
    A("v_mov_b32 v%d, 1" % vRet)
    M("s_lshl_b32 s3, s%d, 11" % sBLK, "s_lshl_b32 s4, s%d, 7" % sP, "s_add_u32 s3, s3, s4", "s_add_u32 s%d, s3, 0x%x" % (sFl, FH))
    D2 = OPT["d2"]
    M("s_lshl_b32 s3, s%d, 1" % sR, "s_lshr_b32 s4, s%d, 1" % sW, "s_add_u32 s5, s3, s4", "s_xor_b32 s6, s5, 1",
      "s_mul_i32 s%d, s5, %d" % (sAd, 144 * 1024), "s_mul_i32 s%d, s6, %d" % (sAd + 1, 144 * 1024),
      "s_lshl_b32 s4, s%d, 13" % sW, "s_add_u32 s4, s4, %d" % (112 * 1024), "s_add_u32 s%d, s%d, s4" % (sAo, sAd), "s_add_u32 s%d, s%d, s4" % (sAo + 1, sAd + 1),
      "s_mov_b32 s%d, 0xcc" % sMask, "s_mov_b32 s%d, 0" % (sMask + 1))
    sAg = 78
    pool = [64, 68, 72, 76] + list(range(192, 256, 4))
    assert len(pool) >= 2 * D2
    def AFr(ks, rf):
        if ks < 6: return v(80 + ks * 8 + rf * 4, 4)
        if ks < 8: return a(16 + (ks - 6) * 8 + rf * 4, 4)
        return v(pool[((ks - 8) % D2) * 2 + rf], 4)
    def loadA(ks):
        kk = ks if ks < 28 else ks - 28
        if kk % 4 == 0:
            if ks < 28:
                grp_base(sAg, ks // 4)
                M("s_lshl_b32 s%d, s%d, 10" % (sAg, sAg), "s_add_u32 s%d, s%d, s%d" % (sAg + 1, sAg, sAd + 1), "s_add_u32 s%d, s%d, s%d" % (sAg, sAg, sAd))
            else:
                M("s_add_u32 s%d, s%d, %d" % (sAg, sAo, kk * 1024), "s_add_u32 s%d, s%d, %d" % (sAg + 1, sAo + 1, kk * 1024))
        for rf in range(2):
            vm.issue("buffer_load_dwordx4 %s, v%d, s[%d:%d], s%d offen offset:%d%s" % (AFr(ks, rf), vL16, sWS, sWS + 3, sAg + rf, (kk % 4) * 1024, SC), "a%d" % ks)
    LA = lambda ks: (lambda: loadA(ks))
    M("s_lshl_b32 s%d, s%d, 14" % (sSt, sW), "s_mov_b32 s%d, s%d" % (sWl, sSt), "s_mov_b32 s%d, s%d" % (sTmp, sBo))
    for f in b2_dma(NP1): f()
    for f in b2_read(NP1 - 1): f()
    poll_check(vPo, sXo, "pe", 14)
    EL = OPT["elate"]
    if not EL: loadA(0); loadA(1)
    M("s_add_u32 s%d, s%d, 0x%x" % (sXo, sXo, FH - FE + (1 << 32) if FH < FE else FH - FE), "s_mov_b32 s%d, 0xff" % sMask)
    vm.wait("q"); A("s_barrier")
    stamp("att0")
    def rdK(h, off): lg.issue("ds_read_b128 %s, v%d offset:%d" % (v(K0 if h == 0 else K1_, 4), vKA, h * 12288 + off), "k%d" % h)
    def rdV(h, off):
        A("s_mov_b64 exec, s[%d:%d]" % ((sE0, sE0 + 1) if h == 0 else (sE1, sE1 + 1)))
        R = V0 if h == 0 else V1
        lg.issue("ds_read_b128 %s, v%d offset:%d" % (v(R, 4), vVA, off), "v%d" % h)
        lg.issue("ds_read_b128 %s, v%d offset:%d" % (v(R + 4, 4), vVA, off + 1024), "v%d" % h)
        A("s_mov_b64 exec, -1")
    def mask(m): return {"0": "0", "D": v(MD, 16), "E": v(ME, 16)}[m]
    def ex_(r): A("v_exp_f32 v%d, v%d" % (r, r))
    def cv(d, s_): A("v_cvt_pk_bf16_f32 v%d, v%d, v%d" % (d, s_, s_ + 1))
    def half(h, mqk, last, first, extra):
        S, O, Vr = (S0, O0, V0) if h == 0 else (S1, O1, V1)
        So, Oo, Vo, Ko, Qo = (S1, O1, V1, K1_, Q1) if h == 0 else (S0, O0, V0, K0, Q0)
        ex_(S); ex_(S + 1)
        if not (first and h == 0): A("%s %s, %s, %s, %s" % (MF, v(Oo, 16), v(Vo + 4, 4), v(P + 4, 4), v(Oo, 16)))
        n_new = 0
        if not last: rdK(h, 1024); n_new += 1
        if mqk is not None: rdV(1 - h, 0 if h == 0 else 2048); n_new += 2
        ex_(S + 2); ex_(S + 3); ex_(S + 4); ex_(S + 5); cv(P, S); cv(P + 1, S + 2)
        A("s_waitcnt lgkmcnt(%d)" % n_new)
        if mqk is not None: A("%s %s, %s, %s, %s" % (MF, v(So, 16), v(Ko, 4), v(Qo, 4), mask(mqk)))
        ex_(S + 6); ex_(S + 7); ex_(S + 8); ex_(S + 9); cv(P + 2, S + 4); cv(P + 3, S + 6); ex_(S + 10); ex_(S + 11)
        A("%s %s, %s, %s, %s" % (MF, v(O, 16), v(Vr, 4), v(P, 4), "0" if first else v(O, 16)))
        for f in extra: f()
        ex_(S + 12); ex_(S + 13); cv(P + 4, S + 8); cv(P + 5, S + 10); ex_(S + 14); ex_(S + 15)
        if h == 1 and not last: M("v_add_u32 v%d, 1024, v%d" % (vKA, vKA), "v_add_u32 v%d, 2048, v%d" % (vVA, vVA))
        cv(P + 6, S + 12); cv(P + 7, S + 14)
    def body(m1, m0n, first=False, e0=(), e1=()):
        half(0, m1, m0n is None, first, e0); half(1, m0n, m0n is None, first, e1)
    rdK(0, 0); rdK(1, 0); rdV(0, 0)
    for f in b2_dma(NP1 + 1): f()
    A("s_mov_b32 m0, s%d" % sSt)
    if not OPT["satom"]:
        M("s_cmp_lg_u32 s%d, 0" % sW, "s_cbranch_scc1 L_noat", "s_mov_b64 exec, 1")
        A("buffer_atomic_add v%d, v%d, s[%d:%d], 0 offen sc0" % (vRet, vL16, sDBG, sDBG + 3))
        A("s_mov_b64 exec, -1")
        A.label("L_noat")
    M("s_cmp_lg_u32 s%d, 0" % sI0, "s_cbranch_scc1 A_short")
    sv_short = vm.save()
    A("s_waitcnt lgkmcnt(3)")
    A("%s %s, %s, %s, %s" % (MF, v(S0, 16), v(K0, 4), v(Q0, 4), v(ME, 16)))
    A("s_mov_b32 s%d, 6" % sCnt)
    body("E", "0", True, *(([wo2], []) if EL else ([wo2, LA(2)], [LA(3)])))
    stamp("t0", True)
    A.label("A_mid")
    def pubh():
        L = A.newlabel("L_ph")
        M("s_cmp_lg_u32 s%d, %d" % (sCnt, 7 - OPT["pubh"]), "s_cbranch_scc1 %s" % L)
        for _ in range(OPT["pubh"] - 1): vm.ops += ["wo", "wo"]
        vm.wait("sth"); publish(sFl)
        A.label(L)
    body("0", "0", False, [wo2], [pubh])
    M("s_sub_u32 s%d, s%d, 1" % (sCnt, sCnt), "s_cmp_lg_u32 s%d, 0" % sCnt, "s_cbranch_scc1 A_mid")
    A.label("A_b7")
    body("0", "D", False, *(([wo2, LA(0)], [LA(1), LA(2)]) if EL else ([wo2, LA(4)], [LA(5)])))
    A.label("A_b8")
    if NP1 == 10:
        for f in b2_read(10) + b2_dma(12) + b2_read(11) + b2_dma(13): f()
    PH = lambda: poll_issue(vPo, sXo, "ph")
    body("D", None, False, *(([PH, LA(3), LA(4)], [LA(5), LA(6)]) if EL else ([PH, LA(6)], [LA(7)])))
    if EL: loadA(7)
    A("%s %s, %s, %s, %s" % (MF, v(O1, 16), v(V1 + 4, 4), v(P + 4, 4), v(O1, 16)))
    lg.mark_all()
    vm_main = vm.save()
    stamp("att")
    for f in b2_read(12) + b2_read(13): f()
    M("v_rcp_f32 v40, v%d" % (O0 + 8), "v_rcp_f32 v41, v%d" % O1, "v_mov_b32 v42, 0x1f800000", "v_mov_b32 v43, 0x5f800000")
    M("v_cmp_le_f32 vcc, v42, v%d" % (O0 + 8), "v_cmp_ge_f32 s[4:5], v43, v%d" % (O0 + 8), "v_cmp_le_f32 s[6:7], v42, v%d" % O1, "s_and_b64 vcc, vcc, s[4:5]",
      "v_cmp_ge_f32 s[4:5], v43, v%d" % O1, "s_and_b64 vcc, vcc, s[6:7]")
    for i in range(8): M("v_mul_f32 v%d, v%d, v40" % (O0 + i, O0 + i), "v_mul_f32 v%d, v%d, v41" % (O1 + 8 + i, O1 + 8 + i))
    A("s_and_b64 s[6:7], vcc, s[4:5]")
    for i in range(4): A("v_pk_add_f32 %s, %s, %s" % (v(T + 2 * i, 2), v(O0 + 2 * i, 2), v(O1 + 8 + 2 * i, 2)))
    M("v_pk_add_f32 %s, %s, %s" % (v(T, 2), v(T, 2), v(T + 2, 2)), "v_pk_add_f32 %s, %s, %s" % (v(T + 4, 2), v(T + 4, 2), v(T + 6, 2)),
      "v_pk_add_f32 %s, %s, %s" % (v(T, 2), v(T, 2), v(T + 4, 2)), "v_add_f32 v%d, v%d, v%d" % (T, T, T + 1), "v_mov_b32 v42, 0x1f8", "v_cmp_class_f32 vcc, v%d, v42" % T)
    for i in range(4): cv(T + 8 + i, O0 + 2 * i); cv(T + 12 + i, O1 + 8 + 2 * i)
    A("s_and_b64 vcc, vcc, s[6:7]")
    if OPT["fb_force"]: A("s_mov_b64 vcc, 0")
    M("s_cmp_eq_u64 vcc, -1", "s_cbranch_scc0 A_fb")
    A.label("A_fin2")
    M("s_mul_i32 s3, s%d, %d" % (sBLK, 144 * 1024), "s_lshl_b32 s4, s%d, 11" % sP, "s_add_u32 s3, s3, s4", "s_add_u32 s3, s3, %d" % (112 * 1024))
    store(T + 8, 3, 0, "sto"); store(T + 12, 3, 1024, "sto")
    poll_check(vPo, sXo, "ph")
    if OPT["atouch"]:
        M("s_and_b32 s3, s%d, 3" % sC2, "s_lshl_b32 s3, s3, 10", "s_cmp_ge_u32 s%d, 4" % sC2, "s_cselect_b32 s4, s%d, s%d" % (sAd + 1, sAd),
          "s_cmp_ge_u32 s%d, 2" % sW, "s_cselect_b32 s5, s%d, s%d" % (sAd + 1, sAd), "s_xor_b32 s4, s4, s5", "s_xor_b32 s4, s4, s%d" % sAd, "s_cmp_ge_u32 s%d, 2" % sW)
        M("s_mul_i32 s4, s%d, %d" % (sR, 2 * 144 * 1024), "s_lshr_b32 s5, s%d, 2" % sC2, "s_mul_i32 s5, s5, %d" % (144 * 1024), "s_add_u32 s4, s4, s5", "s_add_u32 s4, s4, s3")
        for g in range(2, 7):
            grp_base(5, g)
            M("s_lshl_b32 s5, s5, 10", "s_add_u32 s5, s5, s4")
            vm.issue("buffer_load_dword v60, v%d, s[%d:%d], s5 offen%s" % (vL16, sWS, sWS + 3, SC), "atch")
    for ks in range(8, 13): loadA(ks)
    assert D2 >= 6
    AC2 = 128
    M("v_and_b32 v40, 31, v%d" % vLane, "v_lshrrev_b32 v41, 5, v%d" % vLane, "v_lshlrev_b32 v40, 10, v40", "v_lshl_add_u32 v%d, v41, 4, v40" % vXo,
      "s_lshr_b32 s3, s%d, 1" % sW, "s_lshl_b32 s4, s%d, 1" % sR, "s_add_u32 s3, s3, s4", "s_lshl_b32 s3, s3, 15",
      "s_and_b32 s4, s%d, 1" % sW, "s_lshl_b32 s4, s4, 6", "s_add_u32 s3, s3, s4", "s_lshl_b32 s4, s%d, 7" % sC2, "s_add_u32 s%d, s3, s4" % sCnt)
    nl = [13]
    M("s_sub_u32 s3, s%d, s%d" % (sSt, sStg), "v_add_u32 v%d, s3, v%d" % (vBA, vBA), "v_add_u32 v%d, s3, v%d" % (vBB, vBB))
    def rdO(kk):
        for cf in range(2):
            R = vBA if cf == 0 else vBB
            d = (kk % 2) * 8 + cf * 4
            lg.issue("ds_read_b64_tr_b16 %s, v%d offset:%d" % (a(d, 2), R, kk * 2048), "o%d" % kk)
            lg.issue("ds_read_b64_tr_b16 %s, v%d offset:%d" % (a(d + 2, 2), R, kk * 2048 + 1024), "o%d" % kk)
    stamp("p2go")
    KO = 28 - D2 + OPT.get("odelay", 0)
    for ks in range(36):
        if ks == OPT["pubo"]:
            vm.wait("sto")
            M("s_lshl_b32 s3, s%d, 11" % sBLK, "s_lshl_b32 s4, s%d, 7" % sP, "s_add_u32 s3, s3, s4", "s_add_u32 s3, s3, 0x%x" % FO)
            publish(3)
        if ks == KO - 4:
            A("s_add_u32 s%d, s%d, 0x%x" % (sXo, sXo, FO - FH))
            poll_issue(vPo, sXo, "po")
        if ks == KO:
            stamp("p2a")
            poll_check(vPo, sXo, "po")
            stamp("p2b")
        if ks == 24:
            vm.issue("buffer_load_dwordx4 v[48:51], v%d, s[%d:%d], s%d offen" % (vXo, sXS, sXS + 3, sCnt), "xr")
            vm.issue("buffer_load_dwordx4 v[52:55], v%d, s[%d:%d], s%d offen offset:32" % (vXo, sXS, sXS + 3, sCnt), "xr")
        vm.wait("a%d" % ks)
        if ks == 0: lg.wait("b2r13")
        if ks >= 28: lg.wait("o%d" % (ks - 28))
        lim = min(36 if ks >= KO else 28, max(ks, 8) + D2)
        m = 0
        for cf in range(2):
            for rf in range(2):
                d = v(AC2 + (rf * 2 + cf) * 16, 16)
                A("%s %s, %s, %s, %s" % (MF, d, Breg(ks, cf), AFr(ks, rf), d if ks else "0"))
                m += 1
                if m == 2 and 27 <= ks < 35: rdO(ks - 27)
                if m in (1, 3) and nl[0] < lim:
                    loadA(nl[0]); nl[0] += 1
    stamp("p2end")
    for i in range(1, 4): M("s_xor_b32 s3, s%d, %d" % (sW, i), "s_lshl_b32 s3, s3, 14", "v_add_u32 v%d, s3, v%d" % (40 + i, vL16))
    A("v_add_u32 v40, s%d, v%d" % (sSt, vL16))
    vm.wait("xr")
    for i in range(8): M("v_lshlrev_b32 v%d, 16, v%d" % (64 + 2 * i, 48 + i), "v_and_b32 v%d, s%d, v%d" % (65 + 2 * i, sMsk, 48 + i))
    for i in range(1, 4):
        for j in range(4): A("ds_write_b128 v40, %s offset:%d" % (v(AC2 + i * 16 + 4 * j, 4), (i - 1) * 4096 + j * 1024))
    M("s_waitcnt lgkmcnt(0)", "s_barrier")
    for i in range(1, 4):
        for j in range(4): lg.issue("ds_read_b128 %s, v%d offset:%d" % (v(AC2 + i * 16 + 4 * j, 4), 40 + i, (i - 1) * 4096 + j * 1024), "r%d" % i)
    M("s_cmp_lg_u32 s%d, 0" % sW, "s_cbranch_scc1 L_noep", ("s_mov_b32 s3, s%d" % (sDBG + 2)) if OPT["satom"] else ("v_readfirstlane_b32 s3, v%d" % vRet), "s_cmp_lg_u32 s3, 255", "s_cbranch_scc1 L_noep",
      "s_mov_b32 s3, 0x%x" % EOFF, "s_mov_b64 exec, 1")
    A("buffer_store_dwordx2 %s, v%d, s[%d:%d], s3 offen" % (v(vTag, 2), vL16, sWS, sWS + 3))
    A("s_mov_b64 exec, -1")
    A.label("L_noep")
    lg.wait("r1")
    for i in range(16): A("v_add_f32 v%d, v%d, v%d" % (AC2 + i, AC2 + i, AC2 + 16 + i))
    lg.wait("r3")
    for i in range(16): A("v_add_f32 v%d, v%d, v%d" % (AC2 + 32 + i, AC2 + 32 + i, AC2 + 48 + i))
    for i in range(16): A("v_add_f32 v%d, v%d, v%d" % (AC2 + i, AC2 + i, AC2 + 32 + i))
    for jj in range(2):
        for i in range(4): A("v_permlane32_swap_b32 v%d, v%d" % (AC2 + 8 * jj + i, AC2 + 8 * jj + 4 + i))
    for i in range(16): A("v_add_f32 v%d, v%d, v%d" % (64 + i, 64 + i, AC2 + i))
    for i in range(8): cv(T + i, 64 + 2 * i)
    A("buffer_store_dwordx4 %s, v%d, s[%d:%d], s%d offen" % (v(T, 4), vXo, sOUT, sOUT + 3, sCnt))
    A("buffer_store_dwordx4 %s, v%d, s[%d:%d], s%d offen offset:32" % (v(T + 4, 4), vXo, sOUT, sOUT + 3, sCnt))
    stamp_flush()
    A("s_endpgm")
    A.label("A_short")
    vm.load(sv_short)
    for i in range(16): M("v_mov_b32 v%d, 0" % (O0 + i), "v_mov_b32 v%d, 0" % (O1 + i))
    for i in range(4): A("v_mov_b32 v%d, 0" % (P + 4 + i))
    M("s_cmp_le_u32 s%d, %d" % (sI0, OPT["pubh"]), "s_cbranch_scc1 A_sh1")
    vm.wait("sth"); publish(sFl)
    A.label("A_sh1")
    if not EL: loadA(2); loadA(3)
    M("s_cmp_lg_u32 s%d, 8" % sI0, "s_cbranch_scc1 A_sh1b")
    if EL: loadA(0); loadA(1); loadA(2)
    else: loadA(4); loadA(5)
    A.label("A_sh1b")
    A("s_mov_b32 s%d, s%d" % (sCnt, sI0))
    A.label("A_sh2")
    wo2()
    M("s_sub_u32 s%d, s%d, 1" % (sCnt, sCnt), "s_cmp_lg_u32 s%d, 0" % sCnt, "s_cbranch_scc1 A_sh2")
    M("s_waitcnt lgkmcnt(0)", "s_cmp_eq_u32 s%d, 8" % sI0, "s_cbranch_scc1 A_sh3")
    A("%s %s, %s, %s, 0" % (MF, v(S0, 16), v(K0, 4), v(Q0, 4)))
    M("s_sub_u32 s%d, 7, s%d" % (sCnt, sI0), "s_nop 9", "s_cmp_eq_u32 s%d, 7" % sI0, "s_cbranch_scc1 A_b7", "s_branch A_mid")
    A.label("A_sh3")
    A("%s %s, %s, %s, %s" % (MF, v(S0, 16), v(K0, 4), v(Q0, 4), v(MD, 16)))
    M("s_nop 11", "s_branch A_b8")
    A.label("A_fb")
    for h in range(2):
        Qh, O, Vr = (Q0, O0, V0) if h == 0 else (Q1, O1, V1)
        vM = 44
        for pas in range(2):
            Lp = "A_fb%d%d" % (h, pas)
            M("v_mov_b32 v%d, v12" % vKA, "v_mov_b32 v%d, v13" % vVA, "s_mov_b32 s%d, s%d" % (sCnt, sI0))
            if pas == 0: A("v_mov_b32 v%d, 0xff800000" % vM)
            else:
                for i in range(16): A("v_mov_b32 v%d, 0" % (O + i))
            A.label(Lp)
            A("ds_read_b128 %s, v%d offset:%d" % (v(K0, 4), vKA, h * 12288))
            if pas == 1: rdV(h, 0)
            M("s_waitcnt lgkmcnt(0)", "s_cmp_eq_u32 s%d, 0" % sCnt, "s_cbranch_scc1 %s_e" % Lp, "s_cmp_eq_u32 s%d, 8" % sCnt, "s_cbranch_scc1 %s_d" % Lp)
            M("%s %s, %s, %s, 0" % (MF, v(S0, 16), v(K0, 4), v(Qh, 4)), "s_branch %s_j" % Lp)
            A.label(Lp + "_e"); M("%s %s, %s, %s, %s" % (MF, v(S0, 16), v(K0, 4), v(Qh, 4), v(ME, 16)), "s_branch %s_j" % Lp)
            A.label(Lp + "_d"); A("%s %s, %s, %s, %s" % (MF, v(S0, 16), v(K0, 4), v(Qh, 4), v(MD, 16)))
            A.label(Lp + "_j")
            A("s_nop 15")
            if pas == 0:
                for i in range(16): A("v_max_f32 v%d, v%d, v%d" % (vM, vM, S0 + i))
            else:
                for i in range(16): A("v_sub_f32 v%d, v%d, v%d" % (S0 + i, S0 + i, vM))
                for i in range(16): ex_(S0 + i)
                for i in range(8): cv(P + i, S0 + 2 * i)
                A("%s %s, %s, %s, %s" % (MF, v(O, 16), v(Vr, 4), v(P, 4), v(O, 16)))
                A("%s %s, %s, %s, %s" % (MF, v(O, 16), v(Vr + 4, 4), v(P + 4, 4), v(O, 16)))
            M("v_add_u32 v%d, 1024, v%d" % (vKA, vKA), "v_add_u32 v%d, 2048, v%d" % (vVA, vVA),
              "s_add_u32 s%d, s%d, 1" % (sCnt, sCnt), "s_cmp_le_u32 s%d, 8" % sCnt, "s_cbranch_scc1 %s" % Lp)
            if pas == 0: M("v_mov_b32 v45, v%d" % vM, "v_permlane32_swap_b32 v%d, v45" % vM, "v_max_f32 v%d, v%d, v45" % (vM, vM))
    A("s_nop 15")
    M("v_rcp_f32 v40, v%d" % (O0 + 8), "v_rcp_f32 v41, v%d" % O1)
    for i in range(8): M("v_mul_f32 v%d, v%d, v40" % (O0 + i, O0 + i), "v_mul_f32 v%d, v%d, v41" % (O1 + 8 + i, O1 + 8 + i))
    for i in range(4): cv(T + 8 + i, O0 + 2 * i); cv(T + 12 + i, O1 + 8 + 2 * i)
    M("s_nop 4", "s_branch A_fin2")
    A.label("L_end")
    A("s_endpgm")
    return A

def build():
    kn = NAME + "_kernel"
    lines = hazard.fix(gen().lines, True)
    t = "; generated by gen/v10.py\n; @launch grid=(256,1,1) block=(256,1,1) lds=163840\n"
    t += '.amdgcn_target "amdgcn-amd-amdhsa--gfx950"\n'
    t += kernel_header(kn) + "\n".join(lines) + "\n"
    t += kernel_desc(kn, 512, 102, 256)
    import subprocess, re
    open("_p1.s", "w").write(re.sub(r"OFF_L_\w+", "0x12345", t.replace("CODE_SPAN", "0x12345")))
    subprocess.run(["clang", "-x", "assembler", "-target", "amdgcn-amd-amdhsa", "-mcpu=gfx950", "-c", "_p1.s", "-o", "_p1.o"], check=True)
    h = subprocess.run(["llvm-objdump", "-h", "_p1.o"], capture_output=True, text=True).stdout
    size = int(re.search(r"\.text\s+([0-9a-f]+)", h).group(1), 16)
    syms = {}
    for ln in subprocess.run(["llvm-objdump", "-t", "_p1.o"], capture_output=True, text=True).stdout.splitlines():
        p = ln.split()
        if len(p) >= 5 and p[-1].startswith("L_"): syms[p[-1]] = int(p[0], 16)
    if "L_pc" in syms:
        for nm in set(re.findall(r"OFF_(L_\w+)", t)): t = t.replace("OFF_" + nm, "0x%x" % ((syms[nm] - syms["L_pc"]) | 0x10000000 & 0))
    print("code bytes:", size)
    t = t.replace("CODE_SPAN", "0x%x" % (size - 256))
    if OPT["stamp"]: t += "; STAMPS " + " ".join(NAMES[i] for i in sorted(NAMES)) + "\n"
    return t

if __name__ == "__main__":
    args = [x for x in sys.argv[1:] if not x.startswith("--")]
    for x in sys.argv[1:]:
        if x.startswith("--"):
            k, _, val = x[2:].partition("=")
            OPT[k] = (val if "," in val else int(val)) if val else True
    out = args[0] if args else "cdna_kernels/%s.s" % NAME
    open(out, "w").write(build())
```

```python
import sys, struct
from asmlib import *
import hazard

NAME = "parallel_sum__sliding_block__swiglu_ffn__prompt"
A2F = 0
B2T = 0xA00000
QF = 0x900000
KF = QF + 0x200000
VF = QF + 0x400000
STAMP_OFF = 0x1600000
FLG = 0xF00000
FK = FLG + 0x1000; FQ = FK + 512; FH = FLG + 0x50000; FO = FLG + 0x70000; FE = FLG + 0x90000; EOFF = FLG + 0xB0000
WS_BYTES = 0x1700000
LOG2E = 1.4426950408889634
MF = "v_mfma_f32_32x32x16_bf16"
OPT = dict(stamp=False, fine=False, pf_code=True, rot=True, d2=7, rot2=True, fb_force=False, touch=False,
           pro_first=12, budget=16, bulk=1, s0first=0, xahead=4, kvst=9, early=True, rmap=True, pubh=1, wopf=-1, bulkb=3, xpf=0, plan=0, t0=0, t1=0, lndma=1, pubo=2, elate=1, odelay=5, s0swap=0, wsoff=0, b2ord=0, atouch=0, ptouch=0, satom=0)
NAMES = {}

def f32(x):
    return "0x%08x" % struct.unpack("<I", struct.pack("<f", x))[0]

class Track:
    def __init__(self, A, name, maxn):
        self.A = A; self.ops = []; self.done = -1; self.name = name; self.maxn = maxn; self.hook = None; self.pre = None
    def issue(self, text, tag):
        self.A(text); self.ops.append(tag)
    def wait(self, tag):
        idx = max(i for i, t in enumerate(self.ops) if t == tag)
        if idx <= self.done: return
        if self.pre: self.pre()
        n = sum(1 for t in self.ops[idx + 1:] if not t.startswith("?"))
        self.done = idx
        if self.hook: self.hook("<" + tag)
        self.A("s_waitcnt %s(%d)" % (self.name, min(n, self.maxn)))
        if self.hook: self.hook(tag + ">")
    def mark_all(self): self.done = len(self.ops) - 1
    def save(self): return (list(self.ops), self.done)
    def load(self, st): self.ops = list(st[0]); self.done = st[1]

def gen():
    A = Asm(); vm = Track(A, "vmcnt", 63); lg = Track(A, "lgkmcnt", 15)
    SC = " sc1"
    def srd(d, lo, nbytes):
        A("s_mov_b32 s%d, s%d" % (d, lo)); A("s_mov_b32 s%d, s%d" % (d + 1, lo + 1))
        A("s_mov_b32 s%d, 0x%x" % (d + 2, nbytes)); A("s_mov_b32 s%d, 0x20000" % (d + 3))
    held = []
    def flush_held():
        A.lines.extend(held); del held[:]
    vm.pre = flush_held
    def run_hold(f):
        flush_held()
        n0 = len(A.lines)
        f()
        if len(A.lines) > n0 and A.lines[-1].strip().startswith(("buffer_load", "buffer_store")) and not (len(A.lines) - n0 >= 2 and A.lines[-2].strip().startswith(("buffer_", "s_waitcnt vmcnt"))):
            held.append(A.lines.pop())
    def M(*lines):
        for l in lines: A(l)
    sXS, sWQ, sGU, sWS, sDBG, sOUT, sDN, sWO = 8, 12, 16, 20, 44, 52, 56, 80
    sW, sRB, sIQ, sP, sBLK, sTy, sROT = 24, 25, 26, 27, 28, 29, 30
    sR, sC2, sLW, sTmp, sIdx = 31, 32, 33, 34, 35
    sKVb, sQb, sGa, sGb, sG1 = 36, 37, 38, 39, 40
    sHa, sHb, sH1 = 41, 42, 43
    sMsk, sFl = 50, 51
    sSt = 60
    sKq, sKg, sK2 = 64, 68, 72
    sBd, sPk0, sBo, sStg, sPk1 = 74, 75, 99, 48, 49
    sBg = 76
    sE0, sE1 = 64, 66
    sCnt, sI0, sMask = 84, 85, 86
    sAd, sAo = 88, 90
    sXo, sSpin, sOne = 92, 93, 98
    sPtr = 64
    vLane, vL16, vL8, vTag = 1, 2, 3, 4
    vRA = [6, 7]; vRB = [9, 10]; vRP = [12, 13]; vBA, vBB = 8, 11; vL16b = 15
    vD1 = [16, 17, 18, 19]; vD2 = [20, 21, 22, 23]
    vF, vRet, vXo, vPF, vFo = 24, 26, 27, 28, 29
    vRs, vSd = 0, 61
    vC1, vS2, vQs = 28, 29, 30
    CM, DT, AI = 24, 40, 184
    T = 32
    vDB = [56, 57, 58, 59]
    vX = [56, 57, 58, 59]; vBT = 60; vXR = 44; vSt = 48
    ACA, ACB = 64, 128
    def Xr(s_): return v(192 + 4 * s_, 4) if s_ < 16 else a(192 + 4 * (s_ - 16), 4)
    def Xraw(s_): return 192 + 4 * s_ if s_ < 16 else 128 + 4 * (s_ - 16)
    nst = [0]
    def stamp(name, fine=False):
        if not OPT["stamp"] or (fine and not OPT["fine"]): return
        NAMES.setdefault(nst[0], name)
        if NAMES[nst[0]].split("|")[0] != name: NAMES[nst[0]] = NAMES[nst[0]].split("|")[0] + "|" + name
        M("s_memtime s[94:95]", "s_waitcnt lgkmcnt(0)"); lg.mark_all()
        A("v_writelane_b32 v63, s94, %d" % nst[0]); nst[0] += 1
    def stamp_flush():
        if not OPT["stamp"]: return
        A("s_waitcnt vmcnt(0)"); stamp("end")
        M("s_memrealtime s[94:95]", "s_waitcnt lgkmcnt(0)", "v_writelane_b32 v63, s94, 63", "v_writelane_b32 v63, s96, 62")
        M("s_lshl_b32 s3, s2, 2", "s_add_u32 s3, s3, s%d" % sW, "s_lshl_b32 s3, s3, 8", "s_add_u32 s3, s3, 0x%x" % STAMP_OFF)
        A("v_lshlrev_b32 v62, 2, v%d" % vLane)
        A("buffer_store_dword v63, v62, s[%d:%d], s3 offen" % (sWS, sWS + 3))
        if OPT.get("dbgout"):
            M("s_not_b32 s3, s96", "v_mov_b32 v60, s3", "v_mov_b32 v61, s94", "v_readlane_b32 s4, v63, 0", "s_nop 4", "v_subrev_u32 v63, s4, v63", "v_add_u32 v62, 8, v62", "s_mov_b64 exec, 1")
            A("buffer_atomic_umax v60, off, s[%d:%d], 0 offset:4" % (sDBG, sDBG + 3))
            A("buffer_atomic_umax v61, off, s[%d:%d], 0 offset:8" % (sDBG, sDBG + 3))
            A("s_mov_b64 exec, 0x3ffe")
            A("buffer_atomic_umax v63, v62, s[%d:%d], 0 offen" % (sDBG, sDBG + 3))

    M("s_cmp_ge_u32 s2, 256", "s_cbranch_scc1 L_end")
    M("s_load_dwordx4 s[4:7], s[0:1], 0", "s_load_dwordx2 s[48:49], s[0:1], 72", "s_load_dwordx4 s[64:67], s[0:1], 32",
      "s_load_dwordx4 s[68:71], s[0:1], 48", "s_load_dwordx2 s[72:73], s[0:1], 16", "s_load_dwordx2 s[74:75], s[0:1], 64")
    sPC = 46
    if OPT["pf_code"]:
        M("s_getpc_b64 s[100:101]")
        A.label("L_pc")
        M("v_and_b32 v%d, 63, v0" % vLane, "s_lshr_b32 s3, s2, 3", "s_lshl_b32 s3, s3, 11", "s_sub_u32 s3, s3, 6144", "v_lshlrev_b32 v6, 7, v%d" % vLane,
          "v_cmp_lt_u32 vcc, 47, v%d" % vLane, "v_mov_b32 v7, s3", "v_mov_b32 v9, s101", "v_cndmask_b32 v7, 0, v7, vcc", "v_add_u32 v6, v6, v7",
          "v_min_u32 v6, CODE_SPAN, v6", "v_add_co_u32 v8, vcc, s100, v6", "v_addc_co_u32 v9, vcc, 0, v9, vcc", "v_cmp_gt_u32 vcc, 64, v0", "s_and_saveexec_b64 s[88:89], vcc",
          "s_cbranch_execz L_pf0")
        A("global_load_dword v%d, v[8:9], off" % vXo)
        A.label("L_pf0")
        A("s_mov_b64 exec, -1")
        vm.ops.append("?pfc")
    if OPT["stamp"]:
        M("s_memrealtime s[96:97]", "v_mov_b32 v63, 0"); stamp("t0")
    M("v_lshrrev_b32 v3, 6, v0", "v_and_b32 v%d, 63, v0" % vLane, "v_readfirstlane_b32 s%d, v3" % sW)
    M("s_and_b32 s3, s2, 7", "s_lshr_b32 s%d, s2, 3" % sIdx)
    M("s_and_b32 s%d, s3, 1" % sRB, "s_lshl_b32 s%d, s%d, 3" % (sRB, sRB), "s_and_b32 s%d, s%d, 7" % (sTmp, sIdx), "s_add_u32 s%d, s%d, s%d" % (sRB, sRB, sTmp))
    A("s_lshr_b32 s%d, s%d, 3" % (sTy, sIdx))
    if OPT["rot"] == 2: M("s_add_u32 s%d, s%d, s%d" % (sROT, sRB, sTy), "s_and_b32 s%d, s%d, 3" % (sROT, sROT))
    elif OPT["rot"]: A("s_and_b32 s%d, s%d, 3" % (sROT, sRB))
    else: A("s_mov_b32 s%d, 0" % sROT)
    M("s_lshl_b32 s%d, s%d, 2" % (sBLK, sRB), "s_add_u32 s%d, s%d, s%d" % (sBLK, sBLK, sW))
    M("v_lshrrev_b32 v6, 3, v%d" % vLane, "v_and_b32 v7, 7, v%d" % vLane, "v_lshrrev_b32 v8, 4, v%d" % vLane,
      "v_xor_b32 v7, v7, v8", "v_lshlrev_b32 v7, 4, v7", "v_lshl_add_u32 v%d, v6, 10, v7" % vX[0],
      "v_xor_b32 v%d, 64, v%d" % (vX[1], vX[0]), "v_add_u32 v%d, 7168, v%d" % (vX[1], vX[1]),
      "v_add_u32 v%d, 14336, v%d" % (vX[2], vX[0]), "v_add_u32 v%d, 14336, v%d" % (vX[3], vX[1]))
    sXrow, sXlds, sXrot = 76, 77, 78
    M("s_lshl_b32 s%d, s%d, 15" % (sXrow, sBLK), "s_lshl_b32 s%d, s%d, 15" % (sXlds, sW), "s_add_u32 s%d, s%d, 32768" % (sXlds, sXlds),
      "s_lshl_b32 s%d, s%d, 8" % (sXrot, sROT), "s_waitcnt lgkmcnt(0)")
    srd(sXS, 4, 2048 * 1024)
    xl = []
    for c in range(8):
        for rq in range(4):
            def f(c=c, rq=rq):
                if rq == 0:
                    M("s_add_u32 m0, s%d, %d" % (sXlds, c * 4096), "s_add_u32 s79, s%d, %d" % (sXrot, c * 128), "s_and_b32 s79, s79, 1023", "s_add_u32 s79, s79, s%d" % sXrow)
                vm.issue("buffer_load_dwordx4 v%d, s[%d:%d], s79 offen offset:%d lds" % (vX[rq], sXS, sXS + 3, rq * 1024), "x%d" % c)
            xl.append(f)
    if OPT.get("xst"): stamp("pre")
    for _ in range(OPT["pro_first"]): xl.pop(0)()
    if OPT["ptouch"]:
        for i in range(8):
            M("s_mov_b32 s86, 0x%x" % (i * 0x200000 + (0x100000 if i == 7 else 0)), "s_load_dword s87, s[48:49], s86")
        M("s_load_dword s87, s[70:71], 0", "s_mov_b32 s86, 0x1ffffc", "s_load_dword s87, s[70:71], s86", "s_load_dword s87, s[68:69], 0", "s_load_dword s87, s[72:73], 0",
          "s_load_dword s87, s[74:75], 0", "s_load_dword s87, s[6:7], 0", "s_load_dword s87, s[64:65], 0", "s_load_dword s87, s[66:67], 0")
    for e in range(OPT["xpf"]):
        M("s_lshl_b32 s79, s%d, 7" % sTy, "s_add_u32 s79, s79, s%d" % sXrot, "s_add_u32 s79, s79, %d" % ((OPT["pro_first"] // 4 + 4 * e) * 128), "s_and_b32 s79, s79, 1023", "s_add_u32 s79, s79, s%d" % sXrow)
        for rq in range(4): vm.issue("buffer_load_dword v60, v%d, s[%d:%d], s79 offen offset:%d" % (vX[rq], sXS, sXS + 3, rq * 1024), "xpf")
    if OPT.get("xst"): stamp("iss")

    SB = []
    def blk(f): SB.append(f); return f
    @blk
    def _():
        if OPT["wsoff"]: M("s_add_u32 s48, s48, 0x%x" % (OPT["wsoff"] << 20), "s_addc_u32 s49, s49, 0")
        srd(sWQ, 6, 512 * 3072); srd(sWS, 48, WS_BYTES)
        M("s_lshr_b32 s%d, s3, 1" % sP, "s_lshl_b32 s%d, s%d, 1" % (sIQ, sP), "s_lshl_b32 s%d, s%d, 2" % (sP, sP), "s_add_u32 s%d, s%d, s%d" % (sP, sP, sTy),
          "s_and_b32 s4, s%d, 1" % sTy, "s_add_u32 s%d, s%d, s4" % (sIQ, sIQ), "s_lshr_b32 s%d, s%d, 1" % (sTy, sTy),
          "s_and_b32 s4, s3, 1", "s_lshl_b32 s4, s4, 4", "s_lshr_b32 s%d, s3, 1" % sR, "s_lshl_b32 s%d, s%d, 2" % (sR, sR), "s_add_u32 s%d, s%d, s4" % (sR, sR),
          "s_and_b32 s4, s%d, 3" % sIdx, "s_add_u32 s%d, s%d, s4" % (sR, sR), "s_lshr_b32 s%d, s%d, 2" % (sC2, sIdx))
    @blk
    def _():
        M("s_cmp_ge_u32 s%d, 2" % sW, "s_cselect_b32 s%d, s66, s64" % sGU, "s_cselect_b32 s%d, s67, s65" % (sGU + 1),
          "s_mov_b32 s%d, %d" % (sGU + 2, 512 * 3584), "s_mov_b32 s%d, 0x20000" % (sGU + 3))
        srd(sDN, 68, 1792 * 1024); srd(sWO, 72, 512 * 1024)
        srd(sOUT, 70, 2048 * 1024); srd(sDBG, 74, 256)
    @blk
    def _():
        M("s_and_b32 s5, s%d, 1" % sW, "s_lshr_b32 s6, s%d, 1" % sW, "s_lshl_b32 s7, s%d, 7" % sIQ)
        M("s_mul_i32 s3, s%d, 320" % sIQ, "s_add_u32 s3, s3, 1024", "s_and_b32 s4, s%d, 1" % sIQ, "s_lshl_b32 s4, s4, 6", "s_add_u32 s%d, s3, s4" % sHa,
          "s_add_u32 s%d, s%d, 128" % (sHb, sHa), "s_lshl_b32 s4, s4, 2", "s_sub_u32 s4, 256, s4", "s_add_u32 s%d, s3, s4" % sH1,
          "s_cmp_eq_u32 s%d, 0" % sTy, "s_cselect_b32 s%d, s7, s%d" % (sHa, sHa))
        for t in range(4):
            M("s_add_u32 s4, s%d, %d" % (sROT, t), "s_and_b32 s4, s4, 3", "s_mul_i32 s%d, s4, %d" % (sKq + t, 128 * 3072), "s_mul_i32 s%d, s4, %d" % (sKg + t, 128 * 3584))
    @blk
    def _():
        M("s_mul_i32 s%d, s5, %d" % (sQb, 64 * 3072), "s_add_u32 s%d, s%d, s7" % (sQb, sQb),
          "s_lshl_b32 s3, s6, 10", "s_add_u32 s%d, s%d, s3" % (sKVb, sQb), "s_add_u32 s%d, s%d, 1024" % (sKVb, sKVb),
          "s_mul_i32 s3, s5, %d" % (64 * 3584), "s_add_u32 s%d, s3, s%d" % (sGa, sHa), "s_add_u32 s%d, s3, s%d" % (sGb, sHb), "s_mov_b32 s%d, s%d" % (sG1, sH1))
    @blk
    def _():
        A("s_mov_b32 s4, 0x%x" % EOFF)
        vm.issue("buffer_load_dwordx2 %s, off, s[%d:%d], s4 sc1" % (v(vTag, 2), sWS, sWS + 3), "ep")
    @blk
    def _():
        M("v_and_b32 v40, 31, v%d" % vLane, "v_lshrrev_b32 v41, 5, v%d" % vLane, "v_bfe_u32 v42, v40, 1, 3", "v_xor_b32 v42, v42, v41",
          "v_lshlrev_b32 v42, 4, v42", "v_lshl_add_u32 v42, v40, 7, v42", "v_add_u32 v%d, s%d, v42" % (vXR, sXlds))
        for b in range(1, 4): A("v_xor_b32 v%d, %d, v%d" % (vXR + b, b << 5, vXR))
    @blk
    def _():
        for i in range(8): A("v_mov_b32 v%d, 0" % (vSt + i))
        M("s_mov_b32 s%d, 0x3f803f80" % sOne, "s_mov_b32 s%d, 0xffff0000" % sMsk, "s_lshl_b32 s%d, s%d, 13" % (sLW, sW))
    @blk
    def _():
        M("v_lshrrev_b32 v40, 3, v%d" % vLane, "v_and_b32 v41, 7, v%d" % vLane, "v_bfe_u32 v42, v%d, 4, 1" % vLane, "v_lshlrev_b32 v42, 2, v42",
          "v_xor_b32 v41, v41, v42", "v_lshlrev_b32 v41, 4, v41", "v_mul_u32_u24 v42, 3584, v40", "v_add_u32 v%d, v42, v41" % vD2[0],
          "v_mul_u32_u24 v42, 3072, v40", "v_add_u32 v43, v42, v41", "v_lshl_add_u32 v61, v40, 10, v41")
    @blk
    def _():
        M("v_lshrrev_b32 v40, 2, v%d" % vLane, "v_and_b32 v41, 3, v%d" % vLane, "v_lshlrev_b32 v41, 4, v41", "v_mul_u32_u24 v42, 3584, v40", "v_add_u32 v42, v42, v41",
          "s_cmp_eq_u32 s%d, 0" % sTy, "s_cselect_b64 vcc, -1, 0", "s_mov_b32 s4, %d" % (8 * 3072 - 1024), "s_cselect_b32 s4, s4, %d" % (16 * 3584 - 1024),
          "v_cndmask_b32 v%d, v42, v43, vcc" % vD1[0])
        for j in range(1, 4):
            M("v_add_u32 v%d, s4, v%d" % (vD1[j], vD1[j - 1]), "v_add_u32 v%d, %d, v%d" % (vD2[j], j * (8 * 3584 - 1024), vD2[0]))
    NCRIT = len(SB)
    @blk
    def _():
        M("v_lshlrev_b32 v%d, 4, v%d" % (vL16, vLane), "v_lshlrev_b32 v%d, 3, v%d" % (vL8, vLane), "s_nop 0")
        M("s_cmp_eq_u32 s%d, 0" % sTy, "s_cselect_b32 s3, s6, s5", "s_mov_b32 s7, %d" % (128 * 3072), "s_cselect_b32 s7, s7, %d" % (128 * 3584), "s_add_u32 s3, s3, s%d" % sROT)
        for t in range(2): M("s_add_u32 s4, s3, %d" % (2 * t), "s_and_b32 s4, s4, 3", "s_mul_i32 s%d, s4, s7" % (sK2 + t))
    @blk
    def _():
        M("v_lshrrev_b32 v40, 5, v%d" % vLane, "v_bfe_u32 v41, v%d, 2, 2" % vLane, "v_lshl_add_u32 v42, v40, 3, v41", "v_lshl_add_u32 v39, v40, 2, v41",
          "v_bfe_u32 v43, v%d, 4, 1" % vLane, "v_lshlrev_b32 v43, 5, v43", "v_and_b32 v38, 3, v%d" % vLane, "v_lshl_add_u32 v43, v38, 3, v43",
          "v_lshl_add_u32 v%d, v39, 6, v43" % vRP[0])
    @blk
    def _():
        M("v_bfe_u32 v38, v41, 1, 1", "v_lshl_add_u32 v43, v38, 6, v43", "v_lshl_add_u32 v%d, v39, 7, v43" % vRA[0], "v_xor_b32 v%d, 64, v%d" % (vRB[0], vRA[0]))
        for R in (vRA, vRB, vRP): A("v_add_u32 v%d, 0x10000, v%d" % (R[1], R[0]))
        M("s_add_u32 s%d, s%d, 131072" % (sStg, sLW), "v_lshl_add_u32 v%d, v39, 7, v43" % vBA, "v_add_u32 v%d, s%d, v%d" % (vBA, sStg, vBA), "v_xor_b32 v%d, 64, v%d" % (vBB, vBA))
    @blk
    def _():
        A("s_mul_i32 s3, s%d, %d" % (sBLK, 144 * 1024))
        for sr in (sHa, sHb, sH1): M("s_lshl_b32 s%d, s%d, 5" % (sr, sr), "s_add_u32 s%d, s%d, s3" % (sr, sr))
        M("s_lshl_b32 s%d, s%d, 7" % (sBd, sC2), "s_lshl_b32 s%d, s%d, 17" % (sBo, sW), "s_add_u32 s%d, s%d, s%d" % (sBo, sBo, sBd))
    @blk
    def _():
        M("s_add_u32 s3, s%d, s%d" % (sC2, sR), "s_and_b32 s4, s3, 1", "s_mul_i32 s4, s4, 12", "s_mul_i32 s7, s%d, 20" % sW, "s_add_u32 s7, s7, 32",
          "s_add_u32 s%d, s7, s4" % sPk0, "s_sub_u32 s4, 12, s4", "s_add_u32 s4, s4, s7", "s_lshl_b32 s4, s4, 8", "s_or_b32 s%d, s%d, s4" % (sPk0, sPk0),
          "s_mul_i32 s%d, s%d, 0x10001" % (sPk0, sPk0), "s_add_u32 s%d, s%d, 0x04040000" % (sPk0, sPk0))
        M("s_mul_i32 s4, s3, 171", "s_lshr_b32 s4, s4, 9", "s_mul_i32 s4, s4, 3", "s_sub_u32 s3, s3, s4", "s_lshl_b32 s3, s3, 3",
          "s_add_u32 s7, s7, 8", "s_lshl_b32 s7, s7, 16", "s_mul_i32 s4, s%d, 0x808" % sW, "s_add_u32 s4, s4, 0x400", "s_or_b32 s7, s7, s4",
          "s_lshr_b32 s4, s7, s3", "s_sub_u32 s3, 24, s3", "s_lshl_b32 s7, s7, s3", "s_or_b32 s%d, s4, s7" % sPk1)
    @blk
    def _():
        M("v_and_b32 v32, 31, v%d" % vLane, "v_lshrrev_b32 v33, 5, v%d" % vLane, "v_lshlrev_b32 v33, 3, v33", "v_sub_u32 v32, v32, v33",
          "v_and_b32 v33, 1, v32", "v_lshlrev_b32 v33, 4, v33", "v_mov_b32 v34, 0x3f80", "v_lshlrev_b32 v33, v33, v34", "v_ashrrev_i32 v32, 1, v32")
        for j in range(8):
            jj = j if j < 4 else j + 4
            M("v_cmp_eq_u32 s[%d:%d], %d, v32" % (88 + 2 * (j % 2), 89 + 2 * (j % 2), jj))
            if j: M("v_cndmask_b32 v34, 0, v33, s[%d:%d]" % (88 + 2 * ((j - 1) % 2), 89 + 2 * ((j - 1) % 2)), "v_accvgpr_write_b32 a%d, v34" % (AI + j - 1))
        M("s_nop 0", "v_cndmask_b32 v34, 0, v33, s[90:91]", "v_accvgpr_write_b32 a%d, v34" % (AI + 7))
    def grp_base(dst, g):
        A("s_bfe_u32 s%d, s%d, 0x%x" % (dst, sPk0 if g < 4 else sPk1, (8 << 16) | (8 * (g % 4))))
    order = [0, 1, 2, 3, 6, 7, 8]
    for i in order: SB[i]()
    late = [f for i, f in enumerate(SB) if i not in order]

    def dma_stage(kind, t, slot, tag, mixed=False):
        res = []
        for i in range(8):
            grp, j = i // 4, i % 4
            def f(grp=grp, j=j):
                if kind == "KV": base, sk, add, srd_, vd = sKVb, sKq + t, 32 * 3072, sWQ, vD1
                elif kind == "Q": base, sk, add, srd_, vd = sQb, sK2 + t, 32 * 3072, sWQ, vD1
                elif kind == "Pa": base, sk, add, srd_, vd = sGa, sKg + t, 32 * 3584, sGU, vD2
                elif kind == "Pb": base, sk, add, srd_, vd = sGb, sKg + t, 32 * 3584, sGU, vD2
                elif kind == "P1": base, sk, add, srd_, vd = sG1, sK2 + t, 64 * 3584, sGU, vD1
                if tag == "s0" and OPT["s0swap"]:
                    if j == 0:
                        M("s_lshr_b32 s90, s%d, 2" % sRB, "s_and_b32 s90, s90, 1", "s_xor_b32 s90, s90, %d" % grp, "s_lshl_b32 s91, s90, 12", "s_add_u32 m0, s%d, s91" % sLW,
                          "s_mul_i32 s90, s90, %d" % add, "s_add_u32 s%d, s%d, s%d" % (sTmp, base, sk), "s_add_u32 s%d, s%d, s90" % (sTmp, sTmp))
                elif j == 0 or mixed:
                    A("s_add_u32 m0, s%d, %d" % (sLW, slot * 32768 + grp * 4096))
                if j == 0 and not (tag == "s0" and OPT["s0swap"]):
                    if grp == 0: A("s_add_u32 s%d, s%d, s%d" % (sTmp, base, sk))
                    else: A("s_add_u32 s%d, s%d, %d" % (sTmp, sTmp, add))
                vm.issue("buffer_load_dwordx4 v%d, s[%d:%d], s%d offen offset:%d lds" % (vd[j], srd_, srd_ + 3, sTmp, j * 1024), tag)
            res.append(f)
        return res

    def touch(kind, t):
        base, sk, srd_, st = {"KV": (sKVb, sKq + t, sWQ, 3072), "Q": (sQb, sK2 + t, sWQ, 3072), "Pa": (sGa, sKg + t, sGU, 3584),
                              "Pb": (sGb, sKg + t, sGU, 3584), "P1": (sG1, sK2 + t, sGU, 3584)}[kind]
        def f():
            M("v_mul_u32_u24 v57, %d, v%d" % (st, vLane), "s_add_u32 s4, s%d, s%d" % (base, sk))
            vm.issue("buffer_load_dword v60, v57, s[%d:%d], s4 offen" % (srd_, srd_ + 3), "tch")
            if kind == "P1":
                A("s_add_u32 s4, s4, %d" % (64 * 3584))
                vm.issue("buffer_load_dword v60, v57, s[%d:%d], s4 offen" % (srd_, srd_ + 3), "tch")
        return f
    def quad(kind, t, slot, q):
        res = []
        sb = slot * 32768; bi = sb // 65536; so = sb % 65536
        for j in range(4):
            if kind in ("KV", "Pa", "Pb"):
                res.append((j, 8 * t + q, (vRA if j % 2 == 0 else vRB)[bi], so + (j >> 1) * 16384 + q * 2048, 1024))
            elif kind == "Q":
                kk = 2 * q + (j >> 1)
                res.append((j & 1, 16 * t + kk, (vRA if j % 2 == 0 else vRB)[bi], so + kk * 2048, 1024))
            else:
                kk = 2 * q + (j >> 1)
                res.append((j & 1, 16 * t + kk, vRP[bi], so + (j & 1) * 16384 + kk * 1024, 512))
        return res

    def rd(q4, j, buf, tag):
        _, _, ar, off, d2 = q4[j]
        lg.issue("ds_read_b64_tr_b16 %s, v%d offset:%d" % (a(buf * 16 + j * 4, 2), ar, off), tag)
        lg.issue("ds_read_b64_tr_b16 %s, v%d offset:%d" % (a(buf * 16 + j * 4 + 2, 2), ar, off + d2), tag)

    def store(P, soff, off, tag):
        if OPT.get("nostore") and tag != "sto":
            vm.ops.append("?" + tag); vm.ops.append(tag); vm.ops.pop(); vm.ops[-1] = tag if False else vm.ops[-1]
            A("s_nop 0"); vm.ops[-1] = tag; A("buffer_load_dword v28, off, s[%d:%d], 0" % (sWS, sWS + 3)); return
        vm.issue("buffer_store_dwordx4 %s, v%d, s[%d:%d], s%d offen offset:%d%s" % (v(P, 4), vL16, sWS, sWS + 3, soff, off, SC), tag)

    def I(text, cost=4): return (cost, (lambda t=text: A(t)))
    PK = [T + 8, T + 12]
    def st_swiglu(acc, ncf, uoff, sH, tag):
        els = []
        for cf in range(ncf):
            for i in range(16): els.append((acc + cf * 16 + i, acc + uoff + cf * 16 + i))
        N = len(els); out = []
        ta = lambda e: T + (e % 6)
        for e in range(N + 6):
            if 0 <= e - 1 < N: out.append(I("v_exp_f32 v%d, v%d" % (ta(e - 1), ta(e - 1)), 8))
            if e < N: out.append(I("v_mul_f32 v%d, v%d, v%d" % (ta(e), vC1, els[e][0])))
            if 0 <= e - 2 < N: out.append(I("v_fma_f32 v%d, v%d, v%d, v%d" % (ta(e - 2), ta(e - 2), vS2, vS2)))
            if 0 <= e - 3 < N: out.append(I("v_rcp_f32 v%d, v%d" % (ta(e - 3), ta(e - 3)), 8))
            if 0 <= e - 1 < N: out.append(I("v_mul_f32 v%d, v%d, v%d" % (els[e - 1][1], els[e - 1][0], els[e - 1][1])))
            if 0 <= e - 4 < N: out.append(I("v_mul_f32 v%d, v%d, v%d" % (els[e - 4][1], ta(e - 4), els[e - 4][1])))
            k = e - 5
            if 0 <= k < N and k % 2 == 1:
                fr = k // 8
                out.append(I("v_cvt_pk_bf16_f32 v%d, v%d, v%d" % (PK[fr % 2] + (k % 8) // 2, els[k - 1][1], els[k][1])))
                if k % 8 == 7: out.append((-8, (lambda fr=fr: store(PK[fr % 2], sH, fr * 1024, tag))))
        return out
    def st_kv(acc):
        out = [(2, lambda: M("s_lshl_b32 s%d, s%d, 18" % (sSt, sIQ), "s_lshl_b32 s%d, s%d, 10" % (sSt + 1, sBLK),
                             "s_add_u32 s%d, s%d, s%d" % (sSt + 2, sSt, sSt + 1), "s_add_u32 s%d, s%d, s%d" % (sSt, sSt + 2, sSt + 1)))]
        RT = lambda i: (32 + i) if i < 8 else (40 + i)
        out.append(I("v_lshrrev_b32 v27, 5, v%d" % vLane)); out.append(I("v_lshlrev_b32 v27, 4, v27"))
        bps = [(-4, (lambda k=k: lg.issue("ds_bpermute_b32 v%d, v27, v%d offset:%d" % (RT(k), vRs, ((k // 4) * 8 + k % 4) * 4), "rt"))) for k in range(16)]
        n = 0
        for f in (0, 1, 2, 3):
            for hf in range(2):
                r0 = acc + f * 16 + hf * 8; P = PK[n % 2]; n += 1
                if f == 2 and hf == 0: out.append((2, lambda: lg.wait("rt")))
                for i in range(8):
                    out.append(I("v_mul_f32 v%d, v%d, v%d" % (r0 + i, vRs if f < 2 else RT(hf * 8 + i), r0 + i)))
                    if i % 2 == 1 and bps: out.append(bps.pop(0))
                for i in range(4): out.append(I("v_cvt_pk_bf16_f32 v%d, v%d, v%d" % (P + i, r0 + 2 * i, r0 + 2 * i + 1)))
                def g(P=P, f=f, hf=hf):
                    if f < 2:
                        A("s_add_u32 s%d, s%d, 0x%x" % (sSt + 3, sSt + 2, KF + (2 * f + hf) * 65536)); store(P, sSt + 3, 0, "stkv")
                    else:
                        if hf == 0: A("s_add_u32 s%d, s%d, 0x%x" % (sSt + 3, sSt, VF + (f - 2) * 131072))
                        store(P, sSt + 3, hf * 1024, "stkv")
                out.append((-8, g))
        return out
    def st_q(acc):
        out = []; n = 0
        for f in range(2):
            for hf in range(2):
                r0 = acc + f * 16 + hf * 8; P = PK[n % 2]; n += 1
                for i in range(8): out.append(I("v_mul_f32 v%d, v%d, v%d" % (r0 + i, vQs, r0 + i)))
                for i in range(4): out.append(I("v_cvt_pk_bf16_f32 v%d, v%d, v%d" % (P + i, r0 + 2 * i, r0 + 2 * i + 1)))
                def g(P=P, f=f, hf=hf):
                    A("s_add_u32 s%d, s%d, 0x%x" % (sSt + 3, sSt + 2, QF + (2 * f + hf) * 65536)); store(P, sSt + 3, 0, "stq")
                out.append((-8, g))
        return out
    def ctr_mfma(p, k):
        A("%s %s, %s, %s, %s" % (MF, v(DT, 16), a(AI + 4 * k, 4), v(Xraw(2 * p + k), 4), v(CM, 16) if k == 0 else v(DT, 16)))
    def ctr_cvt(p):
        out = []
        x = Xraw(2 * p)
        for i in range(8): out.append(I("v_cvt_pk_bf16_f32 v%d, v%d, v%d" % (x + i, DT + 2 * i, DT + 2 * i + 1)))
        if p >= 8:
            acc = [I("v_accvgpr_write_b32 a%d, v%d" % (192 + 8 * (p - 8) + i, x + i)) for i in range(8)]
            out = out[:4] + [acc[0], out[4], acc[1], out[5], acc[2], out[6], acc[3], out[7]]
            lagq.extend(acc[4:])
        return out
    lagq = []

    def code_touch(sym, nl):
        def f():
            if not OPT["pf_code"]: return
            L = A.newlabel("L_ct")
            M("s_cmp_lg_u32 s%d, 0" % sW, "s_cbranch_scc1 %s" % L,
              "s_and_b32 s3, s%d, 15" % sIdx, "s_mul_i32 s3, s3, %d" % (nl * 128), "s_add_u32 s3, s3, OFF_%s" % sym,
              "v_lshlrev_b32 v14, 7, v%d" % vLane, "v_add_u32 v14, s3, v14", "v_min_u32 v14, CODE_SPAN, v14", "v_mov_b32 v15, s101",
              "v_add_co_u32 v14, vcc, s100, v14", "v_addc_co_u32 v15, vcc, 0, v15, vcc", "s_mov_b64 exec, %d" % ((1 << nl) - 1))
            A("global_load_dword v60, v[14:15], off")
            A("s_mov_b64 exec, -1")
            A.label(L)
            vm.ops.append("?ct")
        return f
    LANES = {"pk": 0xfff, "pq": 1, "pe": 0xff, "ph": 0xff, "po": 0xff}
    vPo = 31
    def publish(soff):
        A("s_mov_b64 exec, 0xffff")
        vm.issue("buffer_store_dwordx2 %s, v%d, s[%d:%d], s%d offen%s" % (v(vTag, 2), vL8, sWS, sWS + 3, soff, SC), "?flag")
        A("s_mov_b64 exec, -1")
    def poll_issue(voff, soff, tag, vF=vF):
        A("s_mov_b64 exec, 0x%x" % LANES[tag])
        vm.issue("buffer_load_dwordx2 %s, v%d, s[%d:%d], s%d offen sc1" % (v(vF, 2), voff, sWS, sWS + 3, soff), tag)
        A("s_mov_b64 exec, -1")
    def poll_check(voff, soff, tag, vF=vF):
        L = A.newlabel("L_poll"); D = A.newlabel("L_polld")
        chk = ["v_cmp_eq_u64 vcc, %s, %s" % (v(vF, 2), v(vTag, 2)), "s_and_b64 vcc, vcc, s[%d:%d]" % (sMask, sMask + 1),
               "s_cmp_eq_u64 vcc, s[%d:%d]" % (sMask, sMask + 1), "s_cbranch_scc1 %s" % D]
        stamp("pre_" + tag, True)
        vm.wait(tag)
        stamp("vm_" + tag, True)
        M(*chk)
        A("s_mov_b32 s%d, 0x20000" % sSpin)
        A.label(L)
        A("s_mov_b64 exec, 0x%x" % LANES[tag])
        A("buffer_load_dwordx2 %s, v%d, s[%d:%d], s%d offen sc1" % (v(vF, 2), voff, sWS, sWS + 3, soff))
        M("s_mov_b64 exec, -1", "s_waitcnt vmcnt(0)")
        M(*chk)
        M("s_sub_u32 s%d, s%d, 1" % (sSpin, sSpin), "s_cmp_lg_u32 s%d, 0" % sSpin, "s_cbranch_scc1 %s" % L)
        A.label(D)
        stamp("ok_" + tag, True)

    def Breg(p, cf):
        if p < 28: return a(32 + p * 8 + cf * 4, 4)
        return a(((p - 28) % 2) * 8 + cf * 4, 4)
    ORD = [[0, 1, 2, 3, 4, 5, 6, 7, 8, 9, 10, 11, 12, 13], [0, 1, 4, 5, 8, 9, 2, 3, 6, 7, 10, 11, 12, 13]][OPT["b2ord"]]
    def b2_dma(i):
        n = ORD[i]
        res = []
        for j in range(4):
            def f(j=j):
                if j == 0:
                    if i >= 2: lg.wait("b2r%d" % (i - 2))
                    A("s_add_u32 m0, s%d, %d" % (sStg, (i % 2) * 4096))
                    if n % 2 == 0:
                        grp_base(sBg, n // 2)
                        M("s_lshl_b32 s%d, s%d, 14" % (sBg, sBg), "s_add_u32 s%d, s%d, s%d" % (sBg, sBg, sBd))
                    else: A("s_add_u32 s%d, s%d, 32768" % (sBg, sBg))
                vm.issue("buffer_load_dwordx4 v%d, s[%d:%d], s%d offen offset:%d lds" % (vDB[j], sDN, sDN + 3, sBg, j * 1024), "b2d%d" % i)
            res.append(f)
        return res
    def b2_read(i):
        n = ORD[i]
        res = []
        for kk in range(2):
            for cf in range(2):
                for hh in range(2):
                    def f(kk=kk, cf=cf, hh=hh):
                        if kk == 0 and cf == 0 and hh == 0: vm.wait("b2d%d" % i)
                        R = vBA if cf == 0 else vBB
                        d = 32 + (2 * n + kk) * 8 + cf * 4 + 2 * hh
                        lg.issue("ds_read_b64_tr_b16 %s, v%d offset:%d" % (a(d, 2), R, (i % 2) * 4096 + kk * 2048 + hh * 1024), "b2r%d" % i)
                    f.is_ds = True
                    res.append(f)
        return res
    sWl = 73
    def wo2():
        vm.issue("buffer_load_dwordx4 v%d, s[%d:%d], s%d offen lds" % (vDB[0], sWO, sWO + 3, sTmp), "wo")
        vm.issue("buffer_load_dwordx4 v%d, s[%d:%d], s%d offen offset:1024 lds" % (vDB[1], sWO, sWO + 3, sTmp), "wo")
        M("s_add_u32 m0, m0, 2048", "s_add_u32 s%d, s%d, 16384" % (sTmp, sTmp))

    KVB = 65536
    def kv_dma():
        res = []
        def pre():
            M("s_lshl_b32 s3, s%d, 17" % sP, "s_lshl_b32 s4, s%d, 12" % sRB, "s_lshl_b32 s5, s%d, 16" % sW, "s_add_u32 s5, s5, s4", "s_add_u32 s5, s5, 0x%x" % (KF - 8192),
              "s_lshl_b32 s6, s4, 1", "s_mul_i32 s7, s%d, 12288" % sW, "s_add_u32 s6, s6, s7", "s_add_u32 s6, s6, 0x%x" % (VF - 16384 - 24576),
              "s_cmp_ge_u32 s%d, 2" % sW, "s_cselect_b32 s5, s6, s5", "s_add_u32 s5, s5, s3")
        res.append(pre)
        for i in range(12):
            def f(i=i):
                if i % 4 == 0: M("s_add_u32 m0, s7, %d" % (KVB + i * 1024), "s_add_u32 s6, s5, %d" % (i * 1024))
                vm.issue("buffer_load_dwordx4 v%d, s[%d:%d], s6 offen offset:%d%s lds" % (vL16, sWS, sWS + 3, (i % 4) * 1024, SC), "kv")
            res.append(f)
        return res

    Q0, Q1, K0, K1_ = 192, 196, 200, 204
    V0, V1 = 208, 216
    P = 224
    S0, S1, O0, O1, MD, ME = 128, 144, 160, 176, 232, 64

    def bulk():
        res = []
        if not OPT["bulk"]: return res
        def f0():
            M("s_lshl_b32 s3, s2, 2", "s_add_u32 s3, s3, s%d" % sW, "s_mul_i32 s4, s3, 1536", "s_and_b32 s5, s%d, 1" % sW, "s_lshl_b32 s6, s2, 1", "s_add_u32 s6, s6, s5", "s_mul_i32 s6, s6, 3584")
            vm.issue("buffer_load_dword v60, v%d, s[%d:%d], s4 offen" % (vL16, sWQ, sWQ + 3), "bulk")
        res.append(f0)
        res.append(lambda: (A("s_mov_b32 exec_hi, 0"), vm.issue("buffer_load_dword v60, v%d, s[%d:%d], s4 offen offset:1024" % (vL16, sWQ, sWQ + 3), "bulk"), A("s_mov_b32 exec_hi, -1")))
        for j in range(3):
            res.append(lambda j=j: vm.issue("buffer_load_dword v60, v%d, s[%d:%d], s6 offen offset:%d" % (vL16, sGU, sGU + 3, j * 1024), "bulk"))
        res.append(lambda: (A("s_mov_b32 exec_hi, 0"), vm.issue("buffer_load_dword v60, v%d, s[%d:%d], s6 offen offset:3072" % (vL16, sGU, sGU + 3), "bulk"), A("s_mov_b32 exec_hi, -1")))
        if OPT["bulkb"] == 1:
            def g0():
                M("s_mul_i32 s4, s3, 1792", "s_lshl_b32 s5, s3, 9")
                vm.issue("buffer_load_dword v60, v%d, s[%d:%d], s4 offen" % (vL16, sDN, sDN + 3), "bulk")
            res.append(g0)
            res.append(lambda: vm.issue("buffer_load_dword v60, v%d, s[%d:%d], s4 offen offset:768" % (vL16, sDN, sDN + 3), "bulk"))
            res.append(lambda: (A("s_mov_b32 exec_hi, 0"), vm.issue("buffer_load_dword v60, v%d, s[%d:%d], s5 offen" % (vL16, sWO, sWO + 3), "bulk"), A("s_mov_b32 exec_hi, -1")))
        return res

    def stats(stage0, stages):
        if OPT["t0"]:
            M("v_mov_b32 v61, v57") if False else None
        if OPT["t0"]:
            kind, t = stages[0]
            base, sk, srd_, st = {"KV": (sKVb, sKq + t, sWQ, 3072), "Pa": (sGa, sKg + t, sGU, 3584)}[kind]
            M("v_mul_u32_u24 v38, %d, v%d" % (st, vLane), "s_add_u32 s4, s%d, s%d" % (base, sk))
            vm.issue("buffer_load_dword v60, v38, s[%d:%d], s4 offen" % (srd_, srd_ + 3), "tch")
        if OPT["bulk"] == 3:
            A("v_lshlrev_b32 v%d, 4, v%d" % (vL16, vLane))
            M("s_mov_b32 s90, s5", "s_mov_b32 s91, s6")
            for f in bulk(): f()
            M("s_mov_b32 s5, s90", "s_mov_b32 s6, s91")
        n0 = OPT["s0first"]
        for f in stage0[:n0]: f()
        for f in late: f()
        stamp("setup")
        rest = list(xl) + stage0[n0:] + (bulk() if OPT["bulk"] == 1 else [])
        for _ in range(OPT["xahead"]): rest.pop(0)()
        def rdx(c):
            vm.wait("x%d" % c)
            if OPT.get("xst"): stamp("x%d" % c)
            for sp in range(4):
                lg.issue("ds_read_b128 %s, v%d offset:%d" % (v(Xraw(4 * c + sp), 4), vXR + sp, c * 4096), "xr%d" % c)
        rdx(0)
        for c in range(8):
            for _ in range(4 if c < 4 else 2):
                if rest: rest.pop(0)()
            if c + 1 < 8: rdx(c + 1)
            lg.wait("xr%d" % c)
            for i in range(16):
                x = Xraw(4 * c) + i
                A("v_dot2_f32_bf16 v%d, v%d, s%d, v%d" % (vSt + i % 4, x, sOne, vSt + i % 4))
                A("v_dot2_f32_bf16 v%d, v%d, v%d, v%d" % (vSt + 4 + i % 4, x, x, vSt + 4 + i % 4))
                if i == 7 and c >= 4:
                    for _ in range(2):
                        if rest: rest.pop(0)()
        while rest: rest.pop(0)()
        stamp("stats")
        if OPT["ptouch"]: A("s_waitcnt lgkmcnt(0)")
        vm.wait("ep")
        A("s_barrier")

    def ln_scalar(dm):
        M("s_mov_b32 s4, 0x9e3779b9", "v_add_co_u32 v%d, vcc, 0x7f4a7c15, v%d" % (vTag, vTag), "v_mov_b32 v40, s4")
        seq = ["v_add_f32 v48, v48, v49", "v_add_f32 v50, v50, v51", "v_addc_co_u32 v%d, vcc, v40, v%d, vcc" % (vTag + 1, vTag + 1),
               "v_add_f32 v52, v52, v53", "v_add_f32 v54, v54, v55",
               "v_add_f32 v48, v48, v50", "v_add_f32 v52, v52, v54",
               "v_mov_b32 v49, v48", "v_mov_b32 v53, v52", None,
               "v_permlane32_swap_b32 v48, v49", "v_permlane32_swap_b32 v52, v53",
               "v_add_f32 v48, v48, v49", "v_add_f32 v52, v52, v53",
               "v_mul_f32 v48, %s, v48" % f32(1.0 / 512), "v_mul_f32 v52, %s, v52" % f32(1.0 / 512),
               "v_fma_f32 v52, -v48, v48, v52", "v_max_f32 v52, 0, v52",
               "v_cvt_pk_bf16_f32 v48, v48, v52",
               "v_and_b32 v52, 0xffff0000, v48", "v_lshlrev_b32 v48, 16, v48",
               "v_add_f32 v52, %s, v52" % f32(1e-5),
               "v_cvt_pk_bf16_f32 v52, v52, v52", "v_and_b32 v52, 0xffff0000, v52",
               "v_sqrt_f32 v52, v52", None,
               "v_cvt_pk_bf16_f32 v52, v52, v52", "v_and_b32 v%d, 0xffff0000, v52" % vSd,
               "v_rcp_f32 v%d, v%d" % (vRs, vSd)]
        k_ = seq.index("v_add_f32 v52, %s, v52" % f32(1e-5))
        seq[k_:k_] = ["v_xor_b32 v%d, 0x80000000, v48" % CM]
        fillm = ["v_mov_b32 v%d, v%d" % (CM + i, CM) for i in range(1, 16)]
        tailseq = seq[k_ + 1:]; seq = seq[:k_ + 1]
        for x_ in tailseq:
            seq.append(x_); seq += fillm[:2]; fillm = fillm[2:]
        seq += fillm
        for s_ in seq:
            if s_ is None:
                if dm: dm.pop(0)()
            else: A(s_)

    tyn = [0]
    B2PLAN = [[[0], [1], [2], [3], [4], [5], [6], [7, 8], [9, 10], [11]],
              [[0], [1], [2], [3], [4], [5], [6], [7], [8, 9], [10, 11]],
              [[0], [1], [2], [3], [4, 5], [6, 7], [8], [9], [10], [11]],
              [[], [0], [1], [2], [3], [4, 5], [6, 7], [8], [9, 10], [11]],
              [[0], [1], [2], [3], [4], [5], [6], [7], [8], [9]],
              [[], [0, 1], [2], [3, 4], [5], [6], [7], [], [8], [9]],
              [[], [0, 1], [2], [3, 4], [5], [6], [7], [8], [9, 10], [11]]][OPT["plan"]]
    NP1 = max(max(x) for x in B2PLAN if x) + 1
    def phase1(ty, stages, accs, streams, tail):
        tyn[0] = ty
        stats(dma_stage(stages[0][0], stages[0][1], 0, "s0"), stages)
        M("s_and_b32 s4, s%d, 1" % sW, "s_lshl_b32 s4, s4, 6", "v_xor_b32 v%d, s4, v%d" % (vBA, vBA), "v_xor_b32 v%d, s4, v%d" % (vBB, vBB))
        dm = []
        for sidx in range(1, 4): dm += dma_stage(stages[sidx][0], stages[sidx][1], sidx, "s%d" % sidx)
        if OPT["bulk"] == 2: dm = dm[:8] + bulk() + dm[8:]
        if OPT["t1"]:
            firsts = [st_ for i_, st_ in enumerate(stages) if i_ > 0 and st_[1] == 0]
            dm = dm[:OPT["t1"] - 1] + [touch(*x_) for x_ in firsts] + dm[OPT["t1"] - 1:]
        for j in range(1, 4): A("v_add_u32 v%d, %d, v61" % (vDB[j], j * 7168))
        A("v_mov_b32 v%d, v61" % vDB[0])
        hold = []
        if not OPT["lndma"]: hold, dm = dm, []
        ln_scalar(dm)
        ctr_mfma(0, 0); ctr_mfma(0, 1)
        for _ in range(4):
            if dm: dm.pop(0)()
        for c, f in ctr_cvt(0): f()
        stamp("ln")
        vm.wait("s0")
        if OPT.get("xst"): stamp("s0")
        A("s_barrier")
        q4 = quad(stages[0][0], stages[0][1], 0, 0)
        n = 0
        for j in range(4): rd(q4, j, 0, "w%d_%d" % (n, j // 2))
        buf = 0
        wpend = dm + hold
        fill = []; fill_gaps = 0; fill_tot = 0; fill_done = 0; gap = 0
        for sidx, (kind, t) in enumerate(stages):
            slot = sidx % 4
            vm.hook = stamp if (OPT.get("wst") and OPT["wst"] <= sidx <= OPT["wst"] + 3) else None
            bx = []
            for n_ in B2PLAN[sidx]: bx += (b2_read(n_ - 2) if n_ >= 2 else []) + b2_dma(n_)
            if len(B2PLAN[sidx]) == 2:
                h_ = len(bx) // 2
                ex = bx[:h_] + list(wpend) + bx[h_:]
            else: ex = bx + list(wpend) if sidx else list(wpend) + bx
            wpend = []
            if OPT["bulkb"] >= 2 and sidx == OPT["bulkb"] - 2:
                def g0():
                    M("s_lshl_b32 s3, s2, 2", "s_add_u32 s3, s3, s%d" % sW, "s_mul_i32 s4, s3, 1792", "s_lshl_b32 s5, s3, 9")
                    vm.issue("buffer_load_dword v60, v%d, s[%d:%d], s4 offen" % (vL16, sDN, sDN + 3), "bulk")
                ex += [g0, lambda: vm.issue("buffer_load_dword v60, v%d, s[%d:%d], s4 offen offset:768" % (vL16, sDN, sDN + 3), "bulk"),
                       lambda: (A("s_mov_b32 exec_hi, 0"), vm.issue("buffer_load_dword v60, v%d, s[%d:%d], s5 offen" % (vL16, sWO, sWO + 3), "bulk"), A("s_mov_b32 exec_hi, -1"))]
            if sidx == 1 and OPT["satom"]:
                def at():
                    L = A.newlabel("L_at")
                    M("s_mov_b32 s%d, 1" % (sDBG + 2), "s_cmp_lg_u32 s%d, 0" % sW, "s_cbranch_scc1 %s" % L, "s_atomic_add s%d, s[%d:%d], 0 glc" % (sDBG + 2, sDBG, sDBG + 1))
                    A.label(L)
                ex.append(at)
            if sidx == 4: A.label("L_mid%d" % ty)
            if sidx == 2: ex.append(code_touch("L_mid%d" % ty, 6))
            if sidx == 7: ex.append(code_touch("L_ATT", 8))
            if sidx == OPT["wopf"]:
                def wp(j):
                    if j == 0: M("s_and_b32 s3, s%d, 3" % sR, "s_lshl_b32 s3, s3, 15", "s_add_u32 s%d, s3, s%d" % (sSpin, sBo), "s_sub_u32 s%d, s%d, 0" % (sSpin, sSpin))
                    vm.issue("buffer_load_dword v60, v%d, s[%d:%d], s%d offen offset:%d" % (vDB[j], sWO, sWO + 3, sSpin, j * 1024), "wopf")
                ex += [(lambda j=j: wp(j)) for j in range(4)]
            if ty == 0 and sidx == 6:
                def pubkv():
                    vm.wait("stkv")
                    M("s_lshl_b32 s3, s%d, 15" % sIQ, "s_lshl_b32 s4, s%d, 11" % sRB, "s_add_u32 s3, s3, s4", "s_lshl_b32 s4, s%d, 7" % sW, "s_add_u32 s3, s3, s4", "s_add_u32 s3, s3, 0x%x" % FK)
                    publish(3)
                ex.insert(12, pubkv)
            if ty == 0 and sidx == 8:
                def pubq():
                    vm.wait("stq")
                    M("s_lshl_b32 s3, s%d, 15" % sIQ, "s_lshl_b32 s4, s%d, 11" % sRB, "s_add_u32 s3, s3, s4", "s_lshl_b32 s4, s%d, 7" % sW, "s_add_u32 s3, s3, s4", "s_add_u32 s3, s3, 0x%x" % FQ)
                    publish(3)
                ex.insert(0, pubq)
            if ty == 1 and sidx == 8:
                def pube():
                    vm.wait("sta")
                    M("s_lshl_b32 s3, s%d, 11" % sBLK, "s_lshl_b32 s4, s%d, 7" % sP, "s_add_u32 s3, s3, s4", "s_add_u32 s3, s3, 0x%x" % FE)
                    publish(3)
                ex.insert(len(ex) // 2, pube)
            if sidx == OPT["kvst"] - 1:
                def pk():
                    M("s_lshr_b32 s3, s%d, 1" % sP, "s_lshl_b32 s3, s3, 15", "s_lshl_b32 s4, s%d, 11" % sRB, "s_add_u32 s3, s3, s4", "s_add_u32 s%d, s3, 0x%x" % (sFl, FK - 4096),
                      "s_lshl_b32 s4, s%d, 2" % sRB, "s_sub_i32 s4, 8, s4", "s_max_i32 s4, s4, 0",
                      "s_lshl_b32 s%d, -1, s4" % sMask, "s_and_b32 s%d, s%d, 0xfff" % (sMask, sMask), "s_mov_b32 s%d, 0" % (sMask + 1))
                    poll_issue(vPo, sFl, "pk")
            if sidx == OPT["kvst"]:
                ex = [lambda: poll_check(vPo, sFl, "pk")] + kv_dma() + ex
            if sidx == OPT["kvst"] - 1: ex.insert(1, pk)
            if sidx == 9:
                def pq():
                    M("s_lshr_b32 s3, s%d, 1" % sP, "s_lshl_b32 s3, s3, 15", "s_lshl_b32 s4, s%d, 11" % sRB, "s_add_u32 s3, s3, s4", "s_lshl_b32 s4, s%d, 7" % sW, "s_add_u32 s3, s3, s4", "s_add_u32 s%d, s3, 0x%x" % (sFl, FQ),
                      "s_mov_b32 s%d, 1" % sMask, "s_mov_b32 s%d, 0" % (sMask + 1))
                    poll_issue(vPo, sFl, "pq")
                ex.insert(8, pq)
            if sidx in streams:
                if fill: flush_held()
                while fill: fill.pop(0)[1]()
                fill, ns = streams[sidx]
                fill = list(fill); fill_gaps = ns * 32 - 6; fill_tot = sum(abs(c) for c, _ in fill); fill_done = 0; gap = -3
            nex = len(ex); exi = 0
            for q in range(8):
                cur = quad(kind, t, slot, q)
                if q == 7:
                    if sidx + 1 < len(stages):
                        vm.wait("s%d" % (sidx + 1))
                        if vm.hook: stamp("preb")
                        A("s_barrier")
                        if vm.hook: stamp("bar")
                        nxt = quad(stages[sidx + 1][0], stages[sidx + 1][1], (sidx + 1) % 4, 0)
                        if sidx >= 1 and sidx + 3 < len(stages):
                            wpend = dma_stage(stages[sidx + 3][0], stages[sidx + 3][1], (sidx + 3) % 4, "s%d" % (sidx + 3))
                    else:
                        nxt = None
                else:
                    nxt = quad(kind, t, slot, q + 1)
                pc = (8 * sidx + q) // 2 + 1
                if q % 2 == 0: lag_now = list(lagq); del lagq[:]
                if sidx < 4 and pc < 16 and q % 2 == 0: cq = ctr_cvt(pc)
                docm = sidx < 4 and pc < 16
                for j in range(4):
                    acc, xi, _, _, _ = cur[j]
                    if j % 2 == 0: lg.wait("w%d_%d" % (n, j // 2))
                    d = v(accs[sidx] + acc * 16, 16)
                    c = d if xi > 0 else "0"
                    wf, xf = a(buf * 16 + j * 4, 4), Xr(xi)
                    if kind == "KV" and acc >= 2: A("%s %s, %s, %s, %s" % (MF, d, xf, wf, c))
                    else: A("%s %s, %s, %s, %s" % (MF, d, wf, xf, c))
                    used = 4 if held else 0
                    flush_held()
                    if nxt is not None: rd(nxt, j, buf ^ 1, "w%d_%d" % (n + 1, j // 2))
                    g_in = q * 4 + j
                    due = lambda: exi < nex and exi * 29 <= g_in * nex
                    isds = lambda: getattr(ex[exi], "is_ds", False)
                    if fill and fill[0][0] == -4:
                        c_, f = fill.pop(0); f(); fill_done += 4; used += 4
                    elif due() and isds():
                        ex[exi](); exi += 1; used += 4
                        if exi < nex and exi * 29 <= (g_in - 3) * nex and isds():
                            ex[exi](); exi += 1; used += 4
                    if fill and fill[0][0] == -8:
                        c_, f = fill.pop(0); run_hold(f); fill_done += 8
                    elif due() and not isds():
                        run_hold(ex[exi]); exi += 1; used += 2
                    if q % 2 == 0 and lag_now: lag_now.pop(0)[1]()
                    if docm:
                        g8 = (q % 2) * 4 + j
                        if g8 in (0, 1): ctr_mfma(pc, g8)
                        if g8 >= 4:
                            k = -(-len(cq) // (8 - g8))
                            for _ in range(k): cq.pop(0)[1]()
                    if sidx == 3 and q == 7 and j == 0:
                        M("v_mul_f32 v%d, %s, v%d" % (vC1, f32(-LOG2E), vRs), "v_mul_f32 v%d, v%d, v%d" % (vS2, vSd, vSd), "v_mul_f32 v%d, %s, v%d" % (vQs, f32(0.25 * LOG2E), vRs))
                    if sidx == 3 and q == 7 and j == 1:
                        M("v_lshrrev_b32 v%d, 2, v%d" % (vPo, vLane), "v_and_b32 v27, 3, v%d" % vLane, "v_lshlrev_b32 v27, 7, v27", "v_lshl_add_u32 v%d, v%d, 11, v27" % (vPo, vPo))
                    gap += 1
                    if fill and gap > 0:
                        lag = fill_tot * gap / fill_gaps - fill_done
                        lim = max(OPT["budget"], fill_tot / fill_gaps + 4)
                        while fill and fill[0][0] > 0 and lag > 0 and (used + fill[0][0] <= lim or lag > 24):
                            c_, f = fill.pop(0); f(); fill_done += c_; used += c_; lag -= c_
                buf ^= 1; n += 1
            while exi < nex:
                flush_held(); ex[exi](); exi += 1
            if OPT["stamp"]: flush_held()
            stamp("st%d" % sidx, sidx not in (3, 5, 7, 9))
        vm.hook = None
        flush_held()
        while fill: fill.pop(0)[1]()
        poll_check(vPo, sFl, "pq")
        M("s_lshl_b32 s3, s%d, 17" % sP, "s_lshl_b32 s4, s%d, 10" % sBLK, "s_add_u32 s4, s4, s3", "s_add_u32 s4, s4, 0x%x" % QF, "s_add_u32 s5, s4, 65536")
        vm.issue("buffer_load_dwordx4 %s, v%d, s[%d:%d], s4 offen%s" % (v(Q0, 4), vL16, sWS, sWS + 3, SC), "q")
        vm.issue("buffer_load_dwordx4 %s, v%d, s[%d:%d], s5 offen%s" % (v(Q1, 4), vL16, sWS, sWS + 3, SC), "q")
        M("s_lshl_b32 s%d, s%d, 12" % (sXo, sR), "s_lshl_b32 s3, s%d, 9" % sW, "s_add_u32 s%d, s%d, s3" % (sXo, sXo), "s_add_u32 s%d, s%d, 0x%x" % (sXo, sXo, FE))
        poll_issue(vPo, sXo, "pe", 14)
        for f in b2_read(NP1 - 2): f()
        for c_, f in tail: f()
        stamp("tail")

    M("s_cmp_eq_u32 s%d, 0" % sTy, "s_cbranch_scc0 L_HH")
    sv, sl, sn = vm.save(), lg.save(), nst[0]
    phase1(0, [("KV", t) for t in range(4)] + [("Q", t) for t in range(2)] + [("Pa", t) for t in range(4)],
           [ACA] * 4 + [ACB] * 2 + [ACA] * 4,
           {4: (st_kv(ACA), 2), 6: (st_q(ACB), 1)}, st_swiglu(ACA, 2, 32, sHa, "sth"))
    A("s_branch L_ATT")
    A.label("L_HH")
    vm.load(sv); lg.load(sl); nst[0] = sn
    phase1(1, [("Pa", t) for t in range(4)] + [("Pb", t) for t in range(4)] + [("P1", t) for t in range(2)],
           [ACA] * 4 + [ACB] * 4 + [ACA] * 2,
           {4: (st_swiglu(ACA, 2, 32, sHa, "sta"), 4), 8: (st_swiglu(ACB, 2, 32, sHb, "sth"), 2)}, st_swiglu(ACA, 1, 16, sH1, "sth"))
    A.label("L_ATT")
    vKA, vVA = 6, 7
    M("v_and_b32 v40, 31, v%d" % vLane, "v_lshrrev_b32 v41, 5, v%d" % vLane, "v_lshlrev_b32 v41, 2, v41", "v_sub_u32 v40, v40, v41",
      "v_mov_b32 v41, 0xff800000", "v_mov_b32 v42, 0")
    for rg in range(16):
        c = (rg // 4) * 8 + rg % 4
        A("v_cmp_le_i32 s[%d:%d], %d, v40" % (4 + 2 * (rg % 2), 5 + 2 * (rg % 2), c))
        A("v_mov_b32 v%d, 0x3f803f80" % (V0 + rg))
        if rg > 0:
            pr = rg - 1
            A("v_cndmask_b32 v%d, v41, v42, s[%d:%d]" % (MD + pr, 4 + 2 * (pr % 2), 5 + 2 * (pr % 2)))
            A("v_cndmask_b32 v%d, v42, v41, s[%d:%d]" % (ME + pr, 4 + 2 * (pr % 2), 5 + 2 * (pr % 2)))
    M("s_mov_b32 s%d, 0x0000ffff" % sE0, "s_mov_b32 s%d, 0x0000ffff" % (sE0 + 1))
    M("v_cndmask_b32 v%d, v41, v42, s[6:7]" % (MD + 15), "v_cndmask_b32 v%d, v42, v41, s[6:7]" % (ME + 15))
    M("s_mov_b32 s%d, 0xffff0000" % sE1, "s_mov_b32 s%d, 0xffff0000" % (sE1 + 1))
    M("s_sub_i32 s%d, 8, s%d" % (sI0, sBLK), "s_max_i32 s%d, s%d, 0" % (sI0, sI0))
    M("s_add_u32 s4, s%d, s%d" % (sI0, sW), "s_lshl_b32 s5, s4, 10", "s_add_u32 s5, s5, %d" % KVB, "v_add_u32 v%d, s5, v%d" % (vKA, vL16),
      "s_lshl_b32 s5, s4, 11", "s_add_u32 s5, s5, %d" % (KVB + 24576), "v_add_u32 v%d, s5, v%d" % (vVA, vL16),
      "v_mov_b32 v12, v%d" % vKA, "v_mov_b32 v13, v%d" % vVA)
    A("v_mov_b32 v%d, 1" % vRet)
    M("s_lshl_b32 s3, s%d, 11" % sBLK, "s_lshl_b32 s4, s%d, 7" % sP, "s_add_u32 s3, s3, s4", "s_add_u32 s%d, s3, 0x%x" % (sFl, FH))
    D2 = OPT["d2"]
    M("s_lshl_b32 s3, s%d, 1" % sR, "s_lshr_b32 s4, s%d, 1" % sW, "s_add_u32 s5, s3, s4", "s_xor_b32 s6, s5, 1",
      "s_mul_i32 s%d, s5, %d" % (sAd, 144 * 1024), "s_mul_i32 s%d, s6, %d" % (sAd + 1, 144 * 1024),
      "s_lshl_b32 s4, s%d, 13" % sW, "s_add_u32 s4, s4, %d" % (112 * 1024), "s_add_u32 s%d, s%d, s4" % (sAo, sAd), "s_add_u32 s%d, s%d, s4" % (sAo + 1, sAd + 1),
      "s_mov_b32 s%d, 0xcc" % sMask, "s_mov_b32 s%d, 0" % (sMask + 1))
    sAg = 78
    pool = [64, 68, 72, 76] + list(range(192, 256, 4))
    assert len(pool) >= 2 * D2
    def AFr(ks, rf):
        if ks < 6: return v(80 + ks * 8 + rf * 4, 4)
        if ks < 8: return a(16 + (ks - 6) * 8 + rf * 4, 4)
        return v(pool[((ks - 8) % D2) * 2 + rf], 4)
    def loadA(ks):
        kk = ks if ks < 28 else ks - 28
        if kk % 4 == 0:
            if ks < 28:
                grp_base(sAg, ks // 4)
                M("s_lshl_b32 s%d, s%d, 10" % (sAg, sAg), "s_add_u32 s%d, s%d, s%d" % (sAg + 1, sAg, sAd + 1), "s_add_u32 s%d, s%d, s%d" % (sAg, sAg, sAd))
            else:
                M("s_add_u32 s%d, s%d, %d" % (sAg, sAo, kk * 1024), "s_add_u32 s%d, s%d, %d" % (sAg + 1, sAo + 1, kk * 1024))
        for rf in range(2):
            vm.issue("buffer_load_dwordx4 %s, v%d, s[%d:%d], s%d offen offset:%d%s" % (AFr(ks, rf), vL16, sWS, sWS + 3, sAg + rf, (kk % 4) * 1024, SC), "a%d" % ks)
    LA = lambda ks: (lambda: loadA(ks))
    M("s_lshl_b32 s%d, s%d, 14" % (sSt, sW), "s_mov_b32 s%d, s%d" % (sWl, sSt), "s_mov_b32 s%d, s%d" % (sTmp, sBo))
    for f in b2_dma(NP1): f()
    for f in b2_read(NP1 - 1): f()
    poll_check(vPo, sXo, "pe", 14)
    EL = OPT["elate"]
    if not EL: loadA(0); loadA(1)
    M("s_add_u32 s%d, s%d, 0x%x" % (sXo, sXo, FH - FE + (1 << 32) if FH < FE else FH - FE), "s_mov_b32 s%d, 0xff" % sMask)
    vm.wait("q"); A("s_barrier")
    stamp("att0")
    def rdK(h, off): lg.issue("ds_read_b128 %s, v%d offset:%d" % (v(K0 if h == 0 else K1_, 4), vKA, h * 12288 + off), "k%d" % h)
    def rdV(h, off):
        A("s_mov_b64 exec, s[%d:%d]" % ((sE0, sE0 + 1) if h == 0 else (sE1, sE1 + 1)))
        R = V0 if h == 0 else V1
        lg.issue("ds_read_b128 %s, v%d offset:%d" % (v(R, 4), vVA, off), "v%d" % h)
        lg.issue("ds_read_b128 %s, v%d offset:%d" % (v(R + 4, 4), vVA, off + 1024), "v%d" % h)
        A("s_mov_b64 exec, -1")
    def mask(m): return {"0": "0", "D": v(MD, 16), "E": v(ME, 16)}[m]
    def ex_(r): A("v_exp_f32 v%d, v%d" % (r, r))
    def cv(d, s_): A("v_cvt_pk_bf16_f32 v%d, v%d, v%d" % (d, s_, s_ + 1))
    def half(h, mqk, last, first, extra):
        S, O, Vr = (S0, O0, V0) if h == 0 else (S1, O1, V1)
        So, Oo, Vo, Ko, Qo = (S1, O1, V1, K1_, Q1) if h == 0 else (S0, O0, V0, K0, Q0)
        ex_(S); ex_(S + 1)
        if not (first and h == 0): A("%s %s, %s, %s, %s" % (MF, v(Oo, 16), v(Vo + 4, 4), v(P + 4, 4), v(Oo, 16)))
        n_new = 0
        if not last: rdK(h, 1024); n_new += 1
        if mqk is not None: rdV(1 - h, 0 if h == 0 else 2048); n_new += 2
        ex_(S + 2); ex_(S + 3); ex_(S + 4); ex_(S + 5); cv(P, S); cv(P + 1, S + 2)
        A("s_waitcnt lgkmcnt(%d)" % n_new)
        if mqk is not None: A("%s %s, %s, %s, %s" % (MF, v(So, 16), v(Ko, 4), v(Qo, 4), mask(mqk)))
        ex_(S + 6); ex_(S + 7); ex_(S + 8); ex_(S + 9); cv(P + 2, S + 4); cv(P + 3, S + 6); ex_(S + 10); ex_(S + 11)
        A("%s %s, %s, %s, %s" % (MF, v(O, 16), v(Vr, 4), v(P, 4), "0" if first else v(O, 16)))
        for f in extra: f()
        ex_(S + 12); ex_(S + 13); cv(P + 4, S + 8); cv(P + 5, S + 10); ex_(S + 14); ex_(S + 15)
        if h == 1 and not last: M("v_add_u32 v%d, 1024, v%d" % (vKA, vKA), "v_add_u32 v%d, 2048, v%d" % (vVA, vVA))
        cv(P + 6, S + 12); cv(P + 7, S + 14)
    def body(m1, m0n, first=False, e0=(), e1=()):
        half(0, m1, m0n is None, first, e0); half(1, m0n, m0n is None, first, e1)
    rdK(0, 0); rdK(1, 0); rdV(0, 0)
    for f in b2_dma(NP1 + 1): f()
    A("s_mov_b32 m0, s%d" % sSt)
    if not OPT["satom"]:
        M("s_cmp_lg_u32 s%d, 0" % sW, "s_cbranch_scc1 L_noat", "s_mov_b64 exec, 1")
        A("buffer_atomic_add v%d, v%d, s[%d:%d], 0 offen sc0" % (vRet, vL16, sDBG, sDBG + 3))
        A("s_mov_b64 exec, -1")
        A.label("L_noat")
    M("s_cmp_lg_u32 s%d, 0" % sI0, "s_cbranch_scc1 A_short")
    sv_short = vm.save()
    A("s_waitcnt lgkmcnt(3)")
    A("%s %s, %s, %s, %s" % (MF, v(S0, 16), v(K0, 4), v(Q0, 4), v(ME, 16)))
    A("s_mov_b32 s%d, 6" % sCnt)
    body("E", "0", True, *(([wo2], []) if EL else ([wo2, LA(2)], [LA(3)])))
    stamp("t0", True)
    A.label("A_mid")
    def pubh():
        L = A.newlabel("L_ph")
        M("s_cmp_lg_u32 s%d, %d" % (sCnt, 7 - OPT["pubh"]), "s_cbranch_scc1 %s" % L)
        for _ in range(OPT["pubh"] - 1): vm.ops += ["wo", "wo"]
        vm.wait("sth"); publish(sFl)
        A.label(L)
    body("0", "0", False, [wo2], [pubh])
    M("s_sub_u32 s%d, s%d, 1" % (sCnt, sCnt), "s_cmp_lg_u32 s%d, 0" % sCnt, "s_cbranch_scc1 A_mid")
    A.label("A_b7")
    body("0", "D", False, *(([wo2, LA(0)], [LA(1), LA(2)]) if EL else ([wo2, LA(4)], [LA(5)])))
    A.label("A_b8")
    if NP1 == 10:
        for f in b2_read(10) + b2_dma(12) + b2_read(11) + b2_dma(13): f()
    PH = lambda: poll_issue(vPo, sXo, "ph")
    body("D", None, False, *(([PH, LA(3), LA(4)], [LA(5), LA(6)]) if EL else ([PH, LA(6)], [LA(7)])))
    if EL: loadA(7)
    A("%s %s, %s, %s, %s" % (MF, v(O1, 16), v(V1 + 4, 4), v(P + 4, 4), v(O1, 16)))
    lg.mark_all()
    vm_main = vm.save()
    stamp("att")
    for f in b2_read(12) + b2_read(13): f()
    M("v_rcp_f32 v40, v%d" % (O0 + 8), "v_rcp_f32 v41, v%d" % O1, "v_mov_b32 v42, 0x1f800000", "v_mov_b32 v43, 0x5f800000")
    M("v_cmp_le_f32 vcc, v42, v%d" % (O0 + 8), "v_cmp_ge_f32 s[4:5], v43, v%d" % (O0 + 8), "v_cmp_le_f32 s[6:7], v42, v%d" % O1, "s_and_b64 vcc, vcc, s[4:5]",
      "v_cmp_ge_f32 s[4:5], v43, v%d" % O1, "s_and_b64 vcc, vcc, s[6:7]")
    for i in range(8): M("v_mul_f32 v%d, v%d, v40" % (O0 + i, O0 + i), "v_mul_f32 v%d, v%d, v41" % (O1 + 8 + i, O1 + 8 + i))
    A("s_and_b64 s[6:7], vcc, s[4:5]")
    for i in range(4): A("v_pk_add_f32 %s, %s, %s" % (v(T + 2 * i, 2), v(O0 + 2 * i, 2), v(O1 + 8 + 2 * i, 2)))
    M("v_pk_add_f32 %s, %s, %s" % (v(T, 2), v(T, 2), v(T + 2, 2)), "v_pk_add_f32 %s, %s, %s" % (v(T + 4, 2), v(T + 4, 2), v(T + 6, 2)),
      "v_pk_add_f32 %s, %s, %s" % (v(T, 2), v(T, 2), v(T + 4, 2)), "v_add_f32 v%d, v%d, v%d" % (T, T, T + 1), "v_mov_b32 v42, 0x1f8", "v_cmp_class_f32 vcc, v%d, v42" % T)
    for i in range(4): cv(T + 8 + i, O0 + 2 * i); cv(T + 12 + i, O1 + 8 + 2 * i)
    A("s_and_b64 vcc, vcc, s[6:7]")
    if OPT["fb_force"]: A("s_mov_b64 vcc, 0")
    M("s_cmp_eq_u64 vcc, -1", "s_cbranch_scc0 A_fb")
    A.label("A_fin2")
    M("s_mul_i32 s3, s%d, %d" % (sBLK, 144 * 1024), "s_lshl_b32 s4, s%d, 11" % sP, "s_add_u32 s3, s3, s4", "s_add_u32 s3, s3, %d" % (112 * 1024))
    store(T + 8, 3, 0, "sto"); store(T + 12, 3, 1024, "sto")
    poll_check(vPo, sXo, "ph")
    if OPT["atouch"]:
        M("s_and_b32 s3, s%d, 3" % sC2, "s_lshl_b32 s3, s3, 10", "s_cmp_ge_u32 s%d, 4" % sC2, "s_cselect_b32 s4, s%d, s%d" % (sAd + 1, sAd),
          "s_cmp_ge_u32 s%d, 2" % sW, "s_cselect_b32 s5, s%d, s%d" % (sAd + 1, sAd), "s_xor_b32 s4, s4, s5", "s_xor_b32 s4, s4, s%d" % sAd, "s_cmp_ge_u32 s%d, 2" % sW)
        M("s_mul_i32 s4, s%d, %d" % (sR, 2 * 144 * 1024), "s_lshr_b32 s5, s%d, 2" % sC2, "s_mul_i32 s5, s5, %d" % (144 * 1024), "s_add_u32 s4, s4, s5", "s_add_u32 s4, s4, s3")
        for g in range(2, 7):
            grp_base(5, g)
            M("s_lshl_b32 s5, s5, 10", "s_add_u32 s5, s5, s4")
            vm.issue("buffer_load_dword v60, v%d, s[%d:%d], s5 offen%s" % (vL16, sWS, sWS + 3, SC), "atch")
    for ks in range(8, 13): loadA(ks)
    assert D2 >= 6
    AC2 = 128
    M("v_and_b32 v40, 31, v%d" % vLane, "v_lshrrev_b32 v41, 5, v%d" % vLane, "v_lshlrev_b32 v40, 10, v40", "v_lshl_add_u32 v%d, v41, 4, v40" % vXo,
      "s_lshr_b32 s3, s%d, 1" % sW, "s_lshl_b32 s4, s%d, 1" % sR, "s_add_u32 s3, s3, s4", "s_lshl_b32 s3, s3, 15",
      "s_and_b32 s4, s%d, 1" % sW, "s_lshl_b32 s4, s4, 6", "s_add_u32 s3, s3, s4", "s_lshl_b32 s4, s%d, 7" % sC2, "s_add_u32 s%d, s3, s4" % sCnt)
    nl = [13]
    M("s_sub_u32 s3, s%d, s%d" % (sSt, sStg), "v_add_u32 v%d, s3, v%d" % (vBA, vBA), "v_add_u32 v%d, s3, v%d" % (vBB, vBB))
    def rdO(kk):
        for cf in range(2):
            R = vBA if cf == 0 else vBB
            d = (kk % 2) * 8 + cf * 4
            lg.issue("ds_read_b64_tr_b16 %s, v%d offset:%d" % (a(d, 2), R, kk * 2048), "o%d" % kk)
            lg.issue("ds_read_b64_tr_b16 %s, v%d offset:%d" % (a(d + 2, 2), R, kk * 2048 + 1024), "o%d" % kk)
    stamp("p2go")
    KO = 28 - D2 + OPT.get("odelay", 0)
    for ks in range(36):
        if ks == OPT["pubo"]:
            vm.wait("sto")
            M("s_lshl_b32 s3, s%d, 11" % sBLK, "s_lshl_b32 s4, s%d, 7" % sP, "s_add_u32 s3, s3, s4", "s_add_u32 s3, s3, 0x%x" % FO)
            publish(3)
        if ks == KO - 4:
            A("s_add_u32 s%d, s%d, 0x%x" % (sXo, sXo, FO - FH))
            poll_issue(vPo, sXo, "po")
        if ks == KO:
            stamp("p2a")
            poll_check(vPo, sXo, "po")
            stamp("p2b")
        if ks == 24:
            vm.issue("buffer_load_dwordx4 v[48:51], v%d, s[%d:%d], s%d offen" % (vXo, sXS, sXS + 3, sCnt), "xr")
            vm.issue("buffer_load_dwordx4 v[52:55], v%d, s[%d:%d], s%d offen offset:32" % (vXo, sXS, sXS + 3, sCnt), "xr")
        vm.wait("a%d" % ks)
        if ks == 0: lg.wait("b2r13")
        if ks >= 28: lg.wait("o%d" % (ks - 28))
        lim = min(36 if ks >= KO else 28, max(ks, 8) + D2)
        m = 0
        for cf in range(2):
            for rf in range(2):
                d = v(AC2 + (rf * 2 + cf) * 16, 16)
                A("%s %s, %s, %s, %s" % (MF, d, Breg(ks, cf), AFr(ks, rf), d if ks else "0"))
                m += 1
                if m == 2 and 27 <= ks < 35: rdO(ks - 27)
                if m in (1, 3) and nl[0] < lim:
                    loadA(nl[0]); nl[0] += 1
    stamp("p2end")
    for i in range(1, 4): M("s_xor_b32 s3, s%d, %d" % (sW, i), "s_lshl_b32 s3, s3, 14", "v_add_u32 v%d, s3, v%d" % (40 + i, vL16))
    A("v_add_u32 v40, s%d, v%d" % (sSt, vL16))
    vm.wait("xr")
    for i in range(8): M("v_lshlrev_b32 v%d, 16, v%d" % (64 + 2 * i, 48 + i), "v_and_b32 v%d, s%d, v%d" % (65 + 2 * i, sMsk, 48 + i))
    for i in range(1, 4):
        for j in range(4): A("ds_write_b128 v40, %s offset:%d" % (v(AC2 + i * 16 + 4 * j, 4), (i - 1) * 4096 + j * 1024))
    M("s_waitcnt lgkmcnt(0)", "s_barrier")
    for i in range(1, 4):
        for j in range(4): lg.issue("ds_read_b128 %s, v%d offset:%d" % (v(AC2 + i * 16 + 4 * j, 4), 40 + i, (i - 1) * 4096 + j * 1024), "r%d" % i)
    M("s_cmp_lg_u32 s%d, 0" % sW, "s_cbranch_scc1 L_noep", ("s_mov_b32 s3, s%d" % (sDBG + 2)) if OPT["satom"] else ("v_readfirstlane_b32 s3, v%d" % vRet), "s_cmp_lg_u32 s3, 255", "s_cbranch_scc1 L_noep",
      "s_mov_b32 s3, 0x%x" % EOFF, "s_mov_b64 exec, 1")
    A("buffer_store_dwordx2 %s, v%d, s[%d:%d], s3 offen" % (v(vTag, 2), vL16, sWS, sWS + 3))
    A("s_mov_b64 exec, -1")
    A.label("L_noep")
    lg.wait("r1")
    for i in range(16): A("v_add_f32 v%d, v%d, v%d" % (AC2 + i, AC2 + i, AC2 + 16 + i))
    lg.wait("r3")
    for i in range(16): A("v_add_f32 v%d, v%d, v%d" % (AC2 + 32 + i, AC2 + 32 + i, AC2 + 48 + i))
    for i in range(16): A("v_add_f32 v%d, v%d, v%d" % (AC2 + i, AC2 + i, AC2 + 32 + i))
    for jj in range(2):
        for i in range(4): A("v_permlane32_swap_b32 v%d, v%d" % (AC2 + 8 * jj + i, AC2 + 8 * jj + 4 + i))
    for i in range(16): A("v_add_f32 v%d, v%d, v%d" % (64 + i, 64 + i, AC2 + i))
    for i in range(8): cv(T + i, 64 + 2 * i)
    A("buffer_store_dwordx4 %s, v%d, s[%d:%d], s%d offen" % (v(T, 4), vXo, sOUT, sOUT + 3, sCnt))
    A("buffer_store_dwordx4 %s, v%d, s[%d:%d], s%d offen offset:32" % (v(T + 4, 4), vXo, sOUT, sOUT + 3, sCnt))
    stamp_flush()
    A("s_endpgm")
    A.label("A_short")
    vm.load(sv_short)
    for i in range(16): M("v_mov_b32 v%d, 0" % (O0 + i), "v_mov_b32 v%d, 0" % (O1 + i))
    for i in range(4): A("v_mov_b32 v%d, 0" % (P + 4 + i))
    M("s_cmp_le_u32 s%d, %d" % (sI0, OPT["pubh"]), "s_cbranch_scc1 A_sh1")
    vm.wait("sth"); publish(sFl)
    A.label("A_sh1")
    if not EL: loadA(2); loadA(3)
    M("s_cmp_lg_u32 s%d, 8" % sI0, "s_cbranch_scc1 A_sh1b")
    if EL: loadA(0); loadA(1); loadA(2)
    else: loadA(4); loadA(5)
    A.label("A_sh1b")
    A("s_mov_b32 s%d, s%d" % (sCnt, sI0))
    A.label("A_sh2")
    wo2()
    M("s_sub_u32 s%d, s%d, 1" % (sCnt, sCnt), "s_cmp_lg_u32 s%d, 0" % sCnt, "s_cbranch_scc1 A_sh2")
    M("s_waitcnt lgkmcnt(0)", "s_cmp_eq_u32 s%d, 8" % sI0, "s_cbranch_scc1 A_sh3")
    A("%s %s, %s, %s, 0" % (MF, v(S0, 16), v(K0, 4), v(Q0, 4)))
    M("s_sub_u32 s%d, 7, s%d" % (sCnt, sI0), "s_nop 9", "s_cmp_eq_u32 s%d, 7" % sI0, "s_cbranch_scc1 A_b7", "s_branch A_mid")
    A.label("A_sh3")
    A("%s %s, %s, %s, %s" % (MF, v(S0, 16), v(K0, 4), v(Q0, 4), v(MD, 16)))
    M("s_nop 11", "s_branch A_b8")
    A.label("A_fb")
    for h in range(2):
        Qh, O, Vr = (Q0, O0, V0) if h == 0 else (Q1, O1, V1)
        vM = 44
        for pas in range(2):
            Lp = "A_fb%d%d" % (h, pas)
            M("v_mov_b32 v%d, v12" % vKA, "v_mov_b32 v%d, v13" % vVA, "s_mov_b32 s%d, s%d" % (sCnt, sI0))
            if pas == 0: A("v_mov_b32 v%d, 0xff800000" % vM)
            else:
                for i in range(16): A("v_mov_b32 v%d, 0" % (O + i))
            A.label(Lp)
            A("ds_read_b128 %s, v%d offset:%d" % (v(K0, 4), vKA, h * 12288))
            if pas == 1: rdV(h, 0)
            M("s_waitcnt lgkmcnt(0)", "s_cmp_eq_u32 s%d, 0" % sCnt, "s_cbranch_scc1 %s_e" % Lp, "s_cmp_eq_u32 s%d, 8" % sCnt, "s_cbranch_scc1 %s_d" % Lp)
            M("%s %s, %s, %s, 0" % (MF, v(S0, 16), v(K0, 4), v(Qh, 4)), "s_branch %s_j" % Lp)
            A.label(Lp + "_e"); M("%s %s, %s, %s, %s" % (MF, v(S0, 16), v(K0, 4), v(Qh, 4), v(ME, 16)), "s_branch %s_j" % Lp)
            A.label(Lp + "_d"); A("%s %s, %s, %s, %s" % (MF, v(S0, 16), v(K0, 4), v(Qh, 4), v(MD, 16)))
            A.label(Lp + "_j")
            A("s_nop 15")
            if pas == 0:
                for i in range(16): A("v_max_f32 v%d, v%d, v%d" % (vM, vM, S0 + i))
            else:
                for i in range(16): A("v_sub_f32 v%d, v%d, v%d" % (S0 + i, S0 + i, vM))
                for i in range(16): ex_(S0 + i)
                for i in range(8): cv(P + i, S0 + 2 * i)
                A("%s %s, %s, %s, %s" % (MF, v(O, 16), v(Vr, 4), v(P, 4), v(O, 16)))
                A("%s %s, %s, %s, %s" % (MF, v(O, 16), v(Vr + 4, 4), v(P + 4, 4), v(O, 16)))
            M("v_add_u32 v%d, 1024, v%d" % (vKA, vKA), "v_add_u32 v%d, 2048, v%d" % (vVA, vVA),
              "s_add_u32 s%d, s%d, 1" % (sCnt, sCnt), "s_cmp_le_u32 s%d, 8" % sCnt, "s_cbranch_scc1 %s" % Lp)
            if pas == 0: M("v_mov_b32 v45, v%d" % vM, "v_permlane32_swap_b32 v%d, v45" % vM, "v_max_f32 v%d, v%d, v45" % (vM, vM))
    A("s_nop 15")
    M("v_rcp_f32 v40, v%d" % (O0 + 8), "v_rcp_f32 v41, v%d" % O1)
    for i in range(8): M("v_mul_f32 v%d, v%d, v40" % (O0 + i, O0 + i), "v_mul_f32 v%d, v%d, v41" % (O1 + 8 + i, O1 + 8 + i))
    for i in range(4): cv(T + 8 + i, O0 + 2 * i); cv(T + 12 + i, O1 + 8 + 2 * i)
    M("s_nop 4", "s_branch A_fin2")
    A.label("L_end")
    A("s_endpgm")
    return A

def build():
    kn = NAME + "_kernel"
    lines = hazard.fix(gen().lines, True)
    t = "; generated by gen/v10.py\n; @launch grid=(256,1,1) block=(256,1,1) lds=163840\n"
    t += '.amdgcn_target "amdgcn-amd-amdhsa--gfx950"\n'
    t += kernel_header(kn) + "\n".join(lines) + "\n"
    t += kernel_desc(kn, 512, 102, 256)
    import subprocess, re
    open("_p1.s", "w").write(re.sub(r"OFF_L_\w+", "0x12345", t.replace("CODE_SPAN", "0x12345")))
    subprocess.run(["clang", "-x", "assembler", "-target", "amdgcn-amd-amdhsa", "-mcpu=gfx950", "-c", "_p1.s", "-o", "_p1.o"], check=True)
    h = subprocess.run(["llvm-objdump", "-h", "_p1.o"], capture_output=True, text=True).stdout
    size = int(re.search(r"\.text\s+([0-9a-f]+)", h).group(1), 16)
    syms = {}
    for ln in subprocess.run(["llvm-objdump", "-t", "_p1.o"], capture_output=True, text=True).stdout.splitlines():
        p = ln.split()
        if len(p) >= 5 and p[-1].startswith("L_"): syms[p[-1]] = int(p[0], 16)
    if "L_pc" in syms:
        for nm in set(re.findall(r"OFF_(L_\w+)", t)): t = t.replace("OFF_" + nm, "0x%x" % ((syms[nm] - syms["L_pc"]) | 0x10000000 & 0))
    print("code bytes:", size)
    t = t.replace("CODE_SPAN", "0x%x" % (size - 256))
    if OPT["stamp"]: t += "; STAMPS " + " ".join(NAMES[i] for i in sorted(NAMES)) + "\n"
    return t

if __name__ == "__main__":
    args = [x for x in sys.argv[1:] if not x.startswith("--")]
    for x in sys.argv[1:]:
        if x.startswith("--"):
            k, _, val = x[2:].partition("=")
            OPT[k] = (val if "," in val else int(val)) if val else True
    out = args[0] if args else "cdna_kernels/%s.s" % NAME
    open(out, "w").write(build())
```

```python
import sys, struct
from asmlib import *
import hazard

NAME = "parallel_sum__sliding_block__swiglu_ffn__prompt"
A2F = 0
B2T = 0xA00000
QF = 0x900000
KF = QF + 0x200000
VF = QF + 0x400000
STAMP_OFF = 0x1600000
FLG = 0xF00000
FK = FLG + 0x1000; FQ = FK + 512; FH = FLG + 0x50000; FO = FLG + 0x70000; FE = FLG + 0x90000; EOFF = FLG + 0xB0000
WS_BYTES = 0x1700000
LOG2E = 1.4426950408889634
MF = "v_mfma_f32_32x32x16_bf16"
OPT = dict(stamp=False, fine=False, pf_code=True, rot=2, d2=7, rot2=True, fb_force=False, touch=False,
           pro_first=8, budget=16, bulk=1, s0first=4, xahead=8, kvst=9, early=True, rmap=True, pubh=1, wopf=-1, bulkb=3, xpf=0, plan=0, t0=0, t1=0, lndma=1, pubo=5, elate=1, odelay=5, s0swap=1, wsoff=0, b2ord=0, atouch=0, ptouch=0, satom=0, rot5=1, qloc=1, xrearly=1)
NAMES = {}

def f32(x):
    return "0x%08x" % struct.unpack("<I", struct.pack("<f", x))[0]

class Track:
    def __init__(self, A, name, maxn):
        self.A = A; self.ops = []; self.done = -1; self.name = name; self.maxn = maxn; self.hook = None; self.pre = None
        self.alt = None
        self.base = 0
    def issue(self, text, tag):
        self.A(text); self.ops.append(tag)
    @staticmethod
    def _after(ops, idx): return sum(1 for t in ops[idx + 1:] if not t.startswith("?"))
    def _paths(self):
        ps = [(self.ops, self.done)]
        if self.alt: ps.append((self.alt[0] + self.ops[self.base:], self.alt[1]))
        return ps
    def wait(self, tag):
        need = []
        for ops, done in self._paths():
            idx = [i for i, t in enumerate(ops) if t == tag]
            if idx and idx[-1] > done: need.append((ops, idx[-1]))
        assert any(tag in ops for ops, _ in self._paths()), tag
        if not need: return
        if self.pre: self.pre()
        n = min(min(self._after(ops, idx) for ops, idx in need), self.maxn)
        nd = []
        for ops, done in self._paths():
            d = done
            for i in range(len(ops)):
                if self._after(ops, i) >= n and i > d: d = i
            nd.append(d)
        self.done = nd[0]
        if self.alt: self.alt = (self.alt[0], nd[1])
        if self.hook: self.hook("<" + tag)
        self.A("s_waitcnt %s(%d)" % (self.name, n))
        if self.hook: self.hook(tag + ">")
    def merge(self, st):
        self.alt = (list(st[0]), st[1]); self.base = len(self.ops)
    def mark_all(self):
        self.done = len(self.ops) - 1
        if self.alt: self.alt = (self.alt[0], len(self.alt[0]) + len(self.ops) - self.base - 1)
    def save(self): return (list(self.ops), self.done, self.alt, self.base)
    def load(self, st): self.ops = list(st[0]); self.done = st[1]; self.alt = st[2]; self.base = st[3]

def gen():
    A = Asm(); vm = Track(A, "vmcnt", 63); lg = Track(A, "lgkmcnt", 15)
    SC = " sc1"
    def srd(d, lo, nbytes):
        A("s_mov_b32 s%d, s%d" % (d, lo)); A("s_mov_b32 s%d, s%d" % (d + 1, lo + 1))
        A("s_mov_b32 s%d, 0x%x" % (d + 2, nbytes)); A("s_mov_b32 s%d, 0x20000" % (d + 3))
    held = []
    def flush_held():
        A.lines.extend(held); del held[:]
    vm.pre = flush_held
    def run_hold(f):
        flush_held()
        n0 = len(A.lines)
        f()
        if len(A.lines) > n0 and A.lines[-1].strip().startswith(("buffer_load", "buffer_store")) and not (len(A.lines) - n0 >= 2 and A.lines[-2].strip().startswith(("buffer_", "s_waitcnt vmcnt"))):
            held.append(A.lines.pop())
    def M(*lines):
        for l in lines: A(l)
    sXS, sWQ, sGU, sWS, sDBG, sOUT, sDN, sWO = 8, 12, 16, 20, 44, 52, 56, 80
    sW, sRB, sIQ, sP, sBLK, sTy, sROT = 24, 25, 26, 27, 28, 29, 30
    sR, sC2, sLW, sTmp, sIdx = 31, 32, 33, 34, 35
    sKVb, sQb, sGa, sGb, sG1 = 36, 37, 38, 39, 40
    sHa, sHb, sH1 = 41, 42, 43
    sMsk, sFl = 50, 51
    sSt = 60
    sKq, sKg, sK2 = 64, 68, 72
    sBd, sPk0, sBo, sStg, sPk1 = 74, 75, 99, 48, 49
    sBg = 76
    sE0, sE1 = 64, 66
    sCnt, sI0, sMask = 84, 85, 86
    sAd, sAo = 88, 90
    sXo, sSpin, sOne = 92, 93, 98
    sPtr = 64
    vLane, vL16, vL8, vTag = 1, 2, 3, 4
    vRA = [6, 7]; vRB = [9, 10]; vRP = [12, 13]; vBA, vBB = 8, 11; vL16b = 15
    vD1 = [16, 17, 18, 19]; vD2 = [20, 21, 22, 23]
    vF, vRet, vXo, vPF, vFo = 24, 26, 27, 28, 29
    vRs, vSd = 0, 61
    vC1, vS2, vQs = 28, 29, 30
    CM, DT, AI = 24, 40, 184
    T = 32
    vDB = [56, 57, 58, 59]
    vX = [56, 57, 58, 59]; vBT = 60; vXR = 44; vSt = 48
    ACA, ACB = 64, 128
    def Xr(s_): return v(192 + 4 * s_, 4) if s_ < 16 else a(192 + 4 * (s_ - 16), 4)
    def Xraw(s_): return 192 + 4 * s_ if s_ < 16 else 128 + 4 * (s_ - 16)
    nst = [0]
    def stamp(name, fine=False):
        if not OPT["stamp"] or (fine and not OPT["fine"]): return
        NAMES.setdefault(nst[0], name)
        if NAMES[nst[0]].split("|")[0] != name: NAMES[nst[0]] = NAMES[nst[0]].split("|")[0] + "|" + name
        M("s_memtime s[94:95]", "s_waitcnt lgkmcnt(0)"); lg.mark_all()
        A("v_writelane_b32 v63, s94, %d" % nst[0]); nst[0] += 1
    def stamp_flush():
        if not OPT["stamp"]: return
        A("s_waitcnt vmcnt(0)"); stamp("end")
        M("s_memrealtime s[94:95]", "s_waitcnt lgkmcnt(0)", "v_writelane_b32 v63, s94, 63", "v_writelane_b32 v63, s96, 62")
        M("s_lshl_b32 s3, s2, 2", "s_add_u32 s3, s3, s%d" % sW, "s_lshl_b32 s3, s3, 8", "s_add_u32 s3, s3, 0x%x" % STAMP_OFF)
        A("v_lshlrev_b32 v62, 2, v%d" % vLane)
        A("buffer_store_dword v63, v62, s[%d:%d], s3 offen" % (sWS, sWS + 3))
        if OPT.get("dbgout"):
            M("s_not_b32 s3, s96", "v_mov_b32 v60, s3", "v_mov_b32 v61, s94", "v_readlane_b32 s4, v63, 0", "s_nop 4", "v_subrev_u32 v63, s4, v63", "v_add_u32 v62, 8, v62", "s_mov_b64 exec, 1")
            A("buffer_atomic_umax v60, off, s[%d:%d], 0 offset:4" % (sDBG, sDBG + 3))
            A("buffer_atomic_umax v61, off, s[%d:%d], 0 offset:8" % (sDBG, sDBG + 3))
            A("s_mov_b64 exec, 0x3ffe")
            A("buffer_atomic_umax v63, v62, s[%d:%d], 0 offen" % (sDBG, sDBG + 3))

    M("s_cmp_ge_u32 s2, 256", "s_cbranch_scc1 L_end")
    M("s_load_dwordx4 s[4:7], s[0:1], 0", "s_load_dwordx2 s[48:49], s[0:1], 72", "s_load_dwordx4 s[64:67], s[0:1], 32",
      "s_load_dwordx4 s[68:71], s[0:1], 48", "s_load_dwordx2 s[72:73], s[0:1], 16", "s_load_dwordx2 s[74:75], s[0:1], 64")
    sPC = 46
    if OPT["pf_code"]:
        M("s_getpc_b64 s[100:101]")
        A.label("L_pc")
        M("v_and_b32 v%d, 63, v0" % vLane, "s_lshr_b32 s3, s2, 3", "s_lshl_b32 s3, s3, 11", "s_sub_u32 s3, s3, 6144", "v_lshlrev_b32 v6, 7, v%d" % vLane,
          "v_cmp_lt_u32 vcc, 47, v%d" % vLane, "v_mov_b32 v7, s3", "v_mov_b32 v9, s101", "v_cndmask_b32 v7, 0, v7, vcc", "v_add_u32 v6, v6, v7",
          "v_min_u32 v6, CODE_SPAN, v6", "v_add_co_u32 v8, vcc, s100, v6", "v_addc_co_u32 v9, vcc, 0, v9, vcc", "v_cmp_gt_u32 vcc, 64, v0", "s_and_saveexec_b64 s[88:89], vcc",
          "s_cbranch_execz L_pf0")
        A("global_load_dword v%d, v[8:9], off" % vXo)
        A.label("L_pf0")
        A("s_mov_b64 exec, -1")
        vm.ops.append("?pfc")
    if OPT["stamp"]:
        M("s_memrealtime s[96:97]", "v_mov_b32 v63, 0"); stamp("t0")
    M("v_lshrrev_b32 v3, 6, v0", "v_and_b32 v%d, 63, v0" % vLane, "v_readfirstlane_b32 s%d, v3" % sW)
    if OPT.get("badmap"): M("s_lshr_b32 s3, s2, 5", "s_and_b32 s%d, s2, 31" % sIdx)
    else: M("s_and_b32 s3, s2, 7", "s_lshr_b32 s%d, s2, 3" % sIdx)
    M("s_and_b32 s%d, s3, 1" % sRB, "s_lshl_b32 s%d, s%d, 3" % (sRB, sRB), "s_and_b32 s%d, s%d, 7" % (sTmp, sIdx), "s_add_u32 s%d, s%d, s%d" % (sRB, sRB, sTmp))
    A("s_lshr_b32 s%d, s%d, 3" % (sTy, sIdx))
    if OPT["rot"] == 2: M("s_add_u32 s%d, s%d, s%d" % (sROT, sRB, sTy), "s_and_b32 s%d, s%d, 3" % (sROT, sROT))
    elif OPT["rot"]: A("s_and_b32 s%d, s%d, 3" % (sROT, sRB))
    else: A("s_mov_b32 s%d, 0" % sROT)
    M("s_lshl_b32 s%d, s%d, 2" % (sBLK, sRB), "s_add_u32 s%d, s%d, s%d" % (sBLK, sBLK, sW))
    M("v_lshrrev_b32 v6, 3, v%d" % vLane, "v_and_b32 v7, 7, v%d" % vLane, "v_lshrrev_b32 v8, 4, v%d" % vLane,
      "v_xor_b32 v7, v7, v8", "v_lshlrev_b32 v7, 4, v7", "v_lshl_add_u32 v%d, v6, 10, v7" % vX[0],
      "v_xor_b32 v%d, 64, v%d" % (vX[1], vX[0]), "v_add_u32 v%d, 7168, v%d" % (vX[1], vX[1]),
      "v_add_u32 v%d, 14336, v%d" % (vX[2], vX[0]), "v_add_u32 v%d, 14336, v%d" % (vX[3], vX[1]))
    sXrow, sXlds, sXrot = 76, 77, 78
    M("s_lshl_b32 s%d, s%d, 15" % (sXrow, sBLK), "s_lshl_b32 s%d, s%d, 15" % (sXlds, sW), "s_add_u32 s%d, s%d, 32768" % (sXlds, sXlds),
      "s_lshl_b32 s%d, s%d, 8" % (sXrot, sROT), "s_waitcnt lgkmcnt(0)")
    srd(sXS, 4, 2048 * 1024)
    xl = []
    for c in range(8):
        for rq in range(4):
            def f(c=c, rq=rq):
                if rq == 0:
                    M("s_add_u32 m0, s%d, %d" % (sXlds, c * 4096), "s_add_u32 s79, s%d, %d" % (sXrot, c * 128), "s_and_b32 s79, s79, 1023", "s_add_u32 s79, s79, s%d" % sXrow)
                vm.issue("buffer_load_dwordx4 v%d, s[%d:%d], s79 offen offset:%d lds" % (vX[rq], sXS, sXS + 3, rq * 1024), "x%d" % c)
            xl.append(f)
    if OPT.get("xst"): stamp("pre")
    for _ in range(OPT["pro_first"]): xl.pop(0)()
    if OPT["ptouch"]:
        for i in range(8):
            M("s_mov_b32 s86, 0x%x" % (i * 0x200000 + (0x100000 if i == 7 else 0)), "s_load_dword s87, s[48:49], s86")
        M("s_load_dword s87, s[70:71], 0", "s_mov_b32 s86, 0x1ffffc", "s_load_dword s87, s[70:71], s86", "s_load_dword s87, s[68:69], 0", "s_load_dword s87, s[72:73], 0",
          "s_load_dword s87, s[74:75], 0", "s_load_dword s87, s[6:7], 0", "s_load_dword s87, s[64:65], 0", "s_load_dword s87, s[66:67], 0")
    for e in range(OPT["xpf"]):
        M("s_lshl_b32 s79, s%d, 7" % sTy, "s_add_u32 s79, s79, s%d" % sXrot, "s_add_u32 s79, s79, %d" % ((OPT["pro_first"] // 4 + 4 * e) * 128), "s_and_b32 s79, s79, 1023", "s_add_u32 s79, s79, s%d" % sXrow)
        for rq in range(4): vm.issue("buffer_load_dword v60, v%d, s[%d:%d], s79 offen offset:%d" % (vX[rq], sXS, sXS + 3, rq * 1024), "xpf")
    if OPT.get("xst"): stamp("iss")

    SB = []
    def blk(f): SB.append(f); return f
    @blk
    def _():
        if OPT["wsoff"]: M("s_add_u32 s48, s48, 0x%x" % (OPT["wsoff"] << 20), "s_addc_u32 s49, s49, 0")
        srd(sWQ, 6, 512 * 3072); srd(sWS, 48, WS_BYTES)
        M("s_lshr_b32 s%d, s3, 1" % sP, "s_lshl_b32 s%d, s%d, 1" % (sIQ, sP), "s_lshl_b32 s%d, s%d, 2" % (sP, sP), "s_add_u32 s%d, s%d, s%d" % (sP, sP, sTy),
          "s_and_b32 s4, s%d, 1" % sTy, "s_add_u32 s%d, s%d, s4" % (sIQ, sIQ), "s_lshr_b32 s%d, s%d, 1" % (sTy, sTy),
          *(("s_lshl_b32 s%d, s%d, 1" % (sP, sIQ), "s_add_u32 s%d, s%d, s%d" % (sP, sP, sTy)) if OPT["qloc"] else ()),
          "s_and_b32 s4, s3, 1", "s_lshl_b32 s4, s4, 4", "s_lshr_b32 s%d, s3, 1" % sR, "s_lshl_b32 s%d, s%d, 2" % (sR, sR), "s_add_u32 s%d, s%d, s4" % (sR, sR),
          "s_and_b32 s4, s%d, 3" % sIdx, "s_add_u32 s%d, s%d, s4" % (sR, sR), "s_lshr_b32 s%d, s%d, 2" % (sC2, sIdx))
    @blk
    def _():
        M("s_cmp_ge_u32 s%d, 2" % sW, "s_cselect_b32 s%d, s66, s64" % sGU, "s_cselect_b32 s%d, s67, s65" % (sGU + 1),
          "s_mov_b32 s%d, %d" % (sGU + 2, 512 * 3584), "s_mov_b32 s%d, 0x20000" % (sGU + 3))
        srd(sDN, 68, 1792 * 1024); srd(sWO, 72, 512 * 1024)
        srd(sOUT, 70, 2048 * 1024); srd(sDBG, 74, 256)
    @blk
    def _():
        M("s_and_b32 s5, s%d, 1" % sW, "s_lshr_b32 s6, s%d, 1" % sW, "s_lshl_b32 s7, s%d, 7" % sIQ)
        M("s_mul_i32 s3, s%d, 320" % sIQ, "s_add_u32 s3, s3, 1024", "s_and_b32 s4, s%d, 1" % sIQ, "s_lshl_b32 s4, s4, 6", "s_add_u32 s%d, s3, s4" % sHa,
          "s_add_u32 s%d, s%d, 128" % (sHb, sHa), "s_lshl_b32 s4, s4, 2", "s_sub_u32 s4, 256, s4", "s_add_u32 s%d, s3, s4" % sH1,
          "s_cmp_eq_u32 s%d, 0" % sTy, "s_cselect_b32 s%d, s7, s%d" % (sHa, sHa))
        for t in range(4):
            M("s_add_u32 s4, s%d, %d" % (sROT, t), "s_and_b32 s4, s4, 3", "s_mul_i32 s%d, s4, %d" % (sKq + t, 128 * 3072), "s_mul_i32 s%d, s4, %d" % (sKg + t, 128 * 3584))
    @blk
    def _():
        M("s_mul_i32 s%d, s5, %d" % (sQb, 64 * 3072), "s_add_u32 s%d, s%d, s7" % (sQb, sQb),
          "s_lshl_b32 s3, s6, 10", "s_add_u32 s%d, s%d, s3" % (sKVb, sQb), "s_add_u32 s%d, s%d, 1024" % (sKVb, sKVb),
          "s_mul_i32 s3, s5, %d" % (64 * 3584), "s_add_u32 s%d, s3, s%d" % (sGa, sHa), "s_add_u32 s%d, s3, s%d" % (sGb, sHb), "s_mov_b32 s%d, s%d" % (sG1, sH1))
    @blk
    def _():
        A("s_mov_b32 s4, 0x%x" % EOFF)
        vm.issue("buffer_load_dwordx2 %s, off, s[%d:%d], s4 sc1" % (v(vTag, 2), sWS, sWS + 3), "ep")
    @blk
    def _():
        M("v_and_b32 v40, 31, v%d" % vLane, "v_lshrrev_b32 v41, 5, v%d" % vLane, "v_bfe_u32 v42, v40, 1, 3", "v_xor_b32 v42, v42, v41",
          "v_lshlrev_b32 v42, 4, v42", "v_lshl_add_u32 v42, v40, 7, v42", "v_add_u32 v%d, s%d, v42" % (vXR, sXlds))
        for b in range(1, 4): A("v_xor_b32 v%d, %d, v%d" % (vXR + b, b << 5, vXR))
    @blk
    def _():
        for i in range(8): A("v_mov_b32 v%d, 0" % (vSt + i))
        M("s_mov_b32 s%d, 0x3f803f80" % sOne, "s_mov_b32 s%d, 0xffff0000" % sMsk, "s_lshl_b32 s%d, s%d, 13" % (sLW, sW))
    @blk
    def _():
        M("v_lshrrev_b32 v40, 3, v%d" % vLane, "v_and_b32 v41, 7, v%d" % vLane, "v_bfe_u32 v42, v%d, 4, 1" % vLane, "v_lshlrev_b32 v42, 2, v42",
          "v_xor_b32 v41, v41, v42", "v_lshlrev_b32 v41, 4, v41", "v_mul_u32_u24 v42, 3584, v40", "v_add_u32 v%d, v42, v41" % vD2[0],
          "v_mul_u32_u24 v42, 3072, v40", "v_add_u32 v43, v42, v41", "v_lshl_add_u32 v61, v40, 10, v41")
    @blk
    def _():
        M("v_lshrrev_b32 v40, 2, v%d" % vLane, "v_and_b32 v41, 3, v%d" % vLane, "v_lshlrev_b32 v41, 4, v41", "v_mul_u32_u24 v42, 3584, v40", "v_add_u32 v42, v42, v41",
          "s_cmp_eq_u32 s%d, 0" % sTy, "s_cselect_b64 vcc, -1, 0", "s_mov_b32 s4, %d" % (8 * 3072 - 1024), "s_cselect_b32 s4, s4, %d" % (16 * 3584 - 1024),
          "v_cndmask_b32 v%d, v42, v43, vcc" % vD1[0])
        for j in range(1, 4):
            M("v_add_u32 v%d, s4, v%d" % (vD1[j], vD1[j - 1]), "v_add_u32 v%d, %d, v%d" % (vD2[j], j * (8 * 3584 - 1024), vD2[0]))
    NCRIT = len(SB)
    @blk
    def _():
        M("v_lshlrev_b32 v%d, 4, v%d" % (vL16, vLane), "v_lshlrev_b32 v%d, 3, v%d" % (vL8, vLane), "s_nop 0")
        M("s_cmp_eq_u32 s%d, 0" % sTy, "s_cselect_b32 s3, s6, s5", "s_mov_b32 s7, %d" % (128 * 3072), "s_cselect_b32 s7, s7, %d" % (128 * 3584), "s_add_u32 s3, s3, s%d" % sROT)
        for t in range(2): M("s_add_u32 s4, s3, %d" % (2 * t), "s_and_b32 s4, s4, 3", "s_mul_i32 s%d, s4, s7" % (sK2 + t))
    @blk
    def _():
        M("v_lshrrev_b32 v40, 5, v%d" % vLane, "v_bfe_u32 v41, v%d, 2, 2" % vLane, "v_lshl_add_u32 v42, v40, 3, v41", "v_lshl_add_u32 v39, v40, 2, v41",
          "v_bfe_u32 v43, v%d, 4, 1" % vLane, "v_lshlrev_b32 v43, 5, v43", "v_and_b32 v38, 3, v%d" % vLane, "v_lshl_add_u32 v43, v38, 3, v43",
          "v_lshl_add_u32 v%d, v39, 6, v43" % vRP[0])
    @blk
    def _():
        M("v_bfe_u32 v38, v41, 1, 1", "v_lshl_add_u32 v43, v38, 6, v43", "v_lshl_add_u32 v%d, v39, 7, v43" % vRA[0], "v_xor_b32 v%d, 64, v%d" % (vRB[0], vRA[0]))
        for R in (vRA, vRB, vRP): A("v_add_u32 v%d, 0x10000, v%d" % (R[1], R[0]))
        M("s_add_u32 s%d, s%d, 131072" % (sStg, sLW), "v_lshl_add_u32 v%d, v39, 7, v43" % vBA, "v_add_u32 v%d, s%d, v%d" % (vBA, sStg, vBA), "v_xor_b32 v%d, 64, v%d" % (vBB, vBA))
    @blk
    def _():
        A("s_mul_i32 s3, s%d, %d" % (sBLK, 144 * 1024))
        for sr in (sHa, sHb, sH1): M("s_lshl_b32 s%d, s%d, 5" % (sr, sr), "s_add_u32 s%d, s%d, s3" % (sr, sr))
        M("s_lshl_b32 s%d, s%d, 7" % (sBd, sC2), "s_lshl_b32 s%d, s%d, 17" % (sBo, sW), "s_add_u32 s%d, s%d, s%d" % (sBo, sBo, sBd))
    @blk
    def _():
        if not OPT["rot5"]:
            M("s_add_u32 s3, s%d, s%d" % (sC2, sR), "s_and_b32 s4, s3, 1", "s_mul_i32 s4, s4, 12", "s_mul_i32 s7, s%d, 20" % sW, "s_add_u32 s7, s7, 32",
              "s_add_u32 s%d, s7, s4" % sPk0, "s_sub_u32 s4, 12, s4", "s_add_u32 s4, s4, s7", "s_lshl_b32 s4, s4, 8", "s_or_b32 s%d, s%d, s4" % (sPk0, sPk0),
              "s_mul_i32 s%d, s%d, 0x10001" % (sPk0, sPk0), "s_add_u32 s%d, s%d, 0x04040000" % (sPk0, sPk0))
            M("s_mul_i32 s4, s3, 171", "s_lshr_b32 s4, s4, 9", "s_mul_i32 s4, s4, 3", "s_sub_u32 s3, s3, s4", "s_lshl_b32 s3, s3, 3",
              "s_add_u32 s7, s7, 8", "s_lshl_b32 s7, s7, 16", "s_mul_i32 s4, s%d, 0x808" % sW, "s_add_u32 s4, s4, 0x400", "s_or_b32 s7, s7, s4",
              "s_lshr_b32 s4, s7, s3", "s_sub_u32 s3, 24, s3", "s_lshl_b32 s7, s7, s3", "s_or_b32 s%d, s4, s7" % sPk1)
        else:
            M("s_add_u32 s3, s%d, s%d" % (sC2, sR), "s_and_b32 s4, s3, 1", "s_mul_i32 s4, s4, 12", "s_mul_i32 s7, s%d, 20" % sW, "s_add_u32 s7, s7, 32",
              "s_add_u32 s%d, s7, s4" % sPk0, "s_sub_u32 s4, 12, s4", "s_add_u32 s4, s4, s7", "s_lshl_b32 s4, s4, 8", "s_or_b32 s%d, s%d, s4" % (sPk0, sPk0),
              "s_mul_i32 s88, s7, 0x101", "s_add_u32 s88, s88, 0x1004", "s_mul_i32 s4, s%d, 0x808" % sW, "s_add_u32 s4, s4, 0x400", "s_lshl_b32 s4, s4, 16", "s_or_b32 s88, s88, s4",
              "s_add_u32 s89, s7, 8",
              "s_mul_i32 s4, s3, 205", "s_lshr_b32 s4, s4, 10", "s_mul_i32 s4, s4, 5", "s_sub_u32 s3, s3, s4", "s_lshl_b32 s3, s3, 3",
              "s_lshr_b64 s[90:91], s[88:89], s3", "s_sub_u32 s3, 40, s3", "s_lshl_b64 s[88:89], s[88:89], s3", "s_or_b64 s[88:89], s[88:89], s[90:91]",
              "s_lshl_b32 s4, s88, 16", "s_or_b32 s%d, s%d, s4" % (sPk0, sPk0), "s_lshr_b64 s[88:89], s[88:89], 16", "s_mov_b32 s%d, s88" % sPk1)
    @blk
    def _():
        M("v_and_b32 v32, 31, v%d" % vLane, "v_lshrrev_b32 v33, 5, v%d" % vLane, "v_lshlrev_b32 v33, 3, v33", "v_sub_u32 v32, v32, v33",
          "v_and_b32 v33, 1, v32", "v_lshlrev_b32 v33, 4, v33", "v_mov_b32 v34, 0x3f80", "v_lshlrev_b32 v33, v33, v34", "v_ashrrev_i32 v32, 1, v32")
        for j in range(8):
            jj = j if j < 4 else j + 4
            M("v_cmp_eq_u32 s[%d:%d], %d, v32" % (88 + 2 * (j % 2), 89 + 2 * (j % 2), jj))
            if j: M("v_cndmask_b32 v34, 0, v33, s[%d:%d]" % (88 + 2 * ((j - 1) % 2), 89 + 2 * ((j - 1) % 2)), "v_accvgpr_write_b32 a%d, v34" % (AI + j - 1))
        M("s_nop 0", "v_cndmask_b32 v34, 0, v33, s[90:91]", "v_accvgpr_write_b32 a%d, v34" % (AI + 7))
    def grp_base(dst, g):
        A("s_bfe_u32 s%d, s%d, 0x%x" % (dst, sPk0 if g < 4 else sPk1, (8 << 16) | (8 * (g % 4))))
    order = [0, 1, 2, 3, 6, 7, 8]
    for i in order: SB[i]()
    late = [f for i, f in enumerate(SB) if i not in order]

    def dma_stage(kind, t, slot, tag, mixed=False):
        res = []
        for i in range(8):
            grp, j = i // 4, i % 4
            def f(grp=grp, j=j):
                if kind == "KV": base, sk, add, srd_, vd = sKVb, sKq + t, 32 * 3072, sWQ, vD1
                elif kind == "Q": base, sk, add, srd_, vd = sQb, sK2 + t, 32 * 3072, sWQ, vD1
                elif kind == "Pa": base, sk, add, srd_, vd = sGa, sKg + t, 32 * 3584, sGU, vD2
                elif kind == "Pb": base, sk, add, srd_, vd = sGb, sKg + t, 32 * 3584, sGU, vD2
                elif kind == "P1": base, sk, add, srd_, vd = sG1, sK2 + t, 64 * 3584, sGU, vD1
                if tag == "s0" and OPT["s0swap"]:
                    if j == 0:
                        M("s_lshr_b32 s90, s%d, 2" % sRB, "s_and_b32 s90, s90, 1", "s_xor_b32 s90, s90, %d" % grp, "s_lshl_b32 s91, s90, 12", "s_add_u32 m0, s%d, s91" % sLW,
                          "s_mul_i32 s90, s90, %d" % add, "s_add_u32 s%d, s%d, s%d" % (sTmp, base, sk), "s_add_u32 s%d, s%d, s90" % (sTmp, sTmp))
                elif j == 0 or mixed:
                    A("s_add_u32 m0, s%d, %d" % (sLW, slot * 32768 + grp * 4096))
                if j == 0 and not (tag == "s0" and OPT["s0swap"]):
                    if grp == 0: A("s_add_u32 s%d, s%d, s%d" % (sTmp, base, sk))
                    else: A("s_add_u32 s%d, s%d, %d" % (sTmp, sTmp, add))
                vm.issue("buffer_load_dwordx4 v%d, s[%d:%d], s%d offen offset:%d lds" % (vd[j], srd_, srd_ + 3, sTmp, j * 1024), tag)
            res.append(f)
        return res

    def touch(kind, t):
        base, sk, srd_, st = {"KV": (sKVb, sKq + t, sWQ, 3072), "Q": (sQb, sK2 + t, sWQ, 3072), "Pa": (sGa, sKg + t, sGU, 3584),
                              "Pb": (sGb, sKg + t, sGU, 3584), "P1": (sG1, sK2 + t, sGU, 3584)}[kind]
        def f():
            M("v_mul_u32_u24 v57, %d, v%d" % (st, vLane), "s_add_u32 s4, s%d, s%d" % (base, sk))
            vm.issue("buffer_load_dword v60, v57, s[%d:%d], s4 offen" % (srd_, srd_ + 3), "tch")
            if kind == "P1":
                A("s_add_u32 s4, s4, %d" % (64 * 3584))
                vm.issue("buffer_load_dword v60, v57, s[%d:%d], s4 offen" % (srd_, srd_ + 3), "tch")
        return f
    def quad(kind, t, slot, q):
        res = []
        sb = slot * 32768; bi = sb // 65536; so = sb % 65536
        for j in range(4):
            if kind in ("KV", "Pa", "Pb"):
                res.append((j, 8 * t + q, (vRA if j % 2 == 0 else vRB)[bi], so + (j >> 1) * 16384 + q * 2048, 1024))
            elif kind == "Q":
                kk = 2 * q + (j >> 1)
                res.append((j & 1, 16 * t + kk, (vRA if j % 2 == 0 else vRB)[bi], so + kk * 2048, 1024))
            else:
                kk = 2 * q + (j >> 1)
                res.append((j & 1, 16 * t + kk, vRP[bi], so + (j & 1) * 16384 + kk * 1024, 512))
        return res

    def rd(q4, j, buf, tag):
        _, _, ar, off, d2 = q4[j]
        lg.issue("ds_read_b64_tr_b16 %s, v%d offset:%d" % (a(buf * 16 + j * 4, 2), ar, off), tag)
        lg.issue("ds_read_b64_tr_b16 %s, v%d offset:%d" % (a(buf * 16 + j * 4 + 2, 2), ar, off + d2), tag)

    def store(P, soff, off, tag):
        if OPT.get("nostore") and tag != "sto":
            vm.ops.append("?" + tag); vm.ops.append(tag); vm.ops.pop(); vm.ops[-1] = tag if False else vm.ops[-1]
            A("s_nop 0"); vm.ops[-1] = tag; A("buffer_load_dword v28, off, s[%d:%d], 0" % (sWS, sWS + 3)); return
        vm.issue("buffer_store_dwordx4 %s, v%d, s[%d:%d], s%d offen offset:%d%s" % (v(P, 4), vL16, sWS, sWS + 3, soff, off, SC), tag)

    def I(text, cost=4): return (cost, (lambda t=text: A(t)))
    PK = [T + 8, T + 12]
    def st_swiglu(acc, ncf, uoff, sH, tag):
        els = []
        for cf in range(ncf):
            for i in range(16): els.append((acc + cf * 16 + i, acc + uoff + cf * 16 + i))
        N = len(els); out = []
        ta = lambda e: T + (e % 6)
        for e in range(N + 6):
            if 0 <= e - 1 < N: out.append(I("v_exp_f32 v%d, v%d" % (ta(e - 1), ta(e - 1)), 8))
            if e < N: out.append(I("v_mul_f32 v%d, v%d, v%d" % (ta(e), vC1, els[e][0])))
            if 0 <= e - 2 < N: out.append(I("v_fma_f32 v%d, v%d, v%d, v%d" % (ta(e - 2), ta(e - 2), vS2, vS2)))
            if 0 <= e - 3 < N: out.append(I("v_rcp_f32 v%d, v%d" % (ta(e - 3), ta(e - 3)), 8))
            if 0 <= e - 1 < N: out.append(I("v_mul_f32 v%d, v%d, v%d" % (els[e - 1][1], els[e - 1][0], els[e - 1][1])))
            if 0 <= e - 4 < N: out.append(I("v_mul_f32 v%d, v%d, v%d" % (els[e - 4][1], ta(e - 4), els[e - 4][1])))
            k = e - 5
            if 0 <= k < N and k % 2 == 1:
                fr = k // 8
                out.append(I("v_cvt_pk_bf16_f32 v%d, v%d, v%d" % (PK[fr % 2] + (k % 8) // 2, els[k - 1][1], els[k][1])))
                if k % 8 == 7: out.append((-8, (lambda fr=fr: store(PK[fr % 2], sH, fr * 1024, tag))))
        return out
    def st_kv(acc):
        out = [(2, lambda: M("s_lshl_b32 s%d, s%d, 18" % (sSt, sIQ), "s_lshl_b32 s%d, s%d, 10" % (sSt + 1, sBLK),
                             "s_add_u32 s%d, s%d, s%d" % (sSt + 2, sSt, sSt + 1), "s_add_u32 s%d, s%d, s%d" % (sSt, sSt + 2, sSt + 1)))]
        RT = lambda i: (32 + i) if i < 8 else (40 + i)
        out.append(I("v_lshrrev_b32 v27, 5, v%d" % vLane)); out.append(I("v_lshlrev_b32 v27, 4, v27"))
        bps = [(-4, (lambda k=k: lg.issue("ds_bpermute_b32 v%d, v27, v%d offset:%d" % (RT(k), vRs, ((k // 4) * 8 + k % 4) * 4), "rt"))) for k in range(16)]
        n = 0
        for f in (0, 1, 2, 3):
            for hf in range(2):
                r0 = acc + f * 16 + hf * 8; P = PK[n % 2]; n += 1
                if f == 2 and hf == 0: out.append((2, lambda: lg.wait("rt")))
                for i in range(8):
                    out.append(I("v_mul_f32 v%d, v%d, v%d" % (r0 + i, vRs if f < 2 else RT(hf * 8 + i), r0 + i)))
                    if i % 2 == 1 and bps: out.append(bps.pop(0))
                for i in range(4): out.append(I("v_cvt_pk_bf16_f32 v%d, v%d, v%d" % (P + i, r0 + 2 * i, r0 + 2 * i + 1)))
                def g(P=P, f=f, hf=hf):
                    if f < 2:
                        A("s_add_u32 s%d, s%d, 0x%x" % (sSt + 3, sSt + 2, KF + (2 * f + hf) * 65536)); store(P, sSt + 3, 0, "stkv")
                    else:
                        if hf == 0: A("s_add_u32 s%d, s%d, 0x%x" % (sSt + 3, sSt, VF + (f - 2) * 131072))
                        store(P, sSt + 3, hf * 1024, "stkv")
                out.append((-8, g))
        return out
    def st_q(acc):
        out = []; n = 0
        for f in ((1, 0) if OPT["qloc"] else (0, 1)):
            for hf in range(2):
                r0 = acc + f * 16 + hf * 8; P = PK[n % 2]; n += 1
                if OPT["qloc"] and f == 0: P = acc + 16 + 4 * hf
                for i in range(8): out.append(I("v_mul_f32 v%d, v%d, v%d" % (r0 + i, vQs, r0 + i)))
                for i in range(4): out.append(I("v_cvt_pk_bf16_f32 v%d, v%d, v%d" % (P + i, r0 + 2 * i, r0 + 2 * i + 1)))
                def g(P=P, f=f, hf=hf):
                    A("s_add_u32 s%d, s%d, 0x%x" % (sSt + 3, sSt + 2, QF + (2 * f + hf) * 65536)); store(P, sSt + 3, 0, "stq")
                if not (OPT["qloc"] and f == 0): out.append((-8, g))
        return out
    def st_mask():
        out = [I(x) for x in ("v_and_b32 v48, 31, v%d" % vLane, "v_lshrrev_b32 v49, 5, v%d" % vLane, "v_lshlrev_b32 v49, 2, v49", "v_sub_u32 v48, v48, v49", "v_mov_b32 v49, 0xff800000")]
        for rg in range(17):
            if rg < 16: out.append(I("v_cmp_le_i32 s[%d:%d], %d, v48" % (88 + 2 * (rg % 2), 89 + 2 * (rg % 2), (rg // 4) * 8 + rg % 4)))
            else: out.append(I("s_nop 0", 2))
            if rg > 1: out.append(I("v_xor_b32 v%d, v49, v%d" % (160 + rg - 2, 176 + rg - 2)))
            if rg > 0: out.append(I("v_cndmask_b32 v%d, 0, v49, s[%d:%d]" % (176 + rg - 1, 88 + 2 * ((rg - 1) % 2), 89 + 2 * ((rg - 1) % 2))))
        out.append(I("v_xor_b32 v%d, v49, v%d" % (160 + 15, 176 + 15)))
        return out
    def tail_swiglu(acc, ncf, uoff, sH, tag):
        out = []
        bc = " op_sel_hi:[0,1]"
        for fr in range(2 * ncf):
            g0 = acc + fr * 8; u0 = acc + uoff + fr * 8; t0 = 48 if fr % 2 else 32
            for i in range(0, 8, 2): out.append(I("v_pk_mul_f32 %s, %s, %s%s" % (v(t0 + i, 2), v(vC1, 2), v(g0 + i, 2), bc)))
            for i in range(8):
                out.append(I("v_exp_f32 v%d, v%d" % (t0 + i, t0 + i)))
                if i % 2 == 1: out.append(I("v_pk_mul_f32 %s, %s, %s" % (v(u0 + i - 1, 2), v(g0 + i - 1, 2), v(u0 + i - 1, 2))))
            for i in range(0, 8, 2): out.append(I("v_pk_fma_f32 %s, %s, %s, %s op_sel:[0,1,1] op_sel_hi:[1,1,1]" % (v(t0 + i, 2), v(t0 + i, 2), v(vC1, 2), v(vC1, 2))))
            for i in range(8): out.append(I("v_rcp_f32 v%d, v%d" % (t0 + i, t0 + i)))
            for i in range(0, 8, 2): out.append(I("v_pk_mul_f32 %s, %s, %s" % (v(u0 + i, 2), v(t0 + i, 2), v(u0 + i, 2))))
            for i in range(4): out.append(I("v_cvt_pk_bf16_f32 v%d, v%d, v%d" % (PK[fr % 2] + i, u0 + 2 * i, u0 + 2 * i + 1)))
            out.append((-8, (lambda fr=fr: store(PK[fr % 2], sH, fr * 1024, tag))))
        return out
    def ctr_mfma(p, k):
        A("%s %s, %s, %s, %s" % (MF, v(DT, 16), a(AI + 4 * k, 4), v(Xraw(2 * p + k), 4), v(CM, 16) if k == 0 else v(DT, 16)))
    def ctr_cvt(p):
        out = []
        x = Xraw(2 * p)
        for i in range(8): out.append(I("v_cvt_pk_bf16_f32 v%d, v%d, v%d" % (x + i, DT + 2 * i, DT + 2 * i + 1)))
        if p >= 8:
            acc = [I("v_accvgpr_write_b32 a%d, v%d" % (192 + 8 * (p - 8) + i, x + i)) for i in range(8)]
            out = out[:4] + [acc[0], out[4], acc[1], out[5], acc[2], out[6], acc[3], out[7]]
            lagq.extend(acc[4:])
        return out
    lagq = []

    def code_touch(sym, nl):
        def f():
            if not OPT["pf_code"]: return
            L = A.newlabel("L_ct")
            M("s_cmp_lg_u32 s%d, 0" % sW, "s_cbranch_scc1 %s" % L,
              "s_and_b32 s3, s%d, 15" % sIdx, "s_mul_i32 s3, s3, %d" % (nl * 128), "s_add_u32 s3, s3, OFF_%s" % sym,
              "v_lshlrev_b32 v14, 7, v%d" % vLane, "v_add_u32 v14, s3, v14", "v_min_u32 v14, CODE_SPAN, v14", "v_mov_b32 v15, s101",
              "v_add_co_u32 v14, vcc, s100, v14", "v_addc_co_u32 v15, vcc, 0, v15, vcc", "s_mov_b64 exec, %d" % ((1 << nl) - 1))
            A("global_load_dword v60, v[14:15], off")
            A("s_mov_b64 exec, -1")
            A.label(L)
            vm.ops.append("?ct")
        return f
    LANES = {"pk": 0xfff, "pq": 1, "pe": 0xff, "ph": 0xff, "po": 0xff}
    vPo = 31
    def publish(soff):
        A("s_mov_b64 exec, 0xffff")
        vm.issue("buffer_store_dwordx2 %s, v%d, s[%d:%d], s%d offen%s" % (v(vTag, 2), vL8, sWS, sWS + 3, soff, SC), "?flag")
        A("s_mov_b64 exec, -1")
    def poll_issue(voff, soff, tag, vF=vF):
        A("s_mov_b64 exec, 0x%x" % LANES[tag])
        vm.issue("buffer_load_dwordx2 %s, v%d, s[%d:%d], s%d offen sc1" % (v(vF, 2), voff, sWS, sWS + 3, soff), tag)
        A("s_mov_b64 exec, -1")
    def poll_check(voff, soff, tag, vF=vF):
        L = A.newlabel("L_poll"); D = A.newlabel("L_polld")
        chk = ["v_cmp_eq_u64 vcc, %s, %s" % (v(vF, 2), v(vTag, 2)), "s_and_b64 vcc, vcc, s[%d:%d]" % (sMask, sMask + 1),
               "s_cmp_eq_u64 vcc, s[%d:%d]" % (sMask, sMask + 1), "s_cbranch_scc1 %s" % D]
        stamp("pre_" + tag, True)
        vm.wait(tag)
        stamp("vm_" + tag, True)
        M(*chk)
        A("s_mov_b32 s%d, 0x20000" % sSpin)
        A.label(L)
        A("s_mov_b64 exec, 0x%x" % LANES[tag])
        A("buffer_load_dwordx2 %s, v%d, s[%d:%d], s%d offen sc1" % (v(vF, 2), voff, sWS, sWS + 3, soff))
        M("s_mov_b64 exec, -1", "s_waitcnt vmcnt(0)")
        M(*chk)
        M("s_sub_u32 s%d, s%d, 1" % (sSpin, sSpin), "s_cmp_lg_u32 s%d, 0" % sSpin, "s_cbranch_scc1 %s" % L)
        A.label(D)
        stamp("ok_" + tag, True)

    def Breg(p, cf):
        if p < 28: return a(32 + p * 8 + cf * 4, 4)
        return a(((p - 28) % 2) * 8 + cf * 4, 4)
    ORD = [[0, 1, 2, 3, 4, 5, 6, 7, 8, 9, 10, 11, 12, 13], [0, 1, 4, 5, 8, 9, 2, 3, 6, 7, 10, 11, 12, 13]][OPT["b2ord"]]
    def b2_dma(i):
        n = ORD[i]
        res = []
        for j in range(4):
            def f(j=j):
                if j == 0:
                    if i >= 2: lg.wait("b2r%d" % (i - 2))
                    A("s_add_u32 m0, s%d, %d" % (sStg, (i % 2) * 4096))
                    if n % 2 == 0:
                        grp_base(sBg, n // 2)
                        M("s_lshl_b32 s%d, s%d, 14" % (sBg, sBg), "s_add_u32 s%d, s%d, s%d" % (sBg, sBg, sBd))
                    else: A("s_add_u32 s%d, s%d, 32768" % (sBg, sBg))
                vm.issue("buffer_load_dwordx4 v%d, s[%d:%d], s%d offen offset:%d lds" % (vDB[j], sDN, sDN + 3, sBg, j * 1024), "b2d%d" % i)
            res.append(f)
        return res
    def b2_read(i):
        n = ORD[i]
        res = []
        for kk in range(2):
            for cf in range(2):
                for hh in range(2):
                    def f(kk=kk, cf=cf, hh=hh):
                        if kk == 0 and cf == 0 and hh == 0: vm.wait("b2d%d" % i)
                        R = vBA if cf == 0 else vBB
                        d = 32 + (2 * n + kk) * 8 + cf * 4 + 2 * hh
                        lg.issue("ds_read_b64_tr_b16 %s, v%d offset:%d" % (a(d, 2), R, (i % 2) * 4096 + kk * 2048 + hh * 1024), "b2r%d" % i)
                    f.is_ds = True
                    res.append(f)
        return res
    sWl = 73
    def wo2():
        vm.issue("buffer_load_dwordx4 v%d, s[%d:%d], s%d offen lds" % (vDB[0], sWO, sWO + 3, sTmp), "wo")
        vm.issue("buffer_load_dwordx4 v%d, s[%d:%d], s%d offen offset:1024 lds" % (vDB[1], sWO, sWO + 3, sTmp), "wo")
        M("s_add_u32 m0, m0, 2048", "s_add_u32 s%d, s%d, 16384" % (sTmp, sTmp))

    KVB = 65536
    def kv_dma():
        def ld(off): vm.issue("buffer_load_dwordx4 v%d, s[%d:%d], s6 offen offset:%d%s lds" % (vL16, sWS, sWS + 3, off, SC), "kv")
        def k0():
            M("s_lshl_b32 s3, s%d, 17" % sP, "s_lshl_b32 s4, s%d, 12" % sRB, "s_mul_i32 s7, s%d, 3072" % sW, "s_add_u32 m0, s7, %d" % KVB,
              "s_add_u32 s5, s3, s4", "s_add_u32 s6, s5, s7", "s_add_u32 s6, s6, 0x%x" % (KF - 8192), "s_add_u32 s5, s5, s4")
            ld(0)
        def k1():
            M("s_add_u32 m0, s7, %d" % (KVB + 12288), "s_add_u32 s6, s6, 65536"); ld(0)
        def va():
            M("s_lshl_b32 s7, s%d, 11" % sW, "s_add_u32 m0, s7, %d" % (KVB + 24576), "s_add_u32 s5, s5, 0x%x" % (VF - 16384), "s_add_u32 s6, s5, s7", "s_mov_b32 s%d, s5" % sSpin); ld(0)
        def vb():
            M("s_lshl_b32 s7, s%d, 12" % sW, "s_add_u32 m0, s7, %d" % (KVB + 32768), "s_add_u32 s6, s%d, s7" % (sE1 + 1), "s_add_u32 s6, s6, 8192"); ld(0)
        L = lambda o: (lambda: ld(o))
        sv = lambda: (A("s_mov_b32 s%d, s5" % (sE1 + 1)), ld(1024))
        return [k0, L(1024), L(2048), k1, L(1024), L(2048), va, sv], [vb, L(1024), L(2048), L(3072)]

    Q0, Q1, K0, K1_ = 192, 196, 200, 204
    V0, V1 = 208, 216
    P = 224
    S0, S1, O0, O1, MD, ME = 128, 144, 232, 64, 160, 176

    def bulk():
        res = []
        if not OPT["bulk"]: return res
        def f0():
            M("s_lshl_b32 s3, s2, 2", "s_add_u32 s3, s3, s%d" % sW, "s_mul_i32 s4, s3, 1536", "s_and_b32 s5, s%d, 1" % sW, "s_lshl_b32 s6, s2, 1", "s_add_u32 s6, s6, s5", "s_mul_i32 s6, s6, 3584")
            vm.issue("buffer_load_dword v60, v%d, s[%d:%d], s4 offen" % (vL16, sWQ, sWQ + 3), "bulk")
        res.append(f0)
        res.append(lambda: (A("s_mov_b32 exec_hi, 0"), vm.issue("buffer_load_dword v60, v%d, s[%d:%d], s4 offen offset:1024" % (vL16, sWQ, sWQ + 3), "bulk"), A("s_mov_b32 exec_hi, -1")))
        for j in range(3):
            res.append(lambda j=j: vm.issue("buffer_load_dword v60, v%d, s[%d:%d], s6 offen offset:%d" % (vL16, sGU, sGU + 3, j * 1024), "bulk"))
        res.append(lambda: (A("s_mov_b32 exec_hi, 0"), vm.issue("buffer_load_dword v60, v%d, s[%d:%d], s6 offen offset:3072" % (vL16, sGU, sGU + 3), "bulk"), A("s_mov_b32 exec_hi, -1")))
        if OPT["bulkb"] == 1:
            def g0():
                M("s_mul_i32 s4, s3, 1792", "s_lshl_b32 s5, s3, 9")
                vm.issue("buffer_load_dword v60, v%d, s[%d:%d], s4 offen" % (vL16, sDN, sDN + 3), "bulk")
            res.append(g0)
            res.append(lambda: vm.issue("buffer_load_dword v60, v%d, s[%d:%d], s4 offen offset:768" % (vL16, sDN, sDN + 3), "bulk"))
            res.append(lambda: (A("s_mov_b32 exec_hi, 0"), vm.issue("buffer_load_dword v60, v%d, s[%d:%d], s5 offen" % (vL16, sWO, sWO + 3), "bulk"), A("s_mov_b32 exec_hi, -1")))
        return res

    def stats(stage0, stages):
        if OPT["t0"]:
            M("v_mov_b32 v61, v57") if False else None
        if OPT["t0"]:
            kind, t = stages[0]
            base, sk, srd_, st = {"KV": (sKVb, sKq + t, sWQ, 3072), "Pa": (sGa, sKg + t, sGU, 3584)}[kind]
            M("v_mul_u32_u24 v38, %d, v%d" % (st, vLane), "s_add_u32 s4, s%d, s%d" % (base, sk))
            vm.issue("buffer_load_dword v60, v38, s[%d:%d], s4 offen" % (srd_, srd_ + 3), "tch")
        if OPT["bulk"] == 3:
            A("v_lshlrev_b32 v%d, 4, v%d" % (vL16, vLane))
            M("s_mov_b32 s90, s5", "s_mov_b32 s91, s6")
            for f in bulk(): f()
            M("s_mov_b32 s5, s90", "s_mov_b32 s6, s91")
        n0 = OPT["s0first"]
        for f in stage0[:n0]: f()
        for f in late: f()
        stamp("setup")
        rest = list(xl) + stage0[n0:] + (bulk() if OPT["bulk"] == 1 else [])
        for _ in range(OPT["xahead"]): rest.pop(0)()
        def rdx(c):
            vm.wait("x%d" % c)
            if OPT.get("xst"): stamp("x%d" % c)
            for sp in range(4):
                lg.issue("ds_read_b128 %s, v%d offset:%d" % (v(Xraw(4 * c + sp), 4), vXR + sp, c * 4096), "xr%d" % c)
        rdx(0)
        for c in range(8):
            for _ in range(4 if c < 4 else 2):
                if rest: rest.pop(0)()
            if c + 1 < 8: rdx(c + 1)
            lg.wait("xr%d" % c)
            for i in range(16):
                x = Xraw(4 * c) + i
                A("v_dot2_f32_bf16 v%d, v%d, s%d, v%d" % (vSt + i % 4, x, sOne, vSt + i % 4))
                A("v_dot2_f32_bf16 v%d, v%d, v%d, v%d" % (vSt + 4 + i % 4, x, x, vSt + 4 + i % 4))
                if i == 7 and c >= 4:
                    for _ in range(2):
                        if rest: rest.pop(0)()
        while rest: rest.pop(0)()
        stamp("stats")
        if OPT["ptouch"]: A("s_waitcnt lgkmcnt(0)")
        vm.wait("ep")
        A("s_barrier")

    def ln_scalar(dm):
        M("s_mov_b32 s4, 0x9e3779b9", "v_add_co_u32 v%d, vcc, 0x7f4a7c15, v%d" % (vTag, vTag), "v_mov_b32 v40, s4")
        seq = ["v_add_f32 v48, v48, v49", "v_add_f32 v50, v50, v51", "v_addc_co_u32 v%d, vcc, v40, v%d, vcc" % (vTag + 1, vTag + 1),
               "v_add_f32 v52, v52, v53", "v_add_f32 v54, v54, v55",
               "v_add_f32 v48, v48, v50", "v_add_f32 v52, v52, v54",
               "v_mov_b32 v49, v48", "v_mov_b32 v53, v52", None,
               "v_permlane32_swap_b32 v48, v49", "v_permlane32_swap_b32 v52, v53",
               "v_add_f32 v48, v48, v49", "v_add_f32 v52, v52, v53",
               "v_mul_f32 v48, %s, v48" % f32(1.0 / 512), "v_mul_f32 v52, %s, v52" % f32(1.0 / 512),
               "v_fma_f32 v52, -v48, v48, v52", "v_max_f32 v52, 0, v52",
               "v_cvt_pk_bf16_f32 v48, v48, v52",
               "v_and_b32 v52, 0xffff0000, v48", "v_lshlrev_b32 v48, 16, v48",
               "v_add_f32 v52, %s, v52" % f32(1e-5),
               "v_cvt_pk_bf16_f32 v52, v52, v52", "v_and_b32 v52, 0xffff0000, v52",
               "v_sqrt_f32 v52, v52", None,
               "v_cvt_pk_bf16_f32 v52, v52, v52", "v_and_b32 v%d, 0xffff0000, v52" % vSd,
               "v_rcp_f32 v%d, v%d" % (vRs, vSd)]
        k_ = seq.index("v_add_f32 v52, %s, v52" % f32(1e-5))
        seq[k_:k_] = ["v_xor_b32 v%d, 0x80000000, v48" % CM]
        fillm = ["v_mov_b32 v%d, v%d" % (CM + i, CM) for i in range(1, 16)]
        tailseq = seq[k_ + 1:]; seq = seq[:k_ + 1]
        for x_ in tailseq:
            seq.append(x_); seq += fillm[:2]; fillm = fillm[2:]
        seq += fillm
        for s_ in seq:
            if s_ is None:
                if dm: dm.pop(0)()
            else: A(s_)

    tyn = [0]
    B2PLAN = [[[0], [1], [2], [3], [4], [5], [6], [7, 8], [9, 10], [11]],
              [[0], [1], [2], [3], [4], [5], [6], [7], [8, 9], [10, 11]],
              [[0], [1], [2], [3], [4, 5], [6, 7], [8], [9], [10], [11]],
              [[], [0], [1], [2], [3], [4, 5], [6, 7], [8], [9, 10], [11]],
              [[0], [1], [2], [3], [4], [5], [6], [7], [8], [9]],
              [[], [0, 1], [2], [3, 4], [5], [6], [7], [], [8], [9]],
              [[], [0, 1], [2], [3, 4], [5], [6], [7], [8], [9, 10], [11]]][OPT["plan"]]
    NP1 = max(max(x) for x in B2PLAN if x) + 1
    def phase1(ty, stages, accs, streams, tail):
        tyn[0] = ty
        stats(dma_stage(stages[0][0], stages[0][1], 0, "s0"), stages)
        M("s_and_b32 s4, s%d, 1" % sW, "s_lshl_b32 s4, s4, 6", "v_xor_b32 v%d, s4, v%d" % (vBA, vBA), "v_xor_b32 v%d, s4, v%d" % (vBB, vBB))
        dm = []
        for sidx in range(1, 4): dm += dma_stage(stages[sidx][0], stages[sidx][1], sidx, "s%d" % sidx)
        if OPT["bulk"] == 2: dm = dm[:8] + bulk() + dm[8:]
        if OPT["t1"]:
            firsts = [st_ for i_, st_ in enumerate(stages) if i_ > 0 and st_[1] == 0]
            dm = dm[:OPT["t1"] - 1] + [touch(*x_) for x_ in firsts] + dm[OPT["t1"] - 1:]
        for j in range(1, 4): A("v_add_u32 v%d, %d, v61" % (vDB[j], j * 7168))
        A("v_mov_b32 v%d, v61" % vDB[0])
        hold = []
        if not OPT["lndma"]: hold, dm = dm, []
        ln_scalar(dm)
        ctr_mfma(0, 0); ctr_mfma(0, 1)
        for _ in range(4):
            if dm: dm.pop(0)()
        for c, f in ctr_cvt(0): f()
        stamp("ln")
        vm.wait("s0")
        if OPT.get("xst"): stamp("s0")
        A("s_barrier")
        q4 = quad(stages[0][0], stages[0][1], 0, 0)
        n = 0
        for j in range(4): rd(q4, j, 0, "w%d_%d" % (n, j // 2))
        buf = 0
        wpend = dm + hold
        fill = []; fill_gaps = 0; fill_tot = 0; fill_done = 0; gap = 0
        for sidx, (kind, t) in enumerate(stages):
            slot = sidx % 4
            vm.hook = stamp if (OPT.get("wst") and OPT["wst"] <= sidx <= OPT["wst"] + 3) else None
            bx = []
            for n_ in B2PLAN[sidx]: bx += (b2_read(n_ - 2) if n_ >= 2 else []) + b2_dma(n_)
            if len(B2PLAN[sidx]) == 2:
                h_ = len(bx) // 2
                ex = bx[:h_] + list(wpend) + bx[h_:]
            else: ex = bx + list(wpend) if sidx else list(wpend) + bx
            wpend = []
            if OPT["bulkb"] >= 2 and sidx == OPT["bulkb"] - 2:
                def g0():
                    M("s_lshl_b32 s3, s2, 2", "s_add_u32 s3, s3, s%d" % sW, "s_mul_i32 s4, s3, 1792", "s_lshl_b32 s5, s3, 9")
                    vm.issue("buffer_load_dword v60, v%d, s[%d:%d], s4 offen" % (vL16, sDN, sDN + 3), "bulk")
                ex += [g0, lambda: vm.issue("buffer_load_dword v60, v%d, s[%d:%d], s4 offen offset:768" % (vL16, sDN, sDN + 3), "bulk"),
                       lambda: (A("s_mov_b32 exec_hi, 0"), vm.issue("buffer_load_dword v60, v%d, s[%d:%d], s5 offen" % (vL16, sWO, sWO + 3), "bulk"), A("s_mov_b32 exec_hi, -1"))]
            if sidx == 1 and OPT["satom"]:
                def at():
                    L = A.newlabel("L_at")
                    M("s_mov_b32 s%d, 1" % (sDBG + 2), "s_cmp_lg_u32 s%d, 0" % sW, "s_cbranch_scc1 %s" % L, "s_atomic_add s%d, s[%d:%d], 0 glc" % (sDBG + 2, sDBG, sDBG + 1))
                    A.label(L)
                ex.append(at)
            if sidx == 4: A.label("L_mid%d" % ty)
            if sidx == 2: ex.append(code_touch("L_mid%d" % ty, 6))
            if sidx == 7: ex.append(code_touch("L_ATT", 8))
            if sidx == OPT["wopf"]:
                def wp(j):
                    if j == 0: M("s_and_b32 s3, s%d, 3" % sR, "s_lshl_b32 s3, s3, 15", "s_add_u32 s%d, s3, s%d" % (sSpin, sBo), "s_sub_u32 s%d, s%d, 0" % (sSpin, sSpin))
                    vm.issue("buffer_load_dword v60, v%d, s[%d:%d], s%d offen offset:%d" % (vDB[j], sWO, sWO + 3, sSpin, j * 1024), "wopf")
                ex += [(lambda j=j: wp(j)) for j in range(4)]
            if ty == 0 and sidx == 6:
                def pubkv():
                    vm.wait("stkv")
                    M("s_lshl_b32 s3, s%d, 15" % sIQ, "s_lshl_b32 s4, s%d, 11" % sRB, "s_add_u32 s3, s3, s4", "s_lshl_b32 s4, s%d, 7" % sW, "s_add_u32 s3, s3, s4", "s_add_u32 s3, s3, 0x%x" % FK)
                    publish(3)
                ex.insert(12, pubkv)
            if ty == 0 and sidx == 8:
                def pubq():
                    vm.wait("stq")
                    M("s_lshl_b32 s3, s%d, 15" % sIQ, "s_lshl_b32 s4, s%d, 11" % sRB, "s_add_u32 s3, s3, s4", "s_lshl_b32 s4, s%d, 7" % sW, "s_add_u32 s3, s3, s4", "s_add_u32 s3, s3, 0x%x" % FQ)
                    publish(3)
                ex.insert(0 if OPT["kvst"] == 9 else len(ex), pubq)
            if ty == 1 and sidx == 8:
                def pube():
                    vm.wait("sta")
                    M("s_lshl_b32 s3, s%d, 11" % sBLK, "s_lshl_b32 s4, s%d, 7" % sP, "s_add_u32 s3, s3, s4", "s_add_u32 s3, s3, 0x%x" % FE)
                    publish(3)
                ex.insert(len(ex) // 2, pube)
            if sidx == OPT["kvst"] - 1:
                def pk():
                    M("s_lshr_b32 s3, s%d, 1" % sP, "s_lshl_b32 s3, s3, 15", "s_lshl_b32 s4, s%d, 11" % sRB, "s_add_u32 s3, s3, s4", "s_add_u32 s%d, s3, 0x%x" % (sFl, FK - 4096),
                      "s_lshl_b32 s4, s%d, 2" % sRB, "s_sub_i32 s4, 8, s4", "s_max_i32 s4, s4, 0",
                      "s_lshl_b32 s%d, -1, s4" % sMask, "s_and_b32 s%d, s%d, 0xfff" % (sMask, sMask), "s_mov_b32 s%d, 0" % (sMask + 1))
                    poll_issue(vPo, sFl, "pk")
            if sidx == OPT["kvst"]:
                kva, kvb = kv_dma()
                ex = [lambda: poll_check(vPo, sFl, "pk")] + kva + (kvb if sidx == 9 else []) + ex
            if sidx == 9 and OPT["kvst"] == 8: ex = kvb + ex
            if sidx == OPT["kvst"] - 1: ex.insert(1, pk)
            if sidx == 9 and not (OPT["qloc"] and ty == 0):
                def pq():
                    M("s_lshr_b32 s3, s%d, 1" % sP, "s_lshl_b32 s3, s3, 15", "s_lshl_b32 s4, s%d, 11" % sRB, "s_add_u32 s3, s3, s4", "s_lshl_b32 s4, s%d, 7" % sW, "s_add_u32 s3, s3, s4", "s_add_u32 s%d, s3, 0x%x" % (sFl, FQ),
                      "s_mov_b32 s%d, 1" % sMask, "s_mov_b32 s%d, 0" % (sMask + 1))
                    poll_issue(vPo, sFl, "pq")
                ex.insert(9 if OPT["kvst"] == 9 else 4, pq)
            if sidx in streams:
                if fill: flush_held()
                while fill: fill.pop(0)[1]()
                fill, ns = streams[sidx]
                fill = list(fill); fill_gaps = ns * 32 - 6; fill_tot = sum(abs(c) for c, _ in fill); fill_done = 0; gap = -3
            nex = len(ex); exi = 0
            for q in range(8):
                cur = quad(kind, t, slot, q)
                if q == 7:
                    if sidx + 1 < len(stages):
                        vm.wait("s%d" % (sidx + 1))
                        if vm.hook: stamp("preb")
                        A("s_barrier")
                        if vm.hook: stamp("bar")
                        nxt = quad(stages[sidx + 1][0], stages[sidx + 1][1], (sidx + 1) % 4, 0)
                        if sidx >= 1 and sidx + 3 < len(stages):
                            wpend = dma_stage(stages[sidx + 3][0], stages[sidx + 3][1], (sidx + 3) % 4, "s%d" % (sidx + 3))
                    else:
                        nxt = None
                else:
                    nxt = quad(kind, t, slot, q + 1)
                pc = (8 * sidx + q) // 2 + 1
                if q % 2 == 0: lag_now = list(lagq); del lagq[:]
                if sidx < 4 and pc < 16 and q % 2 == 0: cq = ctr_cvt(pc)
                docm = sidx < 4 and pc < 16
                for j in range(4):
                    acc, xi, _, _, _ = cur[j]
                    if j % 2 == 0: lg.wait("w%d_%d" % (n, j // 2))
                    d = v(accs[sidx] + acc * 16, 16)
                    c = d if xi > 0 else "0"
                    wf, xf = a(buf * 16 + j * 4, 4), Xr(xi)
                    if kind == "KV" and acc >= 2: A("%s %s, %s, %s, %s" % (MF, d, xf, wf, c))
                    else: A("%s %s, %s, %s, %s" % (MF, d, wf, xf, c))
                    used = 4 if held else 0
                    flush_held()
                    if nxt is not None: rd(nxt, j, buf ^ 1, "w%d_%d" % (n + 1, j // 2))
                    g_in = q * 4 + j
                    due = lambda: exi < nex and exi * 29 <= g_in * nex
                    isds = lambda: getattr(ex[exi], "is_ds", False)
                    if fill and fill[0][0] == -4:
                        c_, f = fill.pop(0); f(); fill_done += 4; used += 4
                    elif due() and isds():
                        ex[exi](); exi += 1; used += 4
                        if exi < nex and exi * 29 <= (g_in - 3) * nex and isds():
                            ex[exi](); exi += 1; used += 4
                    if fill and fill[0][0] == -8:
                        c_, f = fill.pop(0); run_hold(f); fill_done += 8
                    elif due() and not isds():
                        run_hold(ex[exi]); exi += 1; used += 2
                    if q % 2 == 0 and lag_now: lag_now.pop(0)[1]()
                    if docm:
                        g8 = (q % 2) * 4 + j
                        if g8 in (0, 1): ctr_mfma(pc, g8)
                        if g8 >= 4:
                            k = -(-len(cq) // (8 - g8))
                            for _ in range(k): cq.pop(0)[1]()
                    if sidx == 3 and q == 7 and j == 0:
                        M("v_mul_f32 v%d, %s, v%d" % (vC1, f32(-LOG2E), vRs), "v_mul_f32 v%d, v%d, v%d" % (vS2, vSd, vSd), "v_mul_f32 v%d, %s, v%d" % (vQs, f32(0.25 * LOG2E), vRs))
                    if sidx == 3 and q == 7 and j == 1:
                        M("v_lshrrev_b32 v%d, 2, v%d" % (vPo, vLane), "v_and_b32 v27, 3, v%d" % vLane, "v_lshlrev_b32 v27, 7, v27", "v_lshl_add_u32 v%d, v%d, 11, v27" % (vPo, vPo))
                    gap += 1
                    if fill and gap > 0:
                        lag = fill_tot * gap / fill_gaps - fill_done
                        lim = max(OPT["budget"], fill_tot / fill_gaps + 4)
                        while fill and fill[0][0] > 0 and lag > 0 and (used + fill[0][0] <= lim or lag > 24):
                            c_, f = fill.pop(0); f(); fill_done += c_; used += c_; lag -= c_
                buf ^= 1; n += 1
            while exi < nex:
                flush_held(); ex[exi](); exi += 1
            if OPT["stamp"]: flush_held()
            stamp("st%d" % sidx, sidx not in (3, 5, 7, 9))
        vm.hook = None
        flush_held()
        while fill: fill.pop(0)[1]()
        if OPT["qloc"] and ty == 0:
            for _ in range(3): stamp("-", True)
            for i in range(8): A("v_mov_b32 v%d, v%d" % (Q0 + i, ACB + 16 + i))
        else:
            poll_check(vPo, sFl, "pq")
            M("s_lshl_b32 s3, s%d, 17" % sP, "s_lshl_b32 s4, s%d, 10" % sBLK, "s_add_u32 s4, s4, s3", "s_add_u32 s4, s4, 0x%x" % QF, "s_add_u32 s5, s4, 65536")
            vm.issue("buffer_load_dwordx4 %s, v%d, s[%d:%d], s4 offen%s" % (v(Q0, 4), vL16, sWS, sWS + 3, SC), "q")
            vm.issue("buffer_load_dwordx4 %s, v%d, s[%d:%d], s5 offen%s" % (v(Q1, 4), vL16, sWS, sWS + 3, SC), "q")
        M("s_lshl_b32 s%d, s%d, 12" % (sXo, sR), "s_lshl_b32 s3, s%d, 9" % sW, "s_add_u32 s%d, s%d, s3" % (sXo, sXo), "s_add_u32 s%d, s%d, 0x%x" % (sXo, sXo, FE))
        poll_issue(vPo, sXo, "pe", 14)
        for f in b2_read(NP1 - 2): f()
        for c_, f in tail: f()
        stamp("tail")

    M("s_cmp_eq_u32 s%d, 0" % sTy, "s_cbranch_scc0 L_HH")
    sv, sl, sn = vm.save(), lg.save(), nst[0]
    phase1(0, [("KV", t) for t in range(4)] + [("Q", t) for t in range(2)] + [("Pa", t) for t in range(4)],
           [ACA] * 4 + [ACB] * 2 + [ACA] * 4,
           {4: (st_kv(ACA), 2), 6: (st_q(ACB), 1), 8: (st_mask(), 1)}, tail_swiglu(ACA, 2, 32, sHa, "sth"))
    A("s_branch L_ATT")
    vq, lq = vm.save(), lg.save()
    A.label("L_HH")
    vm.load(sv); lg.load(sl); nst[0] = sn
    phase1(1, [("Pa", t) for t in range(4)] + [("Pb", t) for t in range(4)] + [("P1", t) for t in range(2)],
           [ACA] * 4 + [ACB] * 4 + [ACA] * 2,
           {4: (st_swiglu(ACA, 2, 32, sHa, "sta"), 4), 8: (st_swiglu(ACB, 2, 32, sHb, "sth"), 2)}, tail_swiglu(ACA, 1, 16, sH1, "sth") + st_mask())
    A.label("L_ATT")
    vm.merge(vq); lg.merge(lq)
    vKA, vVA = 6, 7
    for rg in range(16): A("v_mov_b32 v%d, 0x3f803f80" % (V0 + rg))
    M("s_mov_b32 s%d, 0x0000ffff" % sE0, "s_mov_b32 s%d, 0x0000ffff" % (sE0 + 1), "s_mov_b32 s%d, 0xffff0000" % sE1, "s_mov_b32 s%d, 0xffff0000" % (sE1 + 1))
    M("s_sub_i32 s%d, 8, s%d" % (sI0, sBLK), "s_max_i32 s%d, s%d, 0" % (sI0, sI0))
    M("s_add_u32 s4, s%d, s%d" % (sI0, sW), "s_lshl_b32 s5, s4, 10", "s_add_u32 s5, s5, %d" % KVB, "v_add_u32 v%d, s5, v%d" % (vKA, vL16),
      "s_lshl_b32 s5, s4, 11", "s_add_u32 s5, s5, %d" % (KVB + 24576), "v_add_u32 v%d, s5, v%d" % (vVA, vL16),
      "v_mov_b32 v12, v%d" % vKA, "v_mov_b32 v13, v%d" % vVA)
    A("v_mov_b32 v%d, 1" % vRet)
    M("s_lshl_b32 s3, s%d, 11" % sBLK, "s_lshl_b32 s4, s%d, 7" % sP, "s_add_u32 s3, s3, s4", "s_add_u32 s%d, s3, 0x%x" % (sFl, FH))
    D2 = OPT["d2"]
    M("s_lshl_b32 s3, s%d, 1" % sR, "s_lshr_b32 s4, s%d, 1" % sW, "s_add_u32 s5, s3, s4", "s_xor_b32 s6, s5, 1",
      "s_mul_i32 s%d, s5, %d" % (sAd, 144 * 1024), "s_mul_i32 s%d, s6, %d" % (sAd + 1, 144 * 1024),
      "s_lshl_b32 s4, s%d, 13" % sW, "s_add_u32 s4, s4, %d" % (112 * 1024), "s_add_u32 s%d, s%d, s4" % (sAo, sAd), "s_add_u32 s%d, s%d, s4" % (sAo + 1, sAd + 1),
      "s_mov_b32 s%d, 0x%x" % (sMask, 0xaa if OPT["qloc"] else 0xcc), "s_mov_b32 s%d, 0" % (sMask + 1))
    sAg = 78
    pool = list(range(192, 232, 4)) + [248, 252, 232, 236, 240, 244]
    assert len(pool) >= 2 * D2
    def AFr(ks, rf):
        if ks < 6: return v(80 + ks * 8 + rf * 4, 4)
        if ks < 8: return a(16 + (ks - 6) * 8 + rf * 4, 4)
        return v(pool[((ks - 8) % D2) * 2 + rf], 4)
    def loadA(ks):
        kk = ks if ks < 28 else ks - 28
        if kk % 4 == 0:
            if ks < 28:
                grp_base(sAg, ks // 4)
                M("s_lshl_b32 s%d, s%d, 10" % (sAg, sAg), "s_add_u32 s%d, s%d, s%d" % (sAg + 1, sAg, sAd + 1), "s_add_u32 s%d, s%d, s%d" % (sAg, sAg, sAd))
            else:
                M("s_add_u32 s%d, s%d, %d" % (sAg, sAo, kk * 1024), "s_add_u32 s%d, s%d, %d" % (sAg + 1, sAo + 1, kk * 1024))
        for rf in range(2):
            vm.issue("buffer_load_dwordx4 %s, v%d, s[%d:%d], s%d offen offset:%d%s" % (AFr(ks, rf), vL16, sWS, sWS + 3, sAg + rf, (kk % 4) * 1024, SC), "a%d" % ks)
    LA = lambda ks: (lambda: loadA(ks))
    M("s_lshl_b32 s%d, s%d, 14" % (sSt, sW), "s_mov_b32 s%d, s%d" % (sWl, sSt), "s_mov_b32 s%d, s%d" % (sTmp, sBo))
    for f in b2_dma(NP1): f()
    for f in b2_read(NP1 - 1): f()
    poll_check(vPo, sXo, "pe", 14)
    EL = OPT["elate"]
    if not EL: loadA(0); loadA(1)
    M("s_add_u32 s%d, s%d, 0x%x" % (sXo, sXo, FH - FE + (1 << 32) if FH < FE else FH - FE), "s_mov_b32 s%d, 0xff" % sMask)
    vm.wait("q"); A("s_barrier")
    stamp("att0")
    def rdK(h, off): lg.issue("ds_read_b128 %s, v%d offset:%d" % (v(K0 if h == 0 else K1_, 4), vKA, h * 12288 + off), "k%d" % h)
    def rdV(h, off):
        A("s_mov_b64 exec, s[%d:%d]" % ((sE0, sE0 + 1) if h == 0 else (sE1, sE1 + 1)))
        R = V0 if h == 0 else V1
        lg.issue("ds_read_b128 %s, v%d offset:%d" % (v(R, 4), vVA, off), "v%d" % h)
        lg.issue("ds_read_b128 %s, v%d offset:%d" % (v(R + 4, 4), vVA, off + 1024), "v%d" % h)
        A("s_mov_b64 exec, -1")
    def mask(m): return {"0": "0", "D": v(MD, 16), "E": v(ME, 16)}[m]
    def ex_(r): A("v_exp_f32 v%d, v%d" % (r, r))
    def cv(d, s_): A("v_cvt_pk_bf16_f32 v%d, v%d, v%d" % (d, s_, s_ + 1))
    def half(h, mqk, last, first, extra):
        S, O, Vr = (S0, O0, V0) if h == 0 else (S1, O1, V1)
        So, Oo, Vo, Ko, Qo = (S1, O1, V1, K1_, Q1) if h == 0 else (S0, O0, V0, K0, Q0)
        ex_(S); ex_(S + 1)
        if not (first and h == 0): A("%s %s, %s, %s, %s" % (MF, v(Oo, 16), v(Vo + 4, 4), v(P + 4, 4), v(Oo, 16)))
        n_new = 0
        if not last: rdK(h, 1024); n_new += 1
        if mqk is not None: rdV(1 - h, 0 if h == 0 else 2048); n_new += 2
        ex_(S + 2); ex_(S + 3); ex_(S + 4); ex_(S + 5); cv(P, S); cv(P + 1, S + 2)
        A("s_waitcnt lgkmcnt(%d)" % n_new)
        if mqk is not None: A("%s %s, %s, %s, %s" % (MF, v(So, 16), v(Ko, 4), v(Qo, 4), mask(mqk)))
        ex_(S + 6); ex_(S + 7); ex_(S + 8); ex_(S + 9); cv(P + 2, S + 4); cv(P + 3, S + 6); ex_(S + 10); ex_(S + 11)
        A("%s %s, %s, %s, %s" % (MF, v(O, 16), v(Vr, 4), v(P, 4), "0" if first else v(O, 16)))
        for f in extra: f()
        ex_(S + 12); ex_(S + 13); cv(P + 4, S + 8); cv(P + 5, S + 10); ex_(S + 14); ex_(S + 15)
        if h == 1 and not last: M("v_add_u32 v%d, 1024, v%d" % (vKA, vKA), "v_add_u32 v%d, 2048, v%d" % (vVA, vVA))
        cv(P + 6, S + 12); cv(P + 7, S + 14)
    def body(m1, m0n, first=False, e0=(), e1=()):
        half(0, m1, m0n is None, first, e0); half(1, m0n, m0n is None, first, e1)
    sOo = 72
    rdK(0, 0); rdK(1, 0); rdV(0, 0)
    if OPT["xrearly"]:
        M("v_and_b32 v40, 31, v%d" % vLane, "v_lshrrev_b32 v41, 5, v%d" % vLane, "v_lshlrev_b32 v40, 10, v40", "v_lshl_add_u32 v%d, v41, 4, v40" % vXo,
          "s_lshr_b32 s3, s%d, 1" % sW, "s_lshl_b32 s4, s%d, 1" % sR, "s_add_u32 s3, s3, s4", "s_lshl_b32 s3, s3, 15",
          "s_and_b32 s4, s%d, 1" % sW, "s_lshl_b32 s4, s4, 6", "s_add_u32 s3, s3, s4", "s_lshl_b32 s4, s%d, 7" % sC2, "s_add_u32 s%d, s3, s4" % sOo)
        vm.issue("buffer_load_dwordx4 v[48:51], v%d, s[%d:%d], s%d offen" % (vXo, sXS, sXS + 3, sOo), "xr")
        vm.issue("buffer_load_dwordx4 v[52:55], v%d, s[%d:%d], s%d offen offset:32" % (vXo, sXS, sXS + 3, sOo), "xr")
    for f in b2_dma(NP1 + 1): f()
    A("s_mov_b32 m0, s%d" % sSt)
    if not OPT["satom"]:
        M("s_cmp_lg_u32 s%d, 0" % sW, "s_cbranch_scc1 L_noat", "s_mov_b64 exec, 1")
        A("buffer_atomic_add v%d, v%d, s[%d:%d], 0 offen sc0" % (vRet, vL16, sDBG, sDBG + 3))
        A("s_mov_b64 exec, -1")
        A.label("L_noat")
    M("s_cmp_lg_u32 s%d, 0" % sI0, "s_cbranch_scc1 A_short")
    sv_short = vm.save()
    A("s_waitcnt lgkmcnt(3)")
    A("%s %s, %s, %s, %s" % (MF, v(S0, 16), v(K0, 4), v(Q0, 4), v(ME, 16)))
    A("s_mov_b32 s%d, 6" % sCnt)
    body("E", "0", True, *(([wo2], []) if EL else ([wo2, LA(2)], [LA(3)])))
    stamp("t0", True)
    A.label("A_mid")
    def pubh():
        L = A.newlabel("L_ph")
        M("s_cmp_lg_u32 s%d, %d" % (sCnt, 7 - OPT["pubh"]), "s_cbranch_scc1 %s" % L)
        for _ in range(OPT["pubh"] - 1): vm.ops += ["wo", "wo"]
        vm.wait("sth"); publish(sFl)
        A.label(L)
    body("0", "0", False, [wo2], [pubh])
    M("s_sub_u32 s%d, s%d, 1" % (sCnt, sCnt), "s_cmp_lg_u32 s%d, 0" % sCnt, "s_cbranch_scc1 A_mid")
    A.label("A_b7")
    body("0", "D", False, *(([wo2, LA(0)], [LA(1), LA(2)]) if EL else ([wo2, LA(4)], [LA(5)])))
    A.label("A_b8")
    if NP1 == 10:
        for f in b2_read(10) + b2_dma(12) + b2_read(11) + b2_dma(13): f()
    PH = lambda: poll_issue(vPo, sXo, "ph")
    body("D", None, False, *(([PH, LA(3), LA(4)], [LA(5), LA(6)]) if EL else ([PH, LA(6)], [LA(7)])))
    if EL: loadA(7)
    A("%s %s, %s, %s, %s" % (MF, v(O1, 16), v(V1 + 4, 4), v(P + 4, 4), v(O1, 16)))
    lg.mark_all()
    vm_main = vm.save()
    stamp("att")
    M("s_mul_i32 s3, s%d, %d" % (sBLK, 144 * 1024), "s_lshl_b32 s4, s%d, 11" % sP, "s_add_u32 s3, s3, s4", "s_add_u32 s%d, s3, %d" % (sSt + 1, 112 * 1024),
      "v_mov_b32 v42, 0x1f800000", "v_mov_b32 v43, 0x5f800000", "v_mov_b32 v44, 0x1f8")
    for i in range(2): A("v_pk_add_f32 %s, %s, %s" % (v(T + 2 * i, 2), v(O0 + 4 * i, 2), v(O0 + 4 * i + 2, 2)))
    M("v_cmp_le_f32 vcc, v42, v%d" % (O0 + 8), "v_cmp_ge_f32 s[4:5], v43, v%d" % (O0 + 8), "v_rcp_f32 v40, v%d" % (O0 + 8), "v_pk_add_f32 %s, %s, %s" % (v(T, 2), v(T, 2), v(T + 2, 2)), "s_and_b64 vcc, vcc, s[4:5]")
    for i in range(2): A("v_pk_add_f32 %s, %s, %s" % (v(T + 4 + 2 * i, 2), v(O1 + 8 + 4 * i, 2), v(O1 + 8 + 4 * i + 2, 2)))
    M("v_cmp_le_f32 s[6:7], v42, v%d" % O1, "v_cmp_ge_f32 s[4:5], v43, v%d" % O1, "v_pk_add_f32 %s, %s, %s" % (v(T + 4, 2), v(T + 4, 2), v(T + 6, 2)),
      "v_rcp_f32 v41, v%d" % O1, "v_pk_add_f32 %s, %s, %s" % (v(T, 2), v(T, 2), v(T + 4, 2)), "s_and_b64 vcc, vcc, s[6:7]", "s_and_b64 s[6:7], vcc, s[4:5]",
      "v_add_f32 v%d, v%d, v%d" % (T, T, T + 1), "v_cmp_class_f32 vcc, v%d, v44" % T, "s_and_b64 vcc, vcc, s[6:7]")
    if OPT["fb_force"]: A("s_mov_b64 vcc, 0")
    M("s_cmp_eq_u64 vcc, -1", "s_cbranch_scc0 A_fb")
    A.label("A_fin2")
    poll_check(vPo, sXo, "ph")
    if OPT["atouch"]:
        M("s_and_b32 s3, s%d, 3" % sC2, "s_lshl_b32 s3, s3, 10", "s_cmp_ge_u32 s%d, 4" % sC2, "s_cselect_b32 s4, s%d, s%d" % (sAd + 1, sAd),
          "s_cmp_ge_u32 s%d, 2" % sW, "s_cselect_b32 s5, s%d, s%d" % (sAd + 1, sAd), "s_xor_b32 s4, s4, s5", "s_xor_b32 s4, s4, s%d" % sAd, "s_cmp_ge_u32 s%d, 2" % sW)
        M("s_mul_i32 s4, s%d, %d" % (sR, 2 * 144 * 1024), "s_lshr_b32 s5, s%d, 2" % sC2, "s_mul_i32 s5, s5, %d" % (144 * 1024), "s_add_u32 s4, s4, s5", "s_add_u32 s4, s4, s3")
        for g in range(2, 7):
            grp_base(5, g)
            M("s_lshl_b32 s5, s5, 10", "s_add_u32 s5, s5, s4")
            vm.issue("buffer_load_dword v60, v%d, s[%d:%d], s5 offen%s" % (vL16, sWS, sWS + 3, SC), "atch")
    for ks in range(8, 13): loadA(ks)
    assert D2 >= 6
    AC2 = 128
    nl = [13]
    fin = []
    for i in range(8): fin.append(I("v_mul_f32 v%d, v%d, v40" % (O0 + i, O0 + i)))
    for i in range(4): fin.append(I("v_cvt_pk_bf16_f32 v%d, v%d, v%d" % (T + i, O0 + 2 * i, O0 + 2 * i + 1)))
    fin.append((-8, lambda: store(T, sSt + 1, 0, "sto")))
    for i in range(8): fin.append(I("v_mul_f32 v%d, v%d, v41" % (O1 + 8 + i, O1 + 8 + i)))
    for i in range(4): fin.append(I("v_cvt_pk_bf16_f32 v%d, v%d, v%d" % (T + 4 + i, O1 + 8 + 2 * i, O1 + 9 + 2 * i)))
    fin.append((-8, lambda: store(T + 4, sSt + 1, 1024, "sto")))
    fin += [(-4, f) for f in b2_read(12) + b2_read(13)]
    if not OPT["xrearly"]: fin += [I(x) for x in ("v_and_b32 v40, 31, v%d" % vLane, "v_lshrrev_b32 v41, 5, v%d" % vLane, "v_lshlrev_b32 v40, 10, v40", "v_lshl_add_u32 v%d, v41, 4, v40" % vXo)]
    if not OPT["xrearly"]: fin.append((2, lambda: M("s_lshr_b32 s3, s%d, 1" % sW, "s_lshl_b32 s4, s%d, 1" % sR, "s_add_u32 s3, s3, s4", "s_lshl_b32 s3, s3, 15",
      "s_and_b32 s4, s%d, 1" % sW, "s_lshl_b32 s4, s4, 6", "s_add_u32 s3, s3, s4", "s_lshl_b32 s4, s%d, 7" % sC2, "s_add_u32 s%d, s3, s4" % sOo)))
    fin.append((4, lambda: M("s_sub_u32 s3, s%d, s%d" % (sSt, sStg), "v_add_u32 v%d, s3, v%d" % (vBA, vBA), "v_add_u32 v%d, s3, v%d" % (vBB, vBB))))
    for i in range(1, 4): fin.append((4, lambda i=i: M("s_xor_b32 s3, s%d, %d" % (sW, i), "s_lshl_b32 s3, s3, 14", "v_add_u32 v%d, s3, v%d" % (40 + i, vL16))))
    fin.append(I("v_add_u32 v40, s%d, v%d" % (sSt, vL16)))
    def rdO(kk):
        for cf in range(2):
            R = vBA if cf == 0 else vBB
            d = (kk % 2) * 8 + cf * 4
            lg.issue("ds_read_b64_tr_b16 %s, v%d offset:%d" % (a(d, 2), R, kk * 2048), "o%d" % kk)
            lg.issue("ds_read_b64_tr_b16 %s, v%d offset:%d" % (a(d + 2, 2), R, kk * 2048 + 1024), "o%d" % kk)
    stamp("p2go")
    KO = 28 - D2 + OPT.get("odelay", 0)
    for ks in range(36):
        if ks == OPT["pubo"]:
            vm.wait("sto")
            M("s_lshl_b32 s3, s%d, 11" % sBLK, "s_lshl_b32 s4, s%d, 7" % sP, "s_add_u32 s3, s3, s4", "s_add_u32 s3, s3, 0x%x" % FO)
            publish(3)
        if ks == KO - 4:
            A("s_add_u32 s%d, s%d, 0x%x" % (sXo, sXo, FO - FH))
            poll_issue(vPo, sXo, "po")
        if ks == KO:
            stamp("p2a")
            poll_check(vPo, sXo, "po")
            stamp("p2b")
        if ks == 18 and not OPT["xrearly"]:
            vm.issue("buffer_load_dwordx4 v[48:51], v%d, s[%d:%d], s%d offen" % (vXo, sXS, sXS + 3, sOo), "xr")
            vm.issue("buffer_load_dwordx4 v[52:55], v%d, s[%d:%d], s%d offen offset:32" % (vXo, sXS, sXS + 3, sOo), "xr")
        vm.wait("a%d" % ks)
        if ks == 20: lg.wait("b2r13")
        if ks == 30:
            vm.wait("xr")
            for i in range(8): fin += [I("v_lshlrev_b32 v%d, 16, v%d" % (64 + 2 * i, 48 + i)), I("v_and_b32 v%d, s%d, v%d" % (65 + 2 * i, sMsk, 48 + i))]
        if ks >= 28: lg.wait("o%d" % (ks - 28))
        lim = min(36 if ks >= KO else 28, max(ks, 8) + D2)
        m = 0
        for cf in range(2):
            for rf in range(2):
                d = v(AC2 + (rf * 2 + cf) * 16, 16)
                A("%s %s, %s, %s, %s" % (MF, d, Breg(ks, cf), AFr(ks, rf), d if ks else "0"))
                m += 1
                flush_held()
                if m == 2 and 27 <= ks < 35: rdO(ks - 27)
                if m in (1, 3) and nl[0] < lim and (nl[0] < 14 or ks >= 2):
                    loadA(nl[0]); nl[0] += 1
                used = 0
                while fin and fin[0][0] == -4 and used < 12:
                    fin.pop(0)[1](); used += 4
                while fin and fin[0][0] > 0 and used < 20:
                    c_, f = fin.pop(0); f(); used += c_
                if fin and fin[0][0] == -8: run_hold(fin.pop(0)[1])
    stamp("p2end")
    assert not fin and not held
    for i in range(1, 4):
        for j in range(4): A("ds_write_b128 v40, %s offset:%d" % (v(AC2 + i * 16 + 4 * j, 4), (i - 1) * 4096 + j * 1024))
    M("s_waitcnt lgkmcnt(0)", "s_barrier")
    for i in range(1, 4):
        for j in range(4): lg.issue("ds_read_b128 %s, v%d offset:%d" % (v(AC2 + i * 16 + 4 * j, 4), 40 + i, (i - 1) * 4096 + j * 1024), "r%d" % i)
    M("s_cmp_lg_u32 s%d, 0" % sW, "s_cbranch_scc1 L_noep", ("s_mov_b32 s3, s%d" % (sDBG + 2)) if OPT["satom"] else ("v_readfirstlane_b32 s3, v%d" % vRet), "s_cmp_lg_u32 s3, 255", "s_cbranch_scc1 L_noep",
      "s_mov_b32 s3, 0x%x" % EOFF, "s_mov_b64 exec, 1")
    A("buffer_store_dwordx2 %s, v%d, s[%d:%d], s3 offen" % (v(vTag, 2), vL16, sWS, sWS + 3))
    A("s_mov_b64 exec, -1")
    A.label("L_noep")
    PA = lambda d, x, y: A("v_pk_add_f32 %s, %s, %s" % (v(d, 2), v(x, 2), v(y, 2)))
    lg.wait("r1")
    for i in range(0, 16, 2): PA(AC2 + i, AC2 + i, AC2 + 16 + i)
    lg.wait("r2")
    for i in range(0, 16, 2): PA(AC2 + i, AC2 + i, AC2 + 32 + i)
    lg.wait("r3")
    for i in range(0, 16, 2): PA(AC2 + i, AC2 + i, AC2 + 48 + i)
    for jj in range(2):
        for i in range(4): A("v_permlane32_swap_b32 v%d, v%d" % (AC2 + 8 * jj + i, AC2 + 8 * jj + 4 + i))
    for i in range(0, 16, 2): PA(64 + i, 64 + i, AC2 + i)
    for i in range(8): cv(T + i, 64 + 2 * i)
    A("buffer_store_dwordx4 %s, v%d, s[%d:%d], s%d offen" % (v(T, 4), vXo, sOUT, sOUT + 3, sOo))
    A("buffer_store_dwordx4 %s, v%d, s[%d:%d], s%d offen offset:32" % (v(T + 4, 4), vXo, sOUT, sOUT + 3, sOo))
    stamp_flush()
    A("s_endpgm")
    A.label("A_short")
    vm.load(sv_short)
    for i in range(16): M("v_mov_b32 v%d, 0" % (O0 + i), "v_mov_b32 v%d, 0" % (O1 + i))
    for i in range(4): A("v_mov_b32 v%d, 0" % (P + 4 + i))
    M("s_cmp_le_u32 s%d, %d" % (sI0, OPT["pubh"]), "s_cbranch_scc1 A_sh1")
    vm.wait("sth"); publish(sFl)
    A.label("A_sh1")
    if not EL: loadA(2); loadA(3)
    M("s_cmp_lg_u32 s%d, 8" % sI0, "s_cbranch_scc1 A_sh1b")
    if EL: loadA(0); loadA(1); loadA(2)
    else: loadA(4); loadA(5)
    A.label("A_sh1b")
    A("s_mov_b32 s%d, s%d" % (sCnt, sI0))
    A.label("A_sh2")
    wo2()
    M("s_sub_u32 s%d, s%d, 1" % (sCnt, sCnt), "s_cmp_lg_u32 s%d, 0" % sCnt, "s_cbranch_scc1 A_sh2")
    M("s_waitcnt lgkmcnt(0)", "s_cmp_eq_u32 s%d, 8" % sI0, "s_cbranch_scc1 A_sh3")
    A("%s %s, %s, %s, 0" % (MF, v(S0, 16), v(K0, 4), v(Q0, 4)))
    M("s_sub_u32 s%d, 7, s%d" % (sCnt, sI0), "s_nop 9", "s_cmp_eq_u32 s%d, 7" % sI0, "s_cbranch_scc1 A_b7", "s_branch A_mid")
    A.label("A_sh3")
    A("%s %s, %s, %s, %s" % (MF, v(S0, 16), v(K0, 4), v(Q0, 4), v(MD, 16)))
    M("s_nop 11", "s_branch A_b8")
    A.label("A_fb")
    for h in range(2):
        Qh, O, Vr = (Q0, O0, V0) if h == 0 else (Q1, O1, V1)
        vM = 44
        for pas in range(2):
            Lp = "A_fb%d%d" % (h, pas)
            M("v_mov_b32 v%d, v12" % vKA, "v_mov_b32 v%d, v13" % vVA, "s_mov_b32 s%d, s%d" % (sCnt, sI0))
            if pas == 0: A("v_mov_b32 v%d, 0xff800000" % vM)
            else:
                for i in range(16): A("v_mov_b32 v%d, 0" % (O + i))
            A.label(Lp)
            A("ds_read_b128 %s, v%d offset:%d" % (v(K0, 4), vKA, h * 12288))
            if pas == 1: rdV(h, 0)
            M("s_waitcnt lgkmcnt(0)", "s_cmp_eq_u32 s%d, 0" % sCnt, "s_cbranch_scc1 %s_e" % Lp, "s_cmp_eq_u32 s%d, 8" % sCnt, "s_cbranch_scc1 %s_d" % Lp)
            M("%s %s, %s, %s, 0" % (MF, v(S0, 16), v(K0, 4), v(Qh, 4)), "s_branch %s_j" % Lp)
            A.label(Lp + "_e"); M("%s %s, %s, %s, %s" % (MF, v(S0, 16), v(K0, 4), v(Qh, 4), v(ME, 16)), "s_branch %s_j" % Lp)
            A.label(Lp + "_d"); A("%s %s, %s, %s, %s" % (MF, v(S0, 16), v(K0, 4), v(Qh, 4), v(MD, 16)))
            A.label(Lp + "_j")
            A("s_nop 15")
            if pas == 0:
                for i in range(16): A("v_max_f32 v%d, v%d, v%d" % (vM, vM, S0 + i))
            else:
                for i in range(16): A("v_sub_f32 v%d, v%d, v%d" % (S0 + i, S0 + i, vM))
                for i in range(16): ex_(S0 + i)
                for i in range(8): cv(P + i, S0 + 2 * i)
                A("%s %s, %s, %s, %s" % (MF, v(O, 16), v(Vr, 4), v(P, 4), v(O, 16)))
                A("%s %s, %s, %s, %s" % (MF, v(O, 16), v(Vr + 4, 4), v(P + 4, 4), v(O, 16)))
            M("v_add_u32 v%d, 1024, v%d" % (vKA, vKA), "v_add_u32 v%d, 2048, v%d" % (vVA, vVA),
              "s_add_u32 s%d, s%d, 1" % (sCnt, sCnt), "s_cmp_le_u32 s%d, 8" % sCnt, "s_cbranch_scc1 %s" % Lp)
            if pas == 0: M("v_mov_b32 v45, v%d" % vM, "v_permlane32_swap_b32 v%d, v45" % vM, "v_max_f32 v%d, v%d, v45" % (vM, vM))
    A("s_nop 15")
    M("v_rcp_f32 v40, v%d" % (O0 + 8), "v_rcp_f32 v41, v%d" % O1)
    M("s_nop 4", "s_branch A_fin2")
    A.label("L_end")
    A("s_endpgm")
    return A

def build():
    kn = NAME + "_kernel"
    lines = hazard.fix(gen().lines, True)
    t = "; generated by gen/v12.py\n; @launch grid=(256,1,1) block=(256,1,1) lds=163840\n"
    t += '.amdgcn_target "amdgcn-amd-amdhsa--gfx950"\n'
    t += kernel_header(kn) + "\n".join(lines) + "\n"
    t += kernel_desc(kn, 512, 102, 256)
    import subprocess, re
    open("_p1.s", "w").write(re.sub(r"OFF_L_\w+", "0x12345", t.replace("CODE_SPAN", "0x12345")))
    subprocess.run(["clang", "-x", "assembler", "-target", "amdgcn-amd-amdhsa", "-mcpu=gfx950", "-c", "_p1.s", "-o", "_p1.o"], check=True)
    h = subprocess.run(["llvm-objdump", "-h", "_p1.o"], capture_output=True, text=True).stdout
    size = int(re.search(r"\.text\s+([0-9a-f]+)", h).group(1), 16)
    syms = {}
    for ln in subprocess.run(["llvm-objdump", "-t", "_p1.o"], capture_output=True, text=True).stdout.splitlines():
        p = ln.split()
        if len(p) >= 5 and p[-1].startswith("L_"): syms[p[-1]] = int(p[0], 16)
    if "L_pc" in syms:
        for nm in set(re.findall(r"OFF_(L_\w+)", t)): t = t.replace("OFF_" + nm, "0x%x" % ((syms[nm] - syms["L_pc"]) | 0x10000000 & 0))
    print("code bytes:", size)
    t = t.replace("CODE_SPAN", "0x%x" % (size - 256))
    if OPT["stamp"]: t += "; STAMPS " + " ".join(NAMES[i] for i in sorted(NAMES)) + "\n"
    return t

if __name__ == "__main__":
    args = [x for x in sys.argv[1:] if not x.startswith("--")]
    for x in sys.argv[1:]:
        if x.startswith("--"):
            k, _, val = x[2:].partition("=")
            OPT[k] = (val if "," in val else int(val)) if val else True
    out = args[0] if args else "cdna_kernels/%s.s" % NAME
    open(out, "w").write(build())
```

```python
import sys, struct
from asmlib import *
import hazard

NAME = "parallel_sum__sliding_block__swiglu_ffn__prompt"
A2F = 0
B2T = 0xA00000
QF = 0x900000
KF = QF + 0x200000
VF = QF + 0x400000
STAMP_OFF = 0x1600000
FLG = 0xF00000
FK = FLG + 0x1000; FQ = FK + 512; FH = FLG + 0x50000; FO = FLG + 0x70000; FE = FLG + 0x90000; EOFF = FLG + 0xB0000
WS_BYTES = 0x1700000
LOG2E = 1.4426950408889634
MF = "v_mfma_f32_32x32x16_bf16"
OPT = dict(stamp=False, fine=False, pf_code=True, rot=2, d2=7, rot2=True, fb_force=False, touch=False,
           pro_first=8, budget=16, bulk=1, s0first=4, xahead=8, kvst=9, early=True, rmap=True, pubh=1, wopf=-1, bulkb=3, xpf=0, plan=0, t0=0, t1=0, lndma=1, pubo=5, elate=1, odelay=5, s0swap=1, wsoff=0, b2ord=0, atouch=0, ptouch=0, satom=0, rot5=1, qloc=1, xrearly=1, noat=1)
NAMES = {}

def f32(x):
    return "0x%08x" % struct.unpack("<I", struct.pack("<f", x))[0]

class Track:
    def __init__(self, A, name, maxn):
        self.A = A; self.ops = []; self.done = -1; self.name = name; self.maxn = maxn; self.hook = None; self.pre = None
        self.alt = None
        self.base = 0
    def issue(self, text, tag):
        self.A(text); self.ops.append(tag)
    @staticmethod
    def _after(ops, idx): return sum(1 for t in ops[idx + 1:] if not t.startswith("?"))
    def _paths(self):
        ps = [(self.ops, self.done)]
        if self.alt: ps.append((self.alt[0] + self.ops[self.base:], self.alt[1]))
        return ps
    def wait(self, tag):
        need = []
        for ops, done in self._paths():
            idx = [i for i, t in enumerate(ops) if t == tag]
            if idx and idx[-1] > done: need.append((ops, idx[-1]))
        assert any(tag in ops for ops, _ in self._paths()), tag
        if not need: return
        if self.pre: self.pre()
        n = min(min(self._after(ops, idx) for ops, idx in need), self.maxn)
        nd = []
        for ops, done in self._paths():
            d = done
            for i in range(len(ops)):
                if self._after(ops, i) >= n and i > d: d = i
            nd.append(d)
        self.done = nd[0]
        if self.alt: self.alt = (self.alt[0], nd[1])
        if self.hook: self.hook("<" + tag)
        self.A("s_waitcnt %s(%d)" % (self.name, n))
        if self.hook: self.hook(tag + ">")
    def merge(self, st):
        self.alt = (list(st[0]), st[1]); self.base = len(self.ops)
    def mark_all(self):
        self.done = len(self.ops) - 1
        if self.alt: self.alt = (self.alt[0], len(self.alt[0]) + len(self.ops) - self.base - 1)
    def save(self): return (list(self.ops), self.done, self.alt, self.base)
    def load(self, st): self.ops = list(st[0]); self.done = st[1]; self.alt = st[2]; self.base = st[3]

def gen():
    A = Asm(); vm = Track(A, "vmcnt", 63); lg = Track(A, "lgkmcnt", 15)
    SC = " sc1"
    def srd(d, lo, nbytes):
        A("s_mov_b32 s%d, s%d" % (d, lo)); A("s_mov_b32 s%d, s%d" % (d + 1, lo + 1))
        A("s_mov_b32 s%d, 0x%x" % (d + 2, nbytes)); A("s_mov_b32 s%d, 0x20000" % (d + 3))
    held = []
    def flush_held():
        A.lines.extend(held); del held[:]
    vm.pre = flush_held
    def run_hold(f):
        flush_held()
        n0 = len(A.lines)
        f()
        if len(A.lines) > n0 and A.lines[-1].strip().startswith(("buffer_load", "buffer_store")) and not (len(A.lines) - n0 >= 2 and A.lines[-2].strip().startswith(("buffer_", "s_waitcnt vmcnt"))):
            held.append(A.lines.pop())
    def M(*lines):
        for l in lines: A(l)
    sXS, sWQ, sGU, sWS, sDBG, sOUT, sDN, sWO = 8, 12, 16, 20, 44, 52, 56, 80
    sW, sRB, sIQ, sP, sBLK, sTy, sROT = 24, 25, 26, 27, 28, 29, 30
    sR, sC2, sLW, sTmp, sIdx = 31, 32, 33, 34, 35
    sKVb, sQb, sGa, sGb, sG1 = 36, 37, 38, 39, 40
    sHa, sHb, sH1 = 41, 42, 43
    sMsk, sFl = 50, 51
    sSt = 60
    sKq, sKg, sK2 = 64, 68, 72
    sBd, sPk0, sBo, sStg, sPk1 = 74, 75, 99, 48, 49
    sBg = 76
    sE0, sE1 = 64, 66
    sCnt, sI0, sMask = 84, 85, 86
    sAd, sAo = 88, 90
    sXo, sSpin, sOne = 92, 93, 98
    sPtr = 64
    vLane, vL16, vL8, vTag = 1, 2, 3, 4
    vRA = [6, 7]; vRB = [9, 10]; vRP = [12, 13]; vBA, vBB = 8, 11; vL16b = 15
    vD1 = [16, 17, 18, 19]; vD2 = [20, 21, 22, 23]
    vF, vRet, vXo, vPF, vFo = 24, 26, 27, 28, 29
    vRs, vSd = 0, 61
    vC1, vS2, vQs = 28, 29, 30
    CM, DT, AI = 24, 40, 184
    T = 32
    vDB = [56, 57, 58, 59]
    vX = [56, 57, 58, 59]; vBT = 60; vXR = 44; vSt = 48
    ACA, ACB = 64, 128
    def Xr(s_): return v(192 + 4 * s_, 4) if s_ < 16 else a(192 + 4 * (s_ - 16), 4)
    def Xraw(s_): return 192 + 4 * s_ if s_ < 16 else 128 + 4 * (s_ - 16)
    nst = [0]
    def stamp(name, fine=False):
        if not OPT["stamp"] or (fine and not OPT["fine"]): return
        NAMES.setdefault(nst[0], name)
        if NAMES[nst[0]].split("|")[0] != name: NAMES[nst[0]] = NAMES[nst[0]].split("|")[0] + "|" + name
        M("s_memtime s[94:95]", "s_waitcnt lgkmcnt(0)"); lg.mark_all()
        A("v_writelane_b32 v63, s94, %d" % nst[0]); nst[0] += 1
    def stamp_flush():
        if not OPT["stamp"]: return
        A("s_waitcnt vmcnt(0)"); stamp("end")
        M("s_memrealtime s[94:95]", "s_waitcnt lgkmcnt(0)", "v_writelane_b32 v63, s94, 63", "v_writelane_b32 v63, s96, 62")
        M("s_lshl_b32 s3, s2, 2", "s_add_u32 s3, s3, s%d" % sW, "s_lshl_b32 s3, s3, 8", "s_add_u32 s3, s3, 0x%x" % STAMP_OFF)
        A("v_lshlrev_b32 v62, 2, v%d" % vLane)
        A("buffer_store_dword v63, v62, s[%d:%d], s3 offen" % (sWS, sWS + 3))
        if OPT.get("dbgout"):
            M("s_not_b32 s3, s96", "v_mov_b32 v60, s3", "v_mov_b32 v61, s94", "v_readlane_b32 s4, v63, 0", "s_nop 4", "v_subrev_u32 v63, s4, v63", "v_add_u32 v62, 8, v62", "s_mov_b64 exec, 1")
            A("buffer_atomic_umax v60, off, s[%d:%d], 0 offset:4" % (sDBG, sDBG + 3))
            A("buffer_atomic_umax v61, off, s[%d:%d], 0 offset:8" % (sDBG, sDBG + 3))
            A("s_mov_b64 exec, 0x3ffe")
            A("buffer_atomic_umax v63, v62, s[%d:%d], 0 offen" % (sDBG, sDBG + 3))

    M("s_cmp_ge_u32 s2, 256", "s_cbranch_scc1 L_end")
    M("s_load_dwordx4 s[4:7], s[0:1], 0", "s_load_dwordx2 s[48:49], s[0:1], 72", "s_load_dwordx4 s[64:67], s[0:1], 32",
      "s_load_dwordx4 s[68:71], s[0:1], 48", "s_load_dwordx2 s[72:73], s[0:1], 16", "s_load_dwordx2 s[74:75], s[0:1], 64")
    sPC = 46
    if OPT["pf_code"]:
        M("s_getpc_b64 s[100:101]")
        A.label("L_pc")
        M("v_and_b32 v%d, 63, v0" % vLane, "s_lshr_b32 s3, s2, 3", "s_lshl_b32 s3, s3, 11", "s_sub_u32 s3, s3, 6144", "v_lshlrev_b32 v6, 7, v%d" % vLane,
          "v_cmp_lt_u32 vcc, 47, v%d" % vLane, "v_mov_b32 v7, s3", "v_mov_b32 v9, s101", "v_cndmask_b32 v7, 0, v7, vcc", "v_add_u32 v6, v6, v7",
          "v_min_u32 v6, CODE_SPAN, v6", "v_add_co_u32 v8, vcc, s100, v6", "v_addc_co_u32 v9, vcc, 0, v9, vcc", "v_cmp_gt_u32 vcc, 64, v0", "s_and_saveexec_b64 s[88:89], vcc",
          "s_cbranch_execz L_pf0")
        A("global_load_dword v%d, v[8:9], off" % vXo)
        A.label("L_pf0")
        A("s_mov_b64 exec, -1")
        vm.ops.append("?pfc")
    if OPT["stamp"]:
        M("s_memrealtime s[96:97]", "v_mov_b32 v63, 0"); stamp("t0")
    M("v_lshrrev_b32 v3, 6, v0", "v_and_b32 v%d, 63, v0" % vLane, "v_readfirstlane_b32 s%d, v3" % sW)
    if OPT.get("badmap"): M("s_lshr_b32 s3, s2, 5", "s_and_b32 s%d, s2, 31" % sIdx)
    else: M("s_and_b32 s3, s2, 7", "s_lshr_b32 s%d, s2, 3" % sIdx)
    M("s_and_b32 s%d, s3, 1" % sRB, "s_lshl_b32 s%d, s%d, 3" % (sRB, sRB), "s_and_b32 s%d, s%d, 7" % (sTmp, sIdx), "s_add_u32 s%d, s%d, s%d" % (sRB, sRB, sTmp))
    A("s_lshr_b32 s%d, s%d, 3" % (sTy, sIdx))
    if OPT["rot"] == 2: M("s_add_u32 s%d, s%d, s%d" % (sROT, sRB, sTy), "s_and_b32 s%d, s%d, 3" % (sROT, sROT))
    elif OPT["rot"]: A("s_and_b32 s%d, s%d, 3" % (sROT, sRB))
    else: A("s_mov_b32 s%d, 0" % sROT)
    M("s_lshl_b32 s%d, s%d, 2" % (sBLK, sRB), "s_add_u32 s%d, s%d, s%d" % (sBLK, sBLK, sW))
    M("v_lshrrev_b32 v6, 3, v%d" % vLane, "v_and_b32 v7, 7, v%d" % vLane, "v_lshrrev_b32 v8, 4, v%d" % vLane,
      "v_xor_b32 v7, v7, v8", "v_lshlrev_b32 v7, 4, v7", "v_lshl_add_u32 v%d, v6, 10, v7" % vX[0],
      "v_xor_b32 v%d, 64, v%d" % (vX[1], vX[0]), "v_add_u32 v%d, 7168, v%d" % (vX[1], vX[1]),
      "v_add_u32 v%d, 14336, v%d" % (vX[2], vX[0]), "v_add_u32 v%d, 14336, v%d" % (vX[3], vX[1]))
    sXrow, sXlds, sXrot = 76, 77, 78
    M("s_lshl_b32 s%d, s%d, 15" % (sXrow, sBLK), "s_lshl_b32 s%d, s%d, 15" % (sXlds, sW), "s_add_u32 s%d, s%d, 32768" % (sXlds, sXlds),
      "s_lshl_b32 s%d, s%d, 8" % (sXrot, sROT), "s_waitcnt lgkmcnt(0)")
    srd(sXS, 4, 2048 * 1024)
    xl = []
    for c in range(8):
        for rq in range(4):
            def f(c=c, rq=rq):
                if rq == 0:
                    M("s_add_u32 m0, s%d, %d" % (sXlds, c * 4096), "s_add_u32 s79, s%d, %d" % (sXrot, c * 128), "s_and_b32 s79, s79, 1023", "s_add_u32 s79, s79, s%d" % sXrow)
                vm.issue("buffer_load_dwordx4 v%d, s[%d:%d], s79 offen offset:%d lds" % (vX[rq], sXS, sXS + 3, rq * 1024), "x%d" % c)
            xl.append(f)
    if OPT.get("xst"): stamp("pre")
    for _ in range(OPT["pro_first"]): xl.pop(0)()
    if OPT["ptouch"]:
        for i in range(8):
            M("s_mov_b32 s86, 0x%x" % (i * 0x200000 + (0x100000 if i == 7 else 0)), "s_load_dword s87, s[48:49], s86")
        M("s_load_dword s87, s[70:71], 0", "s_mov_b32 s86, 0x1ffffc", "s_load_dword s87, s[70:71], s86", "s_load_dword s87, s[68:69], 0", "s_load_dword s87, s[72:73], 0",
          "s_load_dword s87, s[74:75], 0", "s_load_dword s87, s[6:7], 0", "s_load_dword s87, s[64:65], 0", "s_load_dword s87, s[66:67], 0")
    for e in range(OPT["xpf"]):
        M("s_lshl_b32 s79, s%d, 7" % sTy, "s_add_u32 s79, s79, s%d" % sXrot, "s_add_u32 s79, s79, %d" % ((OPT["pro_first"] // 4 + 4 * e) * 128), "s_and_b32 s79, s79, 1023", "s_add_u32 s79, s79, s%d" % sXrow)
        for rq in range(4): vm.issue("buffer_load_dword v60, v%d, s[%d:%d], s79 offen offset:%d" % (vX[rq], sXS, sXS + 3, rq * 1024), "xpf")
    if OPT.get("xst"): stamp("iss")

    SB = []
    def blk(f): SB.append(f); return f
    @blk
    def _():
        if OPT["wsoff"]: M("s_add_u32 s48, s48, 0x%x" % (OPT["wsoff"] << 20), "s_addc_u32 s49, s49, 0")
        srd(sWQ, 6, 512 * 3072); srd(sWS, 48, WS_BYTES)
        M("s_lshr_b32 s%d, s3, 1" % sP, "s_lshl_b32 s%d, s%d, 1" % (sIQ, sP), "s_lshl_b32 s%d, s%d, 2" % (sP, sP), "s_add_u32 s%d, s%d, s%d" % (sP, sP, sTy),
          "s_and_b32 s4, s%d, 1" % sTy, "s_add_u32 s%d, s%d, s4" % (sIQ, sIQ), "s_lshr_b32 s%d, s%d, 1" % (sTy, sTy),
          *(("s_lshl_b32 s%d, s%d, 1" % (sP, sIQ), "s_add_u32 s%d, s%d, s%d" % (sP, sP, sTy)) if OPT["qloc"] else ()),
          "s_and_b32 s4, s3, 1", "s_lshl_b32 s4, s4, 4", "s_lshr_b32 s%d, s3, 1" % sR, "s_lshl_b32 s%d, s%d, 2" % (sR, sR), "s_add_u32 s%d, s%d, s4" % (sR, sR),
          "s_and_b32 s4, s%d, 3" % sIdx, "s_add_u32 s%d, s%d, s4" % (sR, sR), "s_lshr_b32 s%d, s%d, 2" % (sC2, sIdx))
    @blk
    def _():
        M("s_cmp_ge_u32 s%d, 2" % sW, "s_cselect_b32 s%d, s66, s64" % sGU, "s_cselect_b32 s%d, s67, s65" % (sGU + 1),
          "s_mov_b32 s%d, %d" % (sGU + 2, 512 * 3584), "s_mov_b32 s%d, 0x20000" % (sGU + 3))
        srd(sDN, 68, 1792 * 1024); srd(sWO, 72, 512 * 1024)
        srd(sOUT, 70, 2048 * 1024); srd(sDBG, 74, 256)
    @blk
    def _():
        M("s_and_b32 s5, s%d, 1" % sW, "s_lshr_b32 s6, s%d, 1" % sW, "s_lshl_b32 s7, s%d, 7" % sIQ)
        M("s_mul_i32 s3, s%d, 320" % sIQ, "s_add_u32 s3, s3, 1024", "s_and_b32 s4, s%d, 1" % sIQ, "s_lshl_b32 s4, s4, 6", "s_add_u32 s%d, s3, s4" % sHa,
          "s_add_u32 s%d, s%d, 128" % (sHb, sHa), "s_lshl_b32 s4, s4, 2", "s_sub_u32 s4, 256, s4", "s_add_u32 s%d, s3, s4" % sH1,
          "s_cmp_eq_u32 s%d, 0" % sTy, "s_cselect_b32 s%d, s7, s%d" % (sHa, sHa))
        for t in range(4):
            M("s_add_u32 s4, s%d, %d" % (sROT, t), "s_and_b32 s4, s4, 3", "s_mul_i32 s%d, s4, %d" % (sKq + t, 128 * 3072), "s_mul_i32 s%d, s4, %d" % (sKg + t, 128 * 3584))
    @blk
    def _():
        M("s_mul_i32 s%d, s5, %d" % (sQb, 64 * 3072), "s_add_u32 s%d, s%d, s7" % (sQb, sQb),
          "s_lshl_b32 s3, s6, 10", "s_add_u32 s%d, s%d, s3" % (sKVb, sQb), "s_add_u32 s%d, s%d, 1024" % (sKVb, sKVb),
          "s_mul_i32 s3, s5, %d" % (64 * 3584), "s_add_u32 s%d, s3, s%d" % (sGa, sHa), "s_add_u32 s%d, s3, s%d" % (sGb, sHb), "s_mov_b32 s%d, s%d" % (sG1, sH1))
    @blk
    def _():
        A("s_mov_b32 s4, 0x%x" % EOFF)
        vm.issue("buffer_load_dwordx2 %s, off, s[%d:%d], s4 sc1" % (v(vTag, 2), sWS, sWS + 3), "ep")
    @blk
    def _():
        M("v_and_b32 v40, 31, v%d" % vLane, "v_lshrrev_b32 v41, 5, v%d" % vLane, "v_bfe_u32 v42, v40, 1, 3", "v_xor_b32 v42, v42, v41",
          "v_lshlrev_b32 v42, 4, v42", "v_lshl_add_u32 v42, v40, 7, v42", "v_add_u32 v%d, s%d, v42" % (vXR, sXlds))
        for b in range(1, 4): A("v_xor_b32 v%d, %d, v%d" % (vXR + b, b << 5, vXR))
    @blk
    def _():
        for i in range(8): A("v_mov_b32 v%d, 0" % (vSt + i))
        M("s_mov_b32 s%d, 0x3f803f80" % sOne, "s_mov_b32 s%d, 0xffff0000" % sMsk, "s_lshl_b32 s%d, s%d, 13" % (sLW, sW))
    @blk
    def _():
        M("v_lshrrev_b32 v40, 3, v%d" % vLane, "v_and_b32 v41, 7, v%d" % vLane, "v_bfe_u32 v42, v%d, 4, 1" % vLane, "v_lshlrev_b32 v42, 2, v42",
          "v_xor_b32 v41, v41, v42", "v_lshlrev_b32 v41, 4, v41", "v_mul_u32_u24 v42, 3584, v40", "v_add_u32 v%d, v42, v41" % vD2[0],
          "v_mul_u32_u24 v42, 3072, v40", "v_add_u32 v43, v42, v41", "v_lshl_add_u32 v61, v40, 10, v41")
    @blk
    def _():
        M("v_lshrrev_b32 v40, 2, v%d" % vLane, "v_and_b32 v41, 3, v%d" % vLane, "v_lshlrev_b32 v41, 4, v41", "v_mul_u32_u24 v42, 3584, v40", "v_add_u32 v42, v42, v41",
          "s_cmp_eq_u32 s%d, 0" % sTy, "s_cselect_b64 vcc, -1, 0", "s_mov_b32 s4, %d" % (8 * 3072 - 1024), "s_cselect_b32 s4, s4, %d" % (16 * 3584 - 1024),
          "v_cndmask_b32 v%d, v42, v43, vcc" % vD1[0])
        for j in range(1, 4):
            M("v_add_u32 v%d, s4, v%d" % (vD1[j], vD1[j - 1]), "v_add_u32 v%d, %d, v%d" % (vD2[j], j * (8 * 3584 - 1024), vD2[0]))
    NCRIT = len(SB)
    @blk
    def _():
        M("v_lshlrev_b32 v%d, 4, v%d" % (vL16, vLane), "v_lshlrev_b32 v%d, 3, v%d" % (vL8, vLane), "s_nop 0")
        M("s_cmp_eq_u32 s%d, 0" % sTy, "s_cselect_b32 s3, s6, s5", "s_mov_b32 s7, %d" % (128 * 3072), "s_cselect_b32 s7, s7, %d" % (128 * 3584), "s_add_u32 s3, s3, s%d" % sROT)
        for t in range(2): M("s_add_u32 s4, s3, %d" % (2 * t), "s_and_b32 s4, s4, 3", "s_mul_i32 s%d, s4, s7" % (sK2 + t))
    @blk
    def _():
        M("v_lshrrev_b32 v40, 5, v%d" % vLane, "v_bfe_u32 v41, v%d, 2, 2" % vLane, "v_lshl_add_u32 v42, v40, 3, v41", "v_lshl_add_u32 v39, v40, 2, v41",
          "v_bfe_u32 v43, v%d, 4, 1" % vLane, "v_lshlrev_b32 v43, 5, v43", "v_and_b32 v38, 3, v%d" % vLane, "v_lshl_add_u32 v43, v38, 3, v43",
          "v_lshl_add_u32 v%d, v39, 6, v43" % vRP[0])
    @blk
    def _():
        M("v_bfe_u32 v38, v41, 1, 1", "v_lshl_add_u32 v43, v38, 6, v43", "v_lshl_add_u32 v%d, v39, 7, v43" % vRA[0], "v_xor_b32 v%d, 64, v%d" % (vRB[0], vRA[0]))
        for R in (vRA, vRB, vRP): A("v_add_u32 v%d, 0x10000, v%d" % (R[1], R[0]))
        M("s_add_u32 s%d, s%d, 131072" % (sStg, sLW), "v_lshl_add_u32 v%d, v39, 7, v43" % vBA, "v_add_u32 v%d, s%d, v%d" % (vBA, sStg, vBA), "v_xor_b32 v%d, 64, v%d" % (vBB, vBA))
    @blk
    def _():
        A("s_mul_i32 s3, s%d, %d" % (sBLK, 144 * 1024))
        for sr in (sHa, sHb, sH1): M("s_lshl_b32 s%d, s%d, 5" % (sr, sr), "s_add_u32 s%d, s%d, s3" % (sr, sr))
        M("s_lshl_b32 s%d, s%d, 7" % (sBd, sC2), "s_lshl_b32 s%d, s%d, 17" % (sBo, sW), "s_add_u32 s%d, s%d, s%d" % (sBo, sBo, sBd))
    @blk
    def _():
        if not OPT["rot5"]:
            M("s_add_u32 s3, s%d, s%d" % (sC2, sR), "s_and_b32 s4, s3, 1", "s_mul_i32 s4, s4, 12", "s_mul_i32 s7, s%d, 20" % sW, "s_add_u32 s7, s7, 32",
              "s_add_u32 s%d, s7, s4" % sPk0, "s_sub_u32 s4, 12, s4", "s_add_u32 s4, s4, s7", "s_lshl_b32 s4, s4, 8", "s_or_b32 s%d, s%d, s4" % (sPk0, sPk0),
              "s_mul_i32 s%d, s%d, 0x10001" % (sPk0, sPk0), "s_add_u32 s%d, s%d, 0x04040000" % (sPk0, sPk0))
            M("s_mul_i32 s4, s3, 171", "s_lshr_b32 s4, s4, 9", "s_mul_i32 s4, s4, 3", "s_sub_u32 s3, s3, s4", "s_lshl_b32 s3, s3, 3",
              "s_add_u32 s7, s7, 8", "s_lshl_b32 s7, s7, 16", "s_mul_i32 s4, s%d, 0x808" % sW, "s_add_u32 s4, s4, 0x400", "s_or_b32 s7, s7, s4",
              "s_lshr_b32 s4, s7, s3", "s_sub_u32 s3, 24, s3", "s_lshl_b32 s7, s7, s3", "s_or_b32 s%d, s4, s7" % sPk1)
        else:
            M("s_add_u32 s3, s%d, s%d" % (sC2, sR), "s_and_b32 s4, s3, 1", "s_mul_i32 s4, s4, 12", "s_mul_i32 s7, s%d, 20" % sW, "s_add_u32 s7, s7, 32",
              "s_add_u32 s%d, s7, s4" % sPk0, "s_sub_u32 s4, 12, s4", "s_add_u32 s4, s4, s7", "s_lshl_b32 s4, s4, 8", "s_or_b32 s%d, s%d, s4" % (sPk0, sPk0),
              "s_mul_i32 s88, s7, 0x101", "s_add_u32 s88, s88, 0x1004", "s_mul_i32 s4, s%d, 0x808" % sW, "s_add_u32 s4, s4, 0x400", "s_lshl_b32 s4, s4, 16", "s_or_b32 s88, s88, s4",
              "s_add_u32 s89, s7, 8",
              "s_mul_i32 s4, s3, 205", "s_lshr_b32 s4, s4, 10", "s_mul_i32 s4, s4, 5", "s_sub_u32 s3, s3, s4", "s_lshl_b32 s3, s3, 3",
              "s_lshr_b64 s[90:91], s[88:89], s3", "s_sub_u32 s3, 40, s3", "s_lshl_b64 s[88:89], s[88:89], s3", "s_or_b64 s[88:89], s[88:89], s[90:91]",
              "s_lshl_b32 s4, s88, 16", "s_or_b32 s%d, s%d, s4" % (sPk0, sPk0), "s_lshr_b64 s[88:89], s[88:89], 16", "s_mov_b32 s%d, s88" % sPk1)
    @blk
    def _():
        M("v_and_b32 v32, 31, v%d" % vLane, "v_lshrrev_b32 v33, 5, v%d" % vLane, "v_lshlrev_b32 v33, 3, v33", "v_sub_u32 v32, v32, v33",
          "v_and_b32 v33, 1, v32", "v_lshlrev_b32 v33, 4, v33", "v_mov_b32 v34, 0x3f80", "v_lshlrev_b32 v33, v33, v34", "v_ashrrev_i32 v32, 1, v32")
        for j in range(8):
            jj = j if j < 4 else j + 4
            M("v_cmp_eq_u32 s[%d:%d], %d, v32" % (88 + 2 * (j % 2), 89 + 2 * (j % 2), jj))
            if j: M("v_cndmask_b32 v34, 0, v33, s[%d:%d]" % (88 + 2 * ((j - 1) % 2), 89 + 2 * ((j - 1) % 2)), "v_accvgpr_write_b32 a%d, v34" % (AI + j - 1))
        M("s_nop 0", "v_cndmask_b32 v34, 0, v33, s[90:91]", "v_accvgpr_write_b32 a%d, v34" % (AI + 7))
    def grp_base(dst, g):
        A("s_bfe_u32 s%d, s%d, 0x%x" % (dst, sPk0 if g < 4 else sPk1, (8 << 16) | (8 * (g % 4))))
    order = [0, 1, 2, 3, 6, 7, 8]
    for i in order: SB[i]()
    late = [f for i, f in enumerate(SB) if i not in order]

    def dma_stage(kind, t, slot, tag, mixed=False):
        res = []
        for i in range(8):
            grp, j = i // 4, i % 4
            def f(grp=grp, j=j):
                if kind == "KV": base, sk, add, srd_, vd = sKVb, sKq + t, 32 * 3072, sWQ, vD1
                elif kind == "Q": base, sk, add, srd_, vd = sQb, sK2 + t, 32 * 3072, sWQ, vD1
                elif kind == "Pa": base, sk, add, srd_, vd = sGa, sKg + t, 32 * 3584, sGU, vD2
                elif kind == "Pb": base, sk, add, srd_, vd = sGb, sKg + t, 32 * 3584, sGU, vD2
                elif kind == "P1": base, sk, add, srd_, vd = sG1, sK2 + t, 64 * 3584, sGU, vD1
                if tag == "s0" and OPT["s0swap"]:
                    if j == 0:
                        M("s_lshr_b32 s90, s%d, 2" % sRB, "s_and_b32 s90, s90, 1", "s_xor_b32 s90, s90, %d" % grp, "s_lshl_b32 s91, s90, 12", "s_add_u32 m0, s%d, s91" % sLW,
                          "s_mul_i32 s90, s90, %d" % add, "s_add_u32 s%d, s%d, s%d" % (sTmp, base, sk), "s_add_u32 s%d, s%d, s90" % (sTmp, sTmp))
                elif j == 0 or mixed:
                    A("s_add_u32 m0, s%d, %d" % (sLW, slot * 32768 + grp * 4096))
                if j == 0 and not (tag == "s0" and OPT["s0swap"]):
                    if grp == 0: A("s_add_u32 s%d, s%d, s%d" % (sTmp, base, sk))
                    else: A("s_add_u32 s%d, s%d, %d" % (sTmp, sTmp, add))
                vm.issue("buffer_load_dwordx4 v%d, s[%d:%d], s%d offen offset:%d lds" % (vd[j], srd_, srd_ + 3, sTmp, j * 1024), tag)
            res.append(f)
        return res

    def touch(kind, t):
        base, sk, srd_, st = {"KV": (sKVb, sKq + t, sWQ, 3072), "Q": (sQb, sK2 + t, sWQ, 3072), "Pa": (sGa, sKg + t, sGU, 3584),
                              "Pb": (sGb, sKg + t, sGU, 3584), "P1": (sG1, sK2 + t, sGU, 3584)}[kind]
        def f():
            M("v_mul_u32_u24 v57, %d, v%d" % (st, vLane), "s_add_u32 s4, s%d, s%d" % (base, sk))
            vm.issue("buffer_load_dword v60, v57, s[%d:%d], s4 offen" % (srd_, srd_ + 3), "tch")
            if kind == "P1":
                A("s_add_u32 s4, s4, %d" % (64 * 3584))
                vm.issue("buffer_load_dword v60, v57, s[%d:%d], s4 offen" % (srd_, srd_ + 3), "tch")
        return f
    def quad(kind, t, slot, q):
        res = []
        sb = slot * 32768; bi = sb // 65536; so = sb % 65536
        for j in range(4):
            if kind in ("KV", "Pa", "Pb"):
                res.append((j, 8 * t + q, (vRA if j % 2 == 0 else vRB)[bi], so + (j >> 1) * 16384 + q * 2048, 1024))
            elif kind == "Q":
                kk = 2 * q + (j >> 1)
                res.append((j & 1, 16 * t + kk, (vRA if j % 2 == 0 else vRB)[bi], so + kk * 2048, 1024))
            else:
                kk = 2 * q + (j >> 1)
                res.append((j & 1, 16 * t + kk, vRP[bi], so + (j & 1) * 16384 + kk * 1024, 512))
        return res

    def rd(q4, j, buf, tag):
        _, _, ar, off, d2 = q4[j]
        lg.issue("ds_read_b64_tr_b16 %s, v%d offset:%d" % (a(buf * 16 + j * 4, 2), ar, off), tag)
        lg.issue("ds_read_b64_tr_b16 %s, v%d offset:%d" % (a(buf * 16 + j * 4 + 2, 2), ar, off + d2), tag)

    def store(P, soff, off, tag):
        if OPT.get("nostore") and tag != "sto":
            vm.ops.append("?" + tag); vm.ops.append(tag); vm.ops.pop(); vm.ops[-1] = tag if False else vm.ops[-1]
            A("s_nop 0"); vm.ops[-1] = tag; A("buffer_load_dword v28, off, s[%d:%d], 0" % (sWS, sWS + 3)); return
        vm.issue("buffer_store_dwordx4 %s, v%d, s[%d:%d], s%d offen offset:%d%s" % (v(P, 4), vL16, sWS, sWS + 3, soff, off, SC), tag)

    def I(text, cost=4): return (cost, (lambda t=text: A(t)))
    PK = [T + 8, T + 12]
    def st_swiglu(acc, ncf, uoff, sH, tag):
        els = []
        for cf in range(ncf):
            for i in range(16): els.append((acc + cf * 16 + i, acc + uoff + cf * 16 + i))
        N = len(els); out = []
        ta = lambda e: T + (e % 6)
        for e in range(N + 6):
            if 0 <= e - 1 < N: out.append(I("v_exp_f32 v%d, v%d" % (ta(e - 1), ta(e - 1)), 8))
            if e < N: out.append(I("v_mul_f32 v%d, v%d, v%d" % (ta(e), vC1, els[e][0])))
            if 0 <= e - 2 < N: out.append(I("v_fma_f32 v%d, v%d, v%d, v%d" % (ta(e - 2), ta(e - 2), vS2, vS2)))
            if 0 <= e - 3 < N: out.append(I("v_rcp_f32 v%d, v%d" % (ta(e - 3), ta(e - 3)), 8))
            if 0 <= e - 1 < N: out.append(I("v_mul_f32 v%d, v%d, v%d" % (els[e - 1][1], els[e - 1][0], els[e - 1][1])))
            if 0 <= e - 4 < N: out.append(I("v_mul_f32 v%d, v%d, v%d" % (els[e - 4][1], ta(e - 4), els[e - 4][1])))
            k = e - 5
            if 0 <= k < N and k % 2 == 1:
                fr = k // 8
                out.append(I("v_cvt_pk_bf16_f32 v%d, v%d, v%d" % (PK[fr % 2] + (k % 8) // 2, els[k - 1][1], els[k][1])))
                if k % 8 == 7: out.append((-8, (lambda fr=fr: store(PK[fr % 2], sH, fr * 1024, tag))))
        return out
    def st_kv(acc):
        out = [(2, lambda: M("s_lshl_b32 s%d, s%d, 18" % (sSt, sIQ), "s_lshl_b32 s%d, s%d, 10" % (sSt + 1, sBLK),
                             "s_add_u32 s%d, s%d, s%d" % (sSt + 2, sSt, sSt + 1), "s_add_u32 s%d, s%d, s%d" % (sSt, sSt + 2, sSt + 1)))]
        RT = lambda i: (32 + i) if i < 8 else (40 + i)
        out.append(I("v_lshrrev_b32 v27, 5, v%d" % vLane)); out.append(I("v_lshlrev_b32 v27, 4, v27"))
        bps = [(-4, (lambda k=k: lg.issue("ds_bpermute_b32 v%d, v27, v%d offset:%d" % (RT(k), vRs, ((k // 4) * 8 + k % 4) * 4), "rt"))) for k in range(16)]
        n = 0
        for f in (0, 1, 2, 3):
            for hf in range(2):
                r0 = acc + f * 16 + hf * 8; P = PK[n % 2]; n += 1
                if f == 2 and hf == 0: out.append((2, lambda: lg.wait("rt")))
                for i in range(8):
                    out.append(I("v_mul_f32 v%d, v%d, v%d" % (r0 + i, vRs if f < 2 else RT(hf * 8 + i), r0 + i)))
                    if i % 2 == 1 and bps: out.append(bps.pop(0))
                for i in range(4): out.append(I("v_cvt_pk_bf16_f32 v%d, v%d, v%d" % (P + i, r0 + 2 * i, r0 + 2 * i + 1)))
                def g(P=P, f=f, hf=hf):
                    if f < 2:
                        A("s_add_u32 s%d, s%d, 0x%x" % (sSt + 3, sSt + 2, KF + (2 * f + hf) * 65536)); store(P, sSt + 3, 0, "stkv")
                    else:
                        if hf == 0: A("s_add_u32 s%d, s%d, 0x%x" % (sSt + 3, sSt, VF + (f - 2) * 131072))
                        store(P, sSt + 3, hf * 1024, "stkv")
                out.append((-8, g))
        return out
    def st_q(acc):
        out = []; n = 0
        for f in ((1, 0) if OPT["qloc"] else (0, 1)):
            for hf in range(2):
                r0 = acc + f * 16 + hf * 8; P = PK[n % 2]; n += 1
                if OPT["qloc"] and f == 0: P = acc + 16 + 4 * hf
                for i in range(8): out.append(I("v_mul_f32 v%d, v%d, v%d" % (r0 + i, vQs, r0 + i)))
                for i in range(4): out.append(I("v_cvt_pk_bf16_f32 v%d, v%d, v%d" % (P + i, r0 + 2 * i, r0 + 2 * i + 1)))
                def g(P=P, f=f, hf=hf):
                    A("s_add_u32 s%d, s%d, 0x%x" % (sSt + 3, sSt + 2, QF + (2 * f + hf) * 65536)); store(P, sSt + 3, 0, "stq")
                if not (OPT["qloc"] and f == 0): out.append((-8, g))
        return out
    def st_mask():
        out = [I(x) for x in ("v_and_b32 v48, 31, v%d" % vLane, "v_lshrrev_b32 v49, 5, v%d" % vLane, "v_lshlrev_b32 v49, 2, v49", "v_sub_u32 v48, v48, v49", "v_mov_b32 v49, 0xff800000")]
        for rg in range(17):
            if rg < 16: out.append(I("v_cmp_le_i32 s[%d:%d], %d, v48" % (88 + 2 * (rg % 2), 89 + 2 * (rg % 2), (rg // 4) * 8 + rg % 4)))
            else: out.append(I("s_nop 0", 2))
            if rg > 1: out.append(I("v_xor_b32 v%d, v49, v%d" % (160 + rg - 2, 176 + rg - 2)))
            if rg > 0: out.append(I("v_cndmask_b32 v%d, 0, v49, s[%d:%d]" % (176 + rg - 1, 88 + 2 * ((rg - 1) % 2), 89 + 2 * ((rg - 1) % 2))))
        out.append(I("v_xor_b32 v%d, v49, v%d" % (160 + 15, 176 + 15)))
        return out
    def tail_swiglu(acc, ncf, uoff, sH, tag):
        out = []
        bc = " op_sel_hi:[0,1]"
        for fr in range(2 * ncf):
            g0 = acc + fr * 8; u0 = acc + uoff + fr * 8; t0 = 48 if fr % 2 else 32
            for i in range(0, 8, 2): out.append(I("v_pk_mul_f32 %s, %s, %s%s" % (v(t0 + i, 2), v(vC1, 2), v(g0 + i, 2), bc)))
            for i in range(8):
                out.append(I("v_exp_f32 v%d, v%d" % (t0 + i, t0 + i)))
                if i % 2 == 1: out.append(I("v_pk_mul_f32 %s, %s, %s" % (v(u0 + i - 1, 2), v(g0 + i - 1, 2), v(u0 + i - 1, 2))))
            for i in range(0, 8, 2): out.append(I("v_pk_fma_f32 %s, %s, %s, %s op_sel:[0,1,1] op_sel_hi:[1,1,1]" % (v(t0 + i, 2), v(t0 + i, 2), v(vC1, 2), v(vC1, 2))))
            for i in range(8): out.append(I("v_rcp_f32 v%d, v%d" % (t0 + i, t0 + i)))
            for i in range(0, 8, 2): out.append(I("v_pk_mul_f32 %s, %s, %s" % (v(u0 + i, 2), v(t0 + i, 2), v(u0 + i, 2))))
            for i in range(4): out.append(I("v_cvt_pk_bf16_f32 v%d, v%d, v%d" % (PK[fr % 2] + i, u0 + 2 * i, u0 + 2 * i + 1)))
            out.append((-8, (lambda fr=fr: store(PK[fr % 2], sH, fr * 1024, tag))))
        return out
    def ctr_mfma(p, k):
        A("%s %s, %s, %s, %s" % (MF, v(DT, 16), a(AI + 4 * k, 4), v(Xraw(2 * p + k), 4), v(CM, 16) if k == 0 else v(DT, 16)))
    def ctr_cvt(p):
        out = []
        x = Xraw(2 * p)
        for i in range(8): out.append(I("v_cvt_pk_bf16_f32 v%d, v%d, v%d" % (x + i, DT + 2 * i, DT + 2 * i + 1)))
        if p >= 8:
            acc = [I("v_accvgpr_write_b32 a%d, v%d" % (192 + 8 * (p - 8) + i, x + i)) for i in range(8)]
            out = out[:4] + [acc[0], out[4], acc[1], out[5], acc[2], out[6], acc[3], out[7]]
            lagq.extend(acc[4:])
        return out
    lagq = []

    def code_touch(sym, nl):
        def f():
            if not OPT["pf_code"]: return
            L = A.newlabel("L_ct")
            M("s_cmp_lg_u32 s%d, 0" % sW, "s_cbranch_scc1 %s" % L,
              "s_and_b32 s3, s%d, 15" % sIdx, "s_mul_i32 s3, s3, %d" % (nl * 128), "s_add_u32 s3, s3, OFF_%s" % sym,
              "v_lshlrev_b32 v14, 7, v%d" % vLane, "v_add_u32 v14, s3, v14", "v_min_u32 v14, CODE_SPAN, v14", "v_mov_b32 v15, s101",
              "v_add_co_u32 v14, vcc, s100, v14", "v_addc_co_u32 v15, vcc, 0, v15, vcc", "s_mov_b64 exec, %d" % ((1 << nl) - 1))
            A("global_load_dword v60, v[14:15], off")
            A("s_mov_b64 exec, -1")
            A.label(L)
            vm.ops.append("?ct")
        return f
    LANES = {"pk": 0xfff, "pq": 1, "pe": 0xff, "ph": 0xff, "po": 0xff}
    vPo = 31
    def publish(soff):
        A("s_mov_b64 exec, 0xffff")
        vm.issue("buffer_store_dwordx2 %s, v%d, s[%d:%d], s%d offen%s" % (v(vTag, 2), vL8, sWS, sWS + 3, soff, SC), "?flag")
        A("s_mov_b64 exec, -1")
    def poll_issue(voff, soff, tag, vF=vF):
        A("s_mov_b64 exec, 0x%x" % LANES[tag])
        vm.issue("buffer_load_dwordx2 %s, v%d, s[%d:%d], s%d offen sc1" % (v(vF, 2), voff, sWS, sWS + 3, soff), tag)
        A("s_mov_b64 exec, -1")
    def poll_check(voff, soff, tag, vF=vF):
        L = A.newlabel("L_poll"); D = A.newlabel("L_polld")
        chk = ["v_cmp_eq_u64 vcc, %s, %s" % (v(vF, 2), v(vTag, 2)), "s_and_b64 vcc, vcc, s[%d:%d]" % (sMask, sMask + 1),
               "s_cmp_eq_u64 vcc, s[%d:%d]" % (sMask, sMask + 1), "s_cbranch_scc1 %s" % D]
        stamp("pre_" + tag, True)
        vm.wait(tag)
        stamp("vm_" + tag, True)
        M(*chk)
        A("s_mov_b32 s%d, 0x20000" % sSpin)
        A.label(L)
        A("s_mov_b64 exec, 0x%x" % LANES[tag])
        A("buffer_load_dwordx2 %s, v%d, s[%d:%d], s%d offen sc1" % (v(vF, 2), voff, sWS, sWS + 3, soff))
        M("s_mov_b64 exec, -1", "s_waitcnt vmcnt(0)")
        M(*chk)
        M("s_sub_u32 s%d, s%d, 1" % (sSpin, sSpin), "s_cmp_lg_u32 s%d, 0" % sSpin, "s_cbranch_scc1 %s" % L)
        A.label(D)
        stamp("ok_" + tag, True)

    def Breg(p, cf):
        if p < 28: return a(32 + p * 8 + cf * 4, 4)
        return a(((p - 28) % 2) * 8 + cf * 4, 4)
    ORD = [[0, 1, 2, 3, 4, 5, 6, 7, 8, 9, 10, 11, 12, 13], [0, 1, 4, 5, 8, 9, 2, 3, 6, 7, 10, 11, 12, 13]][OPT["b2ord"]]
    def b2_dma(i):
        n = ORD[i]
        res = []
        for j in range(4):
            def f(j=j):
                if j == 0:
                    if i >= 2: lg.wait("b2r%d" % (i - 2))
                    A("s_add_u32 m0, s%d, %d" % (sStg, (i % 2) * 4096))
                    if n % 2 == 0:
                        grp_base(sBg, n // 2)
                        M("s_lshl_b32 s%d, s%d, 14" % (sBg, sBg), "s_add_u32 s%d, s%d, s%d" % (sBg, sBg, sBd))
                    else: A("s_add_u32 s%d, s%d, 32768" % (sBg, sBg))
                vm.issue("buffer_load_dwordx4 v%d, s[%d:%d], s%d offen offset:%d lds" % (vDB[j], sDN, sDN + 3, sBg, j * 1024), "b2d%d" % i)
            res.append(f)
        return res
    def b2_read(i):
        n = ORD[i]
        res = []
        for kk in range(2):
            for cf in range(2):
                for hh in range(2):
                    def f(kk=kk, cf=cf, hh=hh):
                        if kk == 0 and cf == 0 and hh == 0: vm.wait("b2d%d" % i)
                        R = vBA if cf == 0 else vBB
                        d = 32 + (2 * n + kk) * 8 + cf * 4 + 2 * hh
                        lg.issue("ds_read_b64_tr_b16 %s, v%d offset:%d" % (a(d, 2), R, (i % 2) * 4096 + kk * 2048 + hh * 1024), "b2r%d" % i)
                    f.is_ds = True
                    res.append(f)
        return res
    sWl = 73
    def wo2():
        vm.issue("buffer_load_dwordx4 v%d, s[%d:%d], s%d offen lds" % (vDB[0], sWO, sWO + 3, sTmp), "wo")
        vm.issue("buffer_load_dwordx4 v%d, s[%d:%d], s%d offen offset:1024 lds" % (vDB[1], sWO, sWO + 3, sTmp), "wo")
        M("s_add_u32 m0, m0, 2048", "s_add_u32 s%d, s%d, 16384" % (sTmp, sTmp))

    KVB = 65536
    def kv_dma():
        def ld(off): vm.issue("buffer_load_dwordx4 v%d, s[%d:%d], s6 offen offset:%d%s lds" % (vL16, sWS, sWS + 3, off, SC), "kv")
        def k0():
            M("s_lshl_b32 s3, s%d, 17" % sP, "s_lshl_b32 s4, s%d, 12" % sRB, "s_mul_i32 s7, s%d, 3072" % sW, "s_add_u32 m0, s7, %d" % KVB,
              "s_add_u32 s5, s3, s4", "s_add_u32 s6, s5, s7", "s_add_u32 s6, s6, 0x%x" % (KF - 8192), "s_add_u32 s5, s5, s4")
            ld(0)
        def k1():
            M("s_add_u32 m0, s7, %d" % (KVB + 12288), "s_add_u32 s6, s6, 65536"); ld(0)
        def va():
            M("s_lshl_b32 s7, s%d, 11" % sW, "s_add_u32 m0, s7, %d" % (KVB + 24576), "s_add_u32 s5, s5, 0x%x" % (VF - 16384), "s_add_u32 s6, s5, s7", "s_mov_b32 s%d, s5" % sSpin); ld(0)
        def vb():
            M("s_lshl_b32 s7, s%d, 12" % sW, "s_add_u32 m0, s7, %d" % (KVB + 32768), "s_add_u32 s6, s%d, s7" % (sE1 + 1), "s_add_u32 s6, s6, 8192"); ld(0)
        L = lambda o: (lambda: ld(o))
        sv = lambda: (A("s_mov_b32 s%d, s5" % (sE1 + 1)), ld(1024))
        return [k0, L(1024), L(2048), k1, L(1024), L(2048), va, sv], [vb, L(1024), L(2048), L(3072)]

    Q0, Q1, K0, K1_ = 192, 196, 200, 204
    V0, V1 = 208, 216
    P = 224
    S0, S1, O0, O1, MD, ME = 128, 144, 232, 64, 160, 176

    def bulk():
        res = []
        if not OPT["bulk"]: return res
        def f0():
            M("s_lshl_b32 s3, s2, 2", "s_add_u32 s3, s3, s%d" % sW, "s_mul_i32 s4, s3, 1536", "s_and_b32 s5, s%d, 1" % sW, "s_lshl_b32 s6, s2, 1", "s_add_u32 s6, s6, s5", "s_mul_i32 s6, s6, 3584")
            vm.issue("buffer_load_dword v60, v%d, s[%d:%d], s4 offen" % (vL16, sWQ, sWQ + 3), "bulk")
        res.append(f0)
        res.append(lambda: (A("s_mov_b32 exec_hi, 0"), vm.issue("buffer_load_dword v60, v%d, s[%d:%d], s4 offen offset:1024" % (vL16, sWQ, sWQ + 3), "bulk"), A("s_mov_b32 exec_hi, -1")))
        for j in range(3):
            res.append(lambda j=j: vm.issue("buffer_load_dword v60, v%d, s[%d:%d], s6 offen offset:%d" % (vL16, sGU, sGU + 3, j * 1024), "bulk"))
        res.append(lambda: (A("s_mov_b32 exec_hi, 0"), vm.issue("buffer_load_dword v60, v%d, s[%d:%d], s6 offen offset:3072" % (vL16, sGU, sGU + 3), "bulk"), A("s_mov_b32 exec_hi, -1")))
        if OPT["bulkb"] == 1:
            def g0():
                M("s_mul_i32 s4, s3, 1792", "s_lshl_b32 s5, s3, 9")
                vm.issue("buffer_load_dword v60, v%d, s[%d:%d], s4 offen" % (vL16, sDN, sDN + 3), "bulk")
            res.append(g0)
            res.append(lambda: vm.issue("buffer_load_dword v60, v%d, s[%d:%d], s4 offen offset:768" % (vL16, sDN, sDN + 3), "bulk"))
            res.append(lambda: (A("s_mov_b32 exec_hi, 0"), vm.issue("buffer_load_dword v60, v%d, s[%d:%d], s5 offen" % (vL16, sWO, sWO + 3), "bulk"), A("s_mov_b32 exec_hi, -1")))
        return res

    def stats(stage0, stages):
        if OPT["t0"]:
            M("v_mov_b32 v61, v57") if False else None
        if OPT["t0"]:
            kind, t = stages[0]
            base, sk, srd_, st = {"KV": (sKVb, sKq + t, sWQ, 3072), "Pa": (sGa, sKg + t, sGU, 3584)}[kind]
            M("v_mul_u32_u24 v38, %d, v%d" % (st, vLane), "s_add_u32 s4, s%d, s%d" % (base, sk))
            vm.issue("buffer_load_dword v60, v38, s[%d:%d], s4 offen" % (srd_, srd_ + 3), "tch")
        if OPT["bulk"] == 3:
            A("v_lshlrev_b32 v%d, 4, v%d" % (vL16, vLane))
            M("s_mov_b32 s90, s5", "s_mov_b32 s91, s6")
            for f in bulk(): f()
            M("s_mov_b32 s5, s90", "s_mov_b32 s6, s91")
        n0 = OPT["s0first"]
        for f in stage0[:n0]: f()
        for f in late: f()
        stamp("setup")
        rest = list(xl) + stage0[n0:] + (bulk() if OPT["bulk"] == 1 else [])
        for _ in range(OPT["xahead"]): rest.pop(0)()
        def rdx(c):
            vm.wait("x%d" % c)
            if OPT.get("xst"): stamp("x%d" % c)
            for sp in range(4):
                lg.issue("ds_read_b128 %s, v%d offset:%d" % (v(Xraw(4 * c + sp), 4), vXR + sp, c * 4096), "xr%d" % c)
        rdx(0)
        for c in range(8):
            for _ in range(4 if c < 4 else 2):
                if rest: rest.pop(0)()
            if c + 1 < 8: rdx(c + 1)
            lg.wait("xr%d" % c)
            for i in range(16):
                x = Xraw(4 * c) + i
                A("v_dot2_f32_bf16 v%d, v%d, s%d, v%d" % (vSt + i % 4, x, sOne, vSt + i % 4))
                A("v_dot2_f32_bf16 v%d, v%d, v%d, v%d" % (vSt + 4 + i % 4, x, x, vSt + 4 + i % 4))
                if i == 7 and c >= 4:
                    for _ in range(2):
                        if rest: rest.pop(0)()
        while rest: rest.pop(0)()
        stamp("stats")
        if OPT["ptouch"]: A("s_waitcnt lgkmcnt(0)")
        vm.wait("ep")
        A("s_barrier")

    def ln_scalar(dm):
        M("s_mov_b32 s4, 0x9e3779b9", "v_add_co_u32 v%d, vcc, 0x7f4a7c15, v%d" % (vTag, vTag), "v_mov_b32 v40, s4")
        seq = ["v_add_f32 v48, v48, v49", "v_add_f32 v50, v50, v51", "v_addc_co_u32 v%d, vcc, v40, v%d, vcc" % (vTag + 1, vTag + 1),
               "v_add_f32 v52, v52, v53", "v_add_f32 v54, v54, v55",
               "v_add_f32 v48, v48, v50", "v_add_f32 v52, v52, v54",
               "v_mov_b32 v49, v48", "v_mov_b32 v53, v52", None,
               "v_permlane32_swap_b32 v48, v49", "v_permlane32_swap_b32 v52, v53",
               "v_add_f32 v48, v48, v49", "v_add_f32 v52, v52, v53",
               "v_mul_f32 v48, %s, v48" % f32(1.0 / 512), "v_mul_f32 v52, %s, v52" % f32(1.0 / 512),
               "v_fma_f32 v52, -v48, v48, v52", "v_max_f32 v52, 0, v52",
               "v_cvt_pk_bf16_f32 v48, v48, v52",
               "v_and_b32 v52, 0xffff0000, v48", "v_lshlrev_b32 v48, 16, v48",
               "v_add_f32 v52, %s, v52" % f32(1e-5),
               "v_cvt_pk_bf16_f32 v52, v52, v52", "v_and_b32 v52, 0xffff0000, v52",
               "v_sqrt_f32 v52, v52", None,
               "v_cvt_pk_bf16_f32 v52, v52, v52", "v_and_b32 v%d, 0xffff0000, v52" % vSd,
               "v_rcp_f32 v%d, v%d" % (vRs, vSd)]
        k_ = seq.index("v_add_f32 v52, %s, v52" % f32(1e-5))
        seq[k_:k_] = ["v_xor_b32 v%d, 0x80000000, v48" % CM]
        fillm = ["v_mov_b32 v%d, v%d" % (CM + i, CM) for i in range(1, 16)]
        tailseq = seq[k_ + 1:]; seq = seq[:k_ + 1]
        for x_ in tailseq:
            seq.append(x_); seq += fillm[:2]; fillm = fillm[2:]
        seq += fillm
        for s_ in seq:
            if s_ is None:
                if dm: dm.pop(0)()
            else: A(s_)

    tyn = [0]
    B2PLAN = [[[0], [1], [2], [3], [4], [5], [6], [7, 8], [9, 10], [11]],
              [[0], [1], [2], [3], [4], [5], [6], [7], [8, 9], [10, 11]],
              [[0], [1], [2], [3], [4, 5], [6, 7], [8], [9], [10], [11]],
              [[], [0], [1], [2], [3], [4, 5], [6, 7], [8], [9, 10], [11]],
              [[0], [1], [2], [3], [4], [5], [6], [7], [8], [9]],
              [[], [0, 1], [2], [3, 4], [5], [6], [7], [], [8], [9]],
              [[], [0, 1], [2], [3, 4], [5], [6], [7], [8], [9, 10], [11]]][OPT["plan"]]
    NP1 = max(max(x) for x in B2PLAN if x) + 1
    def phase1(ty, stages, accs, streams, tail):
        tyn[0] = ty
        stats(dma_stage(stages[0][0], stages[0][1], 0, "s0"), stages)
        M("s_and_b32 s4, s%d, 1" % sW, "s_lshl_b32 s4, s4, 6", "v_xor_b32 v%d, s4, v%d" % (vBA, vBA), "v_xor_b32 v%d, s4, v%d" % (vBB, vBB))
        dm = []
        for sidx in range(1, 4): dm += dma_stage(stages[sidx][0], stages[sidx][1], sidx, "s%d" % sidx)
        if OPT["bulk"] == 2: dm = dm[:8] + bulk() + dm[8:]
        if OPT["t1"]:
            firsts = [st_ for i_, st_ in enumerate(stages) if i_ > 0 and st_[1] == 0]
            dm = dm[:OPT["t1"] - 1] + [touch(*x_) for x_ in firsts] + dm[OPT["t1"] - 1:]
        for j in range(1, 4): A("v_add_u32 v%d, %d, v61" % (vDB[j], j * 7168))
        A("v_mov_b32 v%d, v61" % vDB[0])
        hold = []
        if not OPT["lndma"]: hold, dm = dm, []
        ln_scalar(dm)
        ctr_mfma(0, 0); ctr_mfma(0, 1)
        for _ in range(4):
            if dm: dm.pop(0)()
        for c, f in ctr_cvt(0): f()
        stamp("ln")
        vm.wait("s0")
        if OPT.get("xst"): stamp("s0")
        A("s_barrier")
        q4 = quad(stages[0][0], stages[0][1], 0, 0)
        n = 0
        for j in range(4): rd(q4, j, 0, "w%d_%d" % (n, j // 2))
        buf = 0
        wpend = dm + hold
        fill = []; fill_gaps = 0; fill_tot = 0; fill_done = 0; gap = 0
        for sidx, (kind, t) in enumerate(stages):
            slot = sidx % 4
            vm.hook = stamp if (OPT.get("wst") and OPT["wst"] <= sidx <= OPT["wst"] + 3) else None
            bx = []
            for n_ in B2PLAN[sidx]: bx += (b2_read(n_ - 2) if n_ >= 2 else []) + b2_dma(n_)
            if len(B2PLAN[sidx]) == 2:
                h_ = len(bx) // 2
                ex = bx[:h_] + list(wpend) + bx[h_:]
            else: ex = bx + list(wpend) if sidx else list(wpend) + bx
            wpend = []
            if OPT["bulkb"] >= 2 and sidx == OPT["bulkb"] - 2:
                def g0():
                    M("s_lshl_b32 s3, s2, 2", "s_add_u32 s3, s3, s%d" % sW, "s_mul_i32 s4, s3, 1792", "s_lshl_b32 s5, s3, 9")
                    vm.issue("buffer_load_dword v60, v%d, s[%d:%d], s4 offen" % (vL16, sDN, sDN + 3), "bulk")
                ex += [g0, lambda: vm.issue("buffer_load_dword v60, v%d, s[%d:%d], s4 offen offset:768" % (vL16, sDN, sDN + 3), "bulk"),
                       lambda: (A("s_mov_b32 exec_hi, 0"), vm.issue("buffer_load_dword v60, v%d, s[%d:%d], s5 offen" % (vL16, sWO, sWO + 3), "bulk"), A("s_mov_b32 exec_hi, -1"))]
            if sidx == 1 and OPT["satom"]:
                def at():
                    L = A.newlabel("L_at")
                    M("s_mov_b32 s%d, 1" % (sDBG + 2), "s_cmp_lg_u32 s%d, 0" % sW, "s_cbranch_scc1 %s" % L, "s_atomic_add s%d, s[%d:%d], 0 glc" % (sDBG + 2, sDBG, sDBG + 1))
                    A.label(L)
                ex.append(at)
            if sidx == 4: A.label("L_mid%d" % ty)
            if sidx == 2: ex.append(code_touch("L_mid%d" % ty, 6))
            if sidx == 7: ex.append(code_touch("L_ATT", 8))
            if sidx == OPT["wopf"]:
                def wp(j):
                    if j == 0: M("s_and_b32 s3, s%d, 3" % sR, "s_lshl_b32 s3, s3, 15", "s_add_u32 s%d, s3, s%d" % (sSpin, sBo), "s_sub_u32 s%d, s%d, 0" % (sSpin, sSpin))
                    vm.issue("buffer_load_dword v60, v%d, s[%d:%d], s%d offen offset:%d" % (vDB[j], sWO, sWO + 3, sSpin, j * 1024), "wopf")
                ex += [(lambda j=j: wp(j)) for j in range(4)]
            if ty == 0 and sidx == 6:
                def pubkv():
                    vm.wait("stkv")
                    M("s_lshl_b32 s3, s%d, 15" % sIQ, "s_lshl_b32 s4, s%d, 11" % sRB, "s_add_u32 s3, s3, s4", "s_lshl_b32 s4, s%d, 7" % sW, "s_add_u32 s3, s3, s4", "s_add_u32 s3, s3, 0x%x" % FK)
                    publish(3)
                ex.insert(12, pubkv)
            if ty == 0 and sidx == 8:
                def pubq():
                    vm.wait("stq")
                    M("s_lshl_b32 s3, s%d, 15" % sIQ, "s_lshl_b32 s4, s%d, 11" % sRB, "s_add_u32 s3, s3, s4", "s_lshl_b32 s4, s%d, 7" % sW, "s_add_u32 s3, s3, s4", "s_add_u32 s3, s3, 0x%x" % FQ)
                    publish(3)
                ex.insert(0 if OPT["kvst"] == 9 else len(ex), pubq)
            if ty == 1 and sidx == 8:
                def pube():
                    vm.wait("sta")
                    M("s_lshl_b32 s3, s%d, 11" % sBLK, "s_lshl_b32 s4, s%d, 7" % sP, "s_add_u32 s3, s3, s4", "s_add_u32 s3, s3, 0x%x" % FE)
                    publish(3)
                ex.insert(len(ex) // 2, pube)
            if sidx == OPT["kvst"] - 1:
                def pk():
                    M("s_lshr_b32 s3, s%d, 1" % sP, "s_lshl_b32 s3, s3, 15", "s_lshl_b32 s4, s%d, 11" % sRB, "s_add_u32 s3, s3, s4", "s_add_u32 s%d, s3, 0x%x" % (sFl, FK - 4096),
                      "s_lshl_b32 s4, s%d, 2" % sRB, "s_sub_i32 s4, 8, s4", "s_max_i32 s4, s4, 0",
                      "s_lshl_b32 s%d, -1, s4" % sMask, "s_and_b32 s%d, s%d, 0xfff" % (sMask, sMask), "s_mov_b32 s%d, 0" % (sMask + 1))
                    poll_issue(vPo, sFl, "pk")
            if sidx == OPT["kvst"]:
                kva, kvb = kv_dma()
                ex = [lambda: poll_check(vPo, sFl, "pk")] + kva + (kvb if sidx == 9 else []) + ex
            if sidx == 9 and OPT["kvst"] == 8: ex = kvb + ex
            if sidx == OPT["kvst"] - 1: ex.insert(1, pk)
            if sidx == 9 and not (OPT["qloc"] and ty == 0):
                def pq():
                    M("s_lshr_b32 s3, s%d, 1" % sP, "s_lshl_b32 s3, s3, 15", "s_lshl_b32 s4, s%d, 11" % sRB, "s_add_u32 s3, s3, s4", "s_lshl_b32 s4, s%d, 7" % sW, "s_add_u32 s3, s3, s4", "s_add_u32 s%d, s3, 0x%x" % (sFl, FQ),
                      "s_mov_b32 s%d, 1" % sMask, "s_mov_b32 s%d, 0" % (sMask + 1))
                    poll_issue(vPo, sFl, "pq")
                ex.insert(9 if OPT["kvst"] == 9 else 4, pq)
            if sidx in streams:
                if fill: flush_held()
                while fill: fill.pop(0)[1]()
                fill, ns = streams[sidx]
                fill = list(fill); fill_gaps = ns * 32 - 6; fill_tot = sum(abs(c) for c, _ in fill); fill_done = 0; gap = -3
            nex = len(ex); exi = 0
            for q in range(8):
                cur = quad(kind, t, slot, q)
                if q == 7:
                    if sidx + 1 < len(stages):
                        vm.wait("s%d" % (sidx + 1))
                        if vm.hook: stamp("preb")
                        A("s_barrier")
                        if vm.hook: stamp("bar")
                        nxt = quad(stages[sidx + 1][0], stages[sidx + 1][1], (sidx + 1) % 4, 0)
                        if sidx >= 1 and sidx + 3 < len(stages):
                            wpend = dma_stage(stages[sidx + 3][0], stages[sidx + 3][1], (sidx + 3) % 4, "s%d" % (sidx + 3))
                    else:
                        nxt = None
                else:
                    nxt = quad(kind, t, slot, q + 1)
                pc = (8 * sidx + q) // 2 + 1
                if q % 2 == 0: lag_now = list(lagq); del lagq[:]
                if sidx < 4 and pc < 16 and q % 2 == 0: cq = ctr_cvt(pc)
                docm = sidx < 4 and pc < 16
                for j in range(4):
                    acc, xi, _, _, _ = cur[j]
                    if j % 2 == 0: lg.wait("w%d_%d" % (n, j // 2))
                    d = v(accs[sidx] + acc * 16, 16)
                    c = d if xi > 0 else "0"
                    wf, xf = a(buf * 16 + j * 4, 4), Xr(xi)
                    if kind == "KV" and acc >= 2: A("%s %s, %s, %s, %s" % (MF, d, xf, wf, c))
                    else: A("%s %s, %s, %s, %s" % (MF, d, wf, xf, c))
                    used = 4 if held else 0
                    flush_held()
                    if nxt is not None: rd(nxt, j, buf ^ 1, "w%d_%d" % (n + 1, j // 2))
                    g_in = q * 4 + j
                    due = lambda: exi < nex and exi * 29 <= g_in * nex
                    isds = lambda: getattr(ex[exi], "is_ds", False)
                    if fill and fill[0][0] == -4:
                        c_, f = fill.pop(0); f(); fill_done += 4; used += 4
                    elif due() and isds():
                        ex[exi](); exi += 1; used += 4
                        if exi < nex and exi * 29 <= (g_in - 3) * nex and isds():
                            ex[exi](); exi += 1; used += 4
                    if fill and fill[0][0] == -8:
                        c_, f = fill.pop(0); run_hold(f); fill_done += 8
                    elif due() and not isds():
                        run_hold(ex[exi]); exi += 1; used += 2
                    if q % 2 == 0 and lag_now: lag_now.pop(0)[1]()
                    if docm:
                        g8 = (q % 2) * 4 + j
                        if g8 in (0, 1): ctr_mfma(pc, g8)
                        if g8 >= 4:
                            k = -(-len(cq) // (8 - g8))
                            for _ in range(k): cq.pop(0)[1]()
                    if sidx == 3 and q == 7 and j == 0:
                        M("v_mul_f32 v%d, %s, v%d" % (vC1, f32(-LOG2E), vRs), "v_mul_f32 v%d, v%d, v%d" % (vS2, vSd, vSd), "v_mul_f32 v%d, %s, v%d" % (vQs, f32(0.25 * LOG2E), vRs))
                    if sidx == 3 and q == 7 and j == 1:
                        M("v_lshrrev_b32 v%d, 2, v%d" % (vPo, vLane), "v_and_b32 v27, 3, v%d" % vLane, "v_lshlrev_b32 v27, 7, v27", "v_lshl_add_u32 v%d, v%d, 11, v27" % (vPo, vPo))
                    gap += 1
                    if fill and gap > 0:
                        lag = fill_tot * gap / fill_gaps - fill_done
                        lim = max(OPT["budget"], fill_tot / fill_gaps + 4)
                        while fill and fill[0][0] > 0 and lag > 0 and (used + fill[0][0] <= lim or lag > 24):
                            c_, f = fill.pop(0); f(); fill_done += c_; used += c_; lag -= c_
                buf ^= 1; n += 1
            while exi < nex:
                flush_held(); ex[exi](); exi += 1
            if OPT["stamp"]: flush_held()
            stamp("st%d" % sidx, sidx not in (3, 5, 7, 9))
        vm.hook = None
        flush_held()
        while fill: fill.pop(0)[1]()
        if OPT["qloc"] and ty == 0:
            for _ in range(3): stamp("-", True)
            for i in range(8): A("v_mov_b32 v%d, v%d" % (Q0 + i, ACB + 16 + i))
        else:
            poll_check(vPo, sFl, "pq")
            M("s_lshl_b32 s3, s%d, 17" % sP, "s_lshl_b32 s4, s%d, 10" % sBLK, "s_add_u32 s4, s4, s3", "s_add_u32 s4, s4, 0x%x" % QF, "s_add_u32 s5, s4, 65536")
            vm.issue("buffer_load_dwordx4 %s, v%d, s[%d:%d], s4 offen%s" % (v(Q0, 4), vL16, sWS, sWS + 3, SC), "q")
            vm.issue("buffer_load_dwordx4 %s, v%d, s[%d:%d], s5 offen%s" % (v(Q1, 4), vL16, sWS, sWS + 3, SC), "q")
        M("s_lshl_b32 s%d, s%d, 12" % (sXo, sR), "s_lshl_b32 s3, s%d, 9" % sW, "s_add_u32 s%d, s%d, s3" % (sXo, sXo), "s_add_u32 s%d, s%d, 0x%x" % (sXo, sXo, FE))
        poll_issue(vPo, sXo, "pe", 14)
        for f in b2_read(NP1 - 2): f()
        for c_, f in tail: f()
        stamp("tail")

    M("s_cmp_eq_u32 s%d, 0" % sTy, "s_cbranch_scc0 L_HH")
    sv, sl, sn = vm.save(), lg.save(), nst[0]
    phase1(0, [("KV", t) for t in range(4)] + [("Q", t) for t in range(2)] + [("Pa", t) for t in range(4)],
           [ACA] * 4 + [ACB] * 2 + [ACA] * 4,
           {4: (st_kv(ACA), 2), 6: (st_q(ACB), 1), 8: (st_mask(), 1)}, tail_swiglu(ACA, 2, 32, sHa, "sth"))
    A("s_branch L_ATT")
    vq, lq = vm.save(), lg.save()
    A.label("L_HH")
    vm.load(sv); lg.load(sl); nst[0] = sn
    phase1(1, [("Pa", t) for t in range(4)] + [("Pb", t) for t in range(4)] + [("P1", t) for t in range(2)],
           [ACA] * 4 + [ACB] * 4 + [ACA] * 2,
           {4: (st_swiglu(ACA, 2, 32, sHa, "sta"), 4), 8: (st_swiglu(ACB, 2, 32, sHb, "sth"), 2)}, tail_swiglu(ACA, 1, 16, sH1, "sth") + st_mask())
    A.label("L_ATT")
    vm.merge(vq); lg.merge(lq)
    vKA, vVA = 6, 7
    for rg in range(16): A("v_mov_b32 v%d, 0x3f803f80" % (V0 + rg))
    M("s_mov_b32 s%d, 0x0000ffff" % sE0, "s_mov_b32 s%d, 0x0000ffff" % (sE0 + 1), "s_mov_b32 s%d, 0xffff0000" % sE1, "s_mov_b32 s%d, 0xffff0000" % (sE1 + 1))
    M("s_sub_i32 s%d, 8, s%d" % (sI0, sBLK), "s_max_i32 s%d, s%d, 0" % (sI0, sI0))
    M("s_add_u32 s4, s%d, s%d" % (sI0, sW), "s_lshl_b32 s5, s4, 10", "s_add_u32 s5, s5, %d" % KVB, "v_add_u32 v%d, s5, v%d" % (vKA, vL16),
      "s_lshl_b32 s5, s4, 11", "s_add_u32 s5, s5, %d" % (KVB + 24576), "v_add_u32 v%d, s5, v%d" % (vVA, vL16),
      "v_mov_b32 v12, v%d" % vKA, "v_mov_b32 v13, v%d" % vVA)
    A("v_mov_b32 v%d, 1" % vRet)
    M("s_lshl_b32 s3, s%d, 11" % sBLK, "s_lshl_b32 s4, s%d, 7" % sP, "s_add_u32 s3, s3, s4", "s_add_u32 s%d, s3, 0x%x" % (sFl, FH))
    D2 = OPT["d2"]
    M("s_lshl_b32 s3, s%d, 1" % sR, "s_lshr_b32 s4, s%d, 1" % sW, "s_add_u32 s5, s3, s4", "s_xor_b32 s6, s5, 1",
      "s_mul_i32 s%d, s5, %d" % (sAd, 144 * 1024), "s_mul_i32 s%d, s6, %d" % (sAd + 1, 144 * 1024),
      "s_lshl_b32 s4, s%d, 13" % sW, "s_add_u32 s4, s4, %d" % (112 * 1024), "s_add_u32 s%d, s%d, s4" % (sAo, sAd), "s_add_u32 s%d, s%d, s4" % (sAo + 1, sAd + 1),
      "s_mov_b32 s%d, 0x%x" % (sMask, 0xaa if OPT["qloc"] else 0xcc), "s_mov_b32 s%d, 0" % (sMask + 1))
    sAg = 78
    pool = list(range(192, 232, 4)) + [248, 252, 232, 236, 240, 244]
    assert len(pool) >= 2 * D2
    def AFr(ks, rf):
        if ks < 6: return v(80 + ks * 8 + rf * 4, 4)
        if ks < 8: return a(16 + (ks - 6) * 8 + rf * 4, 4)
        return v(pool[((ks - 8) % D2) * 2 + rf], 4)
    def loadA(ks):
        kk = ks if ks < 28 else ks - 28
        if kk % 4 == 0:
            if ks < 28:
                grp_base(sAg, ks // 4)
                M("s_lshl_b32 s%d, s%d, 10" % (sAg, sAg), "s_add_u32 s%d, s%d, s%d" % (sAg + 1, sAg, sAd + 1), "s_add_u32 s%d, s%d, s%d" % (sAg, sAg, sAd))
            else:
                M("s_add_u32 s%d, s%d, %d" % (sAg, sAo, kk * 1024), "s_add_u32 s%d, s%d, %d" % (sAg + 1, sAo + 1, kk * 1024))
        for rf in range(2):
            vm.issue("buffer_load_dwordx4 %s, v%d, s[%d:%d], s%d offen offset:%d%s" % (AFr(ks, rf), vL16, sWS, sWS + 3, sAg + rf, (kk % 4) * 1024, SC), "a%d" % ks)
    LA = lambda ks: (lambda: loadA(ks))
    M("s_lshl_b32 s%d, s%d, 14" % (sSt, sW), "s_mov_b32 s%d, s%d" % (sWl, sSt), "s_mov_b32 s%d, s%d" % (sTmp, sBo))
    for f in b2_dma(NP1): f()
    for f in b2_read(NP1 - 1): f()
    poll_check(vPo, sXo, "pe", 14)
    EL = OPT["elate"]
    if not EL: loadA(0); loadA(1)
    M("s_add_u32 s%d, s%d, 0x%x" % (sXo, sXo, FH - FE + (1 << 32) if FH < FE else FH - FE), "s_mov_b32 s%d, 0xff" % sMask)
    vm.wait("q"); A("s_barrier")
    stamp("att0")
    def rdK(h, off): lg.issue("ds_read_b128 %s, v%d offset:%d" % (v(K0 if h == 0 else K1_, 4), vKA, h * 12288 + off), "k%d" % h)
    def rdV(h, off):
        A("s_mov_b64 exec, s[%d:%d]" % ((sE0, sE0 + 1) if h == 0 else (sE1, sE1 + 1)))
        R = V0 if h == 0 else V1
        lg.issue("ds_read_b128 %s, v%d offset:%d" % (v(R, 4), vVA, off), "v%d" % h)
        lg.issue("ds_read_b128 %s, v%d offset:%d" % (v(R + 4, 4), vVA, off + 1024), "v%d" % h)
        A("s_mov_b64 exec, -1")
    def mask(m): return {"0": "0", "D": v(MD, 16), "E": v(ME, 16)}[m]
    def ex_(r): A("v_exp_f32 v%d, v%d" % (r, r))
    def cv(d, s_): A("v_cvt_pk_bf16_f32 v%d, v%d, v%d" % (d, s_, s_ + 1))
    def half(h, mqk, last, first, extra):
        S, O, Vr = (S0, O0, V0) if h == 0 else (S1, O1, V1)
        So, Oo, Vo, Ko, Qo = (S1, O1, V1, K1_, Q1) if h == 0 else (S0, O0, V0, K0, Q0)
        ex_(S); ex_(S + 1)
        if not (first and h == 0): A("%s %s, %s, %s, %s" % (MF, v(Oo, 16), v(Vo + 4, 4), v(P + 4, 4), v(Oo, 16)))
        n_new = 0
        if not last: rdK(h, 1024); n_new += 1
        if mqk is not None: rdV(1 - h, 0 if h == 0 else 2048); n_new += 2
        ex_(S + 2); ex_(S + 3); ex_(S + 4); ex_(S + 5); cv(P, S); cv(P + 1, S + 2)
        A("s_waitcnt lgkmcnt(%d)" % n_new)
        if mqk is not None: A("%s %s, %s, %s, %s" % (MF, v(So, 16), v(Ko, 4), v(Qo, 4), mask(mqk)))
        ex_(S + 6); ex_(S + 7); ex_(S + 8); ex_(S + 9); cv(P + 2, S + 4); cv(P + 3, S + 6); ex_(S + 10); ex_(S + 11)
        A("%s %s, %s, %s, %s" % (MF, v(O, 16), v(Vr, 4), v(P, 4), "0" if first else v(O, 16)))
        for f in extra: f()
        ex_(S + 12); ex_(S + 13); cv(P + 4, S + 8); cv(P + 5, S + 10); ex_(S + 14); ex_(S + 15)
        if h == 1 and not last: M("v_add_u32 v%d, 1024, v%d" % (vKA, vKA), "v_add_u32 v%d, 2048, v%d" % (vVA, vVA))
        cv(P + 6, S + 12); cv(P + 7, S + 14)
    def body(m1, m0n, first=False, e0=(), e1=()):
        half(0, m1, m0n is None, first, e0); half(1, m0n, m0n is None, first, e1)
    sOo = 72
    rdK(0, 0); rdK(1, 0); rdV(0, 0)
    if OPT.get("diagx"):
        M("s_getreg_b32 s3, hwreg(HW_REG_XCC_ID, 0, 4)", "s_sub_u32 s3, s2, s3", "s_and_b32 s3, s3, 7", "s_lshl_b32 s3, 1, s3", "v_mov_b32 v60, s3",
          "s_cmp_lg_u32 s%d, 0" % sW, "s_cbranch_scc1 L_dx0", "s_mov_b64 exec, 1", "buffer_atomic_or v60, off, s[%d:%d], 0 offset:16" % (sDBG, sDBG + 3), "s_mov_b64 exec, -1")
        A.label("L_dx0")
    if OPT["xrearly"]:
        M("v_and_b32 v40, 31, v%d" % vLane, "v_lshrrev_b32 v41, 5, v%d" % vLane, "v_lshlrev_b32 v40, 10, v40", "v_lshl_add_u32 v%d, v41, 4, v40" % vXo,
          "s_lshr_b32 s3, s%d, 1" % sW, "s_lshl_b32 s4, s%d, 1" % sR, "s_add_u32 s3, s3, s4", "s_lshl_b32 s3, s3, 15",
          "s_and_b32 s4, s%d, 1" % sW, "s_lshl_b32 s4, s4, 6", "s_add_u32 s3, s3, s4", "s_lshl_b32 s4, s%d, 7" % sC2, "s_add_u32 s%d, s3, s4" % sOo)
        vm.issue("buffer_load_dwordx4 v[48:51], v%d, s[%d:%d], s%d offen" % (vXo, sXS, sXS + 3, sOo), "xr")
        vm.issue("buffer_load_dwordx4 v[52:55], v%d, s[%d:%d], s%d offen offset:32" % (vXo, sXS, sXS + 3, sOo), "xr")
    for f in b2_dma(NP1 + 1): f()
    A("s_mov_b32 m0, s%d" % sSt)
    if not OPT["satom"] and not OPT["noat"]:
        M("s_cmp_lg_u32 s%d, 0" % sW, "s_cbranch_scc1 L_noat", "s_mov_b64 exec, 1")
        A("buffer_atomic_add v%d, v%d, s[%d:%d], 0 offen sc0" % (vRet, vL16, sDBG, sDBG + 3))
        A("s_mov_b64 exec, -1")
        A.label("L_noat")
    M("s_cmp_lg_u32 s%d, 0" % sI0, "s_cbranch_scc1 A_short")
    sv_short = vm.save()
    A("s_waitcnt lgkmcnt(3)")
    A("%s %s, %s, %s, %s" % (MF, v(S0, 16), v(K0, 4), v(Q0, 4), v(ME, 16)))
    A("s_mov_b32 s%d, 6" % sCnt)
    body("E", "0", True, *(([wo2], []) if EL else ([wo2, LA(2)], [LA(3)])))
    stamp("t0", True)
    A.label("A_mid")
    def pubh():
        L = A.newlabel("L_ph")
        M("s_cmp_lg_u32 s%d, %d" % (sCnt, 7 - OPT["pubh"]), "s_cbranch_scc1 %s" % L)
        for _ in range(OPT["pubh"] - 1): vm.ops += ["wo", "wo"]
        vm.wait("sth"); publish(sFl)
        A.label(L)
    body("0", "0", False, [wo2], [pubh])
    M("s_sub_u32 s%d, s%d, 1" % (sCnt, sCnt), "s_cmp_lg_u32 s%d, 0" % sCnt, "s_cbranch_scc1 A_mid")
    A.label("A_b7")
    body("0", "D", False, *(([wo2, LA(0)], [LA(1), LA(2)]) if EL else ([wo2, LA(4)], [LA(5)])))
    A.label("A_b8")
    if NP1 == 10:
        for f in b2_read(10) + b2_dma(12) + b2_read(11) + b2_dma(13): f()
    PH = lambda: poll_issue(vPo, sXo, "ph")
    body("D", None, False, *(([PH, LA(3), LA(4)], [LA(5), LA(6)]) if EL else ([PH, LA(6)], [LA(7)])))
    if EL: loadA(7)
    A("%s %s, %s, %s, %s" % (MF, v(O1, 16), v(V1 + 4, 4), v(P + 4, 4), v(O1, 16)))
    lg.mark_all()
    vm_main = vm.save()
    stamp("att")
    M("s_mul_i32 s3, s%d, %d" % (sBLK, 144 * 1024), "s_lshl_b32 s4, s%d, 11" % sP, "s_add_u32 s3, s3, s4", "s_add_u32 s%d, s3, %d" % (sSt + 1, 112 * 1024),
      "v_mov_b32 v42, 0x1f800000", "v_mov_b32 v43, 0x5f800000", "v_mov_b32 v44, 0x1f8")
    for i in range(2): A("v_pk_add_f32 %s, %s, %s" % (v(T + 2 * i, 2), v(O0 + 4 * i, 2), v(O0 + 4 * i + 2, 2)))
    M("v_cmp_le_f32 vcc, v42, v%d" % (O0 + 8), "v_cmp_ge_f32 s[4:5], v43, v%d" % (O0 + 8), "v_rcp_f32 v40, v%d" % (O0 + 8), "v_pk_add_f32 %s, %s, %s" % (v(T, 2), v(T, 2), v(T + 2, 2)), "s_and_b64 vcc, vcc, s[4:5]")
    for i in range(2): A("v_pk_add_f32 %s, %s, %s" % (v(T + 4 + 2 * i, 2), v(O1 + 8 + 4 * i, 2), v(O1 + 8 + 4 * i + 2, 2)))
    M("v_cmp_le_f32 s[6:7], v42, v%d" % O1, "v_cmp_ge_f32 s[4:5], v43, v%d" % O1, "v_pk_add_f32 %s, %s, %s" % (v(T + 4, 2), v(T + 4, 2), v(T + 6, 2)),
      "v_rcp_f32 v41, v%d" % O1, "v_pk_add_f32 %s, %s, %s" % (v(T, 2), v(T, 2), v(T + 4, 2)), "s_and_b64 vcc, vcc, s[6:7]", "s_and_b64 s[6:7], vcc, s[4:5]",
      "v_add_f32 v%d, v%d, v%d" % (T, T, T + 1), "v_cmp_class_f32 vcc, v%d, v44" % T, "s_and_b64 vcc, vcc, s[6:7]")
    if OPT["fb_force"]: A("s_mov_b64 vcc, 0")
    M("s_cmp_eq_u64 vcc, -1", "s_cbranch_scc0 A_fb")
    A.label("A_fin2")
    poll_check(vPo, sXo, "ph")
    if OPT["atouch"]:
        M("s_and_b32 s3, s%d, 3" % sC2, "s_lshl_b32 s3, s3, 10", "s_cmp_ge_u32 s%d, 4" % sC2, "s_cselect_b32 s4, s%d, s%d" % (sAd + 1, sAd),
          "s_cmp_ge_u32 s%d, 2" % sW, "s_cselect_b32 s5, s%d, s%d" % (sAd + 1, sAd), "s_xor_b32 s4, s4, s5", "s_xor_b32 s4, s4, s%d" % sAd, "s_cmp_ge_u32 s%d, 2" % sW)
        M("s_mul_i32 s4, s%d, %d" % (sR, 2 * 144 * 1024), "s_lshr_b32 s5, s%d, 2" % sC2, "s_mul_i32 s5, s5, %d" % (144 * 1024), "s_add_u32 s4, s4, s5", "s_add_u32 s4, s4, s3")
        for g in range(2, 7):
            grp_base(5, g)
            M("s_lshl_b32 s5, s5, 10", "s_add_u32 s5, s5, s4")
            vm.issue("buffer_load_dword v60, v%d, s[%d:%d], s5 offen%s" % (vL16, sWS, sWS + 3, SC), "atch")
    for ks in range(8, 13): loadA(ks)
    assert D2 >= 6
    AC2 = 128
    nl = [13]
    fin = []
    for i in range(8): fin.append(I("v_mul_f32 v%d, v%d, v40" % (O0 + i, O0 + i)))
    for i in range(4): fin.append(I("v_cvt_pk_bf16_f32 v%d, v%d, v%d" % (T + i, O0 + 2 * i, O0 + 2 * i + 1)))
    fin.append((-8, lambda: store(T, sSt + 1, 0, "sto")))
    for i in range(8): fin.append(I("v_mul_f32 v%d, v%d, v41" % (O1 + 8 + i, O1 + 8 + i)))
    for i in range(4): fin.append(I("v_cvt_pk_bf16_f32 v%d, v%d, v%d" % (T + 4 + i, O1 + 8 + 2 * i, O1 + 9 + 2 * i)))
    fin.append((-8, lambda: store(T + 4, sSt + 1, 1024, "sto")))
    fin += [(-4, f) for f in b2_read(12) + b2_read(13)]
    if not OPT["xrearly"]: fin += [I(x) for x in ("v_and_b32 v40, 31, v%d" % vLane, "v_lshrrev_b32 v41, 5, v%d" % vLane, "v_lshlrev_b32 v40, 10, v40", "v_lshl_add_u32 v%d, v41, 4, v40" % vXo)]
    if not OPT["xrearly"]: fin.append((2, lambda: M("s_lshr_b32 s3, s%d, 1" % sW, "s_lshl_b32 s4, s%d, 1" % sR, "s_add_u32 s3, s3, s4", "s_lshl_b32 s3, s3, 15",
      "s_and_b32 s4, s%d, 1" % sW, "s_lshl_b32 s4, s4, 6", "s_add_u32 s3, s3, s4", "s_lshl_b32 s4, s%d, 7" % sC2, "s_add_u32 s%d, s3, s4" % sOo)))
    fin.append((4, lambda: M("s_sub_u32 s3, s%d, s%d" % (sSt, sStg), "v_add_u32 v%d, s3, v%d" % (vBA, vBA), "v_add_u32 v%d, s3, v%d" % (vBB, vBB))))
    for i in range(1, 4): fin.append((4, lambda i=i: M("s_xor_b32 s3, s%d, %d" % (sW, i), "s_lshl_b32 s3, s3, 14", "v_add_u32 v%d, s3, v%d" % (40 + i, vL16))))
    fin.append(I("v_add_u32 v40, s%d, v%d" % (sSt, vL16)))
    def rdO(kk):
        for cf in range(2):
            R = vBA if cf == 0 else vBB
            d = (kk % 2) * 8 + cf * 4
            lg.issue("ds_read_b64_tr_b16 %s, v%d offset:%d" % (a(d, 2), R, kk * 2048), "o%d" % kk)
            lg.issue("ds_read_b64_tr_b16 %s, v%d offset:%d" % (a(d + 2, 2), R, kk * 2048 + 1024), "o%d" % kk)
    stamp("p2go")
    KO = 28 - D2 + OPT.get("odelay", 0)
    for ks in range(36):
        if ks == OPT["pubo"]:
            vm.wait("sto")
            M("s_lshl_b32 s3, s%d, 11" % sBLK, "s_lshl_b32 s4, s%d, 7" % sP, "s_add_u32 s3, s3, s4", "s_add_u32 s3, s3, 0x%x" % FO)
            publish(3)
        if ks == KO - 4:
            A("s_add_u32 s%d, s%d, 0x%x" % (sXo, sXo, FO - FH))
            poll_issue(vPo, sXo, "po")
        if ks == KO:
            stamp("p2a")
            poll_check(vPo, sXo, "po")
            stamp("p2b")
        if ks == 18 and not OPT["xrearly"]:
            vm.issue("buffer_load_dwordx4 v[48:51], v%d, s[%d:%d], s%d offen" % (vXo, sXS, sXS + 3, sOo), "xr")
            vm.issue("buffer_load_dwordx4 v[52:55], v%d, s[%d:%d], s%d offen offset:32" % (vXo, sXS, sXS + 3, sOo), "xr")
        vm.wait("a%d" % ks)
        if ks == 20: lg.wait("b2r13")
        if ks == 30:
            vm.wait("xr")
            for i in range(8): fin += [I("v_lshlrev_b32 v%d, 16, v%d" % (64 + 2 * i, 48 + i)), I("v_and_b32 v%d, s%d, v%d" % (65 + 2 * i, sMsk, 48 + i))]
        if ks >= 28: lg.wait("o%d" % (ks - 28))
        lim = min(36 if ks >= KO else 28, max(ks, 8) + D2)
        m = 0
        for cf in range(2):
            for rf in range(2):
                d = v(AC2 + (rf * 2 + cf) * 16, 16)
                A("%s %s, %s, %s, %s" % (MF, d, Breg(ks, cf), AFr(ks, rf), d if ks else "0"))
                m += 1
                flush_held()
                if m == 2 and 27 <= ks < 35: rdO(ks - 27)
                if m in (1, 3) and nl[0] < lim and (nl[0] < 14 or ks >= 2):
                    loadA(nl[0]); nl[0] += 1
                used = 0
                while fin and fin[0][0] == -4 and used < 12:
                    fin.pop(0)[1](); used += 4
                while fin and fin[0][0] > 0 and used < 20:
                    c_, f = fin.pop(0); f(); used += c_
                if fin and fin[0][0] == -8: run_hold(fin.pop(0)[1])
    stamp("p2end")
    assert not fin and not held
    for i in range(1, 4):
        for j in range(4): A("ds_write_b128 v40, %s offset:%d" % (v(AC2 + i * 16 + 4 * j, 4), (i - 1) * 4096 + j * 1024))
    M("s_waitcnt lgkmcnt(0)", "s_barrier")
    for i in range(1, 4):
        for j in range(4): lg.issue("ds_read_b128 %s, v%d offset:%d" % (v(AC2 + i * 16 + 4 * j, 4), 40 + i, (i - 1) * 4096 + j * 1024), "r%d" % i)
    if not OPT["noat"]:
        M("s_cmp_lg_u32 s%d, 0" % sW, "s_cbranch_scc1 L_noep", ("s_mov_b32 s3, s%d" % (sDBG + 2)) if OPT["satom"] else ("v_readfirstlane_b32 s3, v%d" % vRet), "s_cmp_lg_u32 s3, 255", "s_cbranch_scc1 L_noep",
          "s_mov_b32 s3, 0x%x" % EOFF, "s_mov_b64 exec, 1")
        A("buffer_store_dwordx2 %s, v%d, s[%d:%d], s3 offen" % (v(vTag, 2), vL16, sWS, sWS + 3))
        A("s_mov_b64 exec, -1")
        A.label("L_noep")
    PA = lambda d, x, y: A("v_pk_add_f32 %s, %s, %s" % (v(d, 2), v(x, 2), v(y, 2)))
    lg.wait("r1")
    for i in range(0, 16, 2): PA(AC2 + i, AC2 + i, AC2 + 16 + i)
    lg.wait("r2")
    for i in range(0, 16, 2): PA(AC2 + i, AC2 + i, AC2 + 32 + i)
    lg.wait("r3")
    for i in range(0, 16, 2): PA(AC2 + i, AC2 + i, AC2 + 48 + i)
    for jj in range(2):
        for i in range(4): A("v_permlane32_swap_b32 v%d, v%d" % (AC2 + 8 * jj + i, AC2 + 8 * jj + 4 + i))
    for i in range(0, 16, 2): PA(64 + i, 64 + i, AC2 + i)
    for i in range(8): cv(T + i, 64 + 2 * i)
    A("buffer_store_dwordx4 %s, v%d, s[%d:%d], s%d offen" % (v(T, 4), vXo, sOUT, sOUT + 3, sOo))
    A("buffer_store_dwordx4 %s, v%d, s[%d:%d], s%d offen offset:32" % (v(T + 4, 4), vXo, sOUT, sOUT + 3, sOo))
    if OPT.get("diagx"):
        M("s_mov_b64 exec, 1", "buffer_load_dword v60, off, s[%d:%d], 0 offset:16 sc1" % (sDBG, sDBG + 3), "s_waitcnt vmcnt(0)", "v_readfirstlane_b32 s3, v60",
          "s_bcnt1_i32_b32 s3, s3", "s_cmp_le_u32 s3, 1", "s_cbranch_scc1 L_dx", "s_mov_b32 s3, 300")
        A.label("L_dx1")
        M("s_sleep 2", "s_sub_u32 s3, s3, 1", "s_cmp_lg_u32 s3, 0", "s_cbranch_scc1 L_dx1")
        A.label("L_dx")
    stamp_flush()
    A("s_endpgm")
    A.label("A_short")
    vm.load(sv_short)
    for i in range(16): M("v_mov_b32 v%d, 0" % (O0 + i), "v_mov_b32 v%d, 0" % (O1 + i))
    for i in range(4): A("v_mov_b32 v%d, 0" % (P + 4 + i))
    M("s_cmp_le_u32 s%d, %d" % (sI0, OPT["pubh"]), "s_cbranch_scc1 A_sh1")
    vm.wait("sth"); publish(sFl)
    A.label("A_sh1")
    if not EL: loadA(2); loadA(3)
    M("s_cmp_lg_u32 s%d, 8" % sI0, "s_cbranch_scc1 A_sh1b")
    if EL: loadA(0); loadA(1); loadA(2)
    else: loadA(4); loadA(5)
    A.label("A_sh1b")
    A("s_mov_b32 s%d, s%d" % (sCnt, sI0))
    A.label("A_sh2")
    wo2()
    M("s_sub_u32 s%d, s%d, 1" % (sCnt, sCnt), "s_cmp_lg_u32 s%d, 0" % sCnt, "s_cbranch_scc1 A_sh2")
    M("s_waitcnt lgkmcnt(0)", "s_cmp_eq_u32 s%d, 8" % sI0, "s_cbranch_scc1 A_sh3")
    A("%s %s, %s, %s, 0" % (MF, v(S0, 16), v(K0, 4), v(Q0, 4)))
    M("s_sub_u32 s%d, 7, s%d" % (sCnt, sI0), "s_nop 9", "s_cmp_eq_u32 s%d, 7" % sI0, "s_cbranch_scc1 A_b7", "s_branch A_mid")
    A.label("A_sh3")
    if OPT["noat"]:
        M("s_cmp_lg_u32 s%d, 0" % sP, "s_cbranch_scc1 A_sh4",
          "v_lshrrev_b32 v40, 4, v%d" % vLane, "v_and_b32 v41, 15, v%d" % vLane, "v_lshlrev_b32 v41, 7, v41", "v_lshl_add_u32 v40, v40, 13, v41",
          "s_mov_b32 s%d, 0x20000" % sSpin)
        A.label("A_ep")
        for j in range(4): M("s_mov_b32 s3, 0x%x" % (FH + j * 32768), "buffer_load_dwordx2 %s, v40, s[%d:%d], s3 offen sc1" % (v(32 + 2 * j, 2), sWS, sWS + 3))
        A("s_waitcnt vmcnt(0)")
        M("v_cmp_eq_u64 vcc, v[32:33], %s" % v(vTag, 2), "v_cmp_eq_u64 s[4:5], v[34:35], %s" % v(vTag, 2), "v_cmp_eq_u64 s[6:7], v[36:37], %s" % v(vTag, 2),
          "s_and_b64 vcc, vcc, s[4:5]", "v_cmp_eq_u64 s[4:5], v[38:39], %s" % v(vTag, 2), "s_and_b64 vcc, vcc, s[6:7]", "s_and_b64 vcc, vcc, s[4:5]",
          "s_cmp_eq_u64 vcc, -1", "s_cbranch_scc1 A_ep2",
          "s_sub_u32 s%d, s%d, 1" % (sSpin, sSpin), "s_cmp_lg_u32 s%d, 0" % sSpin, "s_cbranch_scc1 A_ep")
        A.label("A_ep2")
        M("s_mov_b32 s3, 0x%x" % EOFF, "s_mov_b64 exec, 0xffff")
        A("buffer_store_dwordx2 %s, v%d, s[%d:%d], s3 offen" % (v(vTag, 2), vL8, sWS, sWS + 3))
        A("s_mov_b64 exec, -1")
        A.label("A_sh4")
    A("%s %s, %s, %s, %s" % (MF, v(S0, 16), v(K0, 4), v(Q0, 4), v(MD, 16)))
    M("s_nop 11", "s_branch A_b8")
    A.label("A_fb")
    for h in range(2):
        Qh, O, Vr = (Q0, O0, V0) if h == 0 else (Q1, O1, V1)
        vM = 44
        for pas in range(2):
            Lp = "A_fb%d%d" % (h, pas)
            M("v_mov_b32 v%d, v12" % vKA, "v_mov_b32 v%d, v13" % vVA, "s_mov_b32 s%d, s%d" % (sCnt, sI0))
            if pas == 0: A("v_mov_b32 v%d, 0xff800000" % vM)
            else:
                for i in range(16): A("v_mov_b32 v%d, 0" % (O + i))
            A.label(Lp)
            A("ds_read_b128 %s, v%d offset:%d" % (v(K0, 4), vKA, h * 12288))
            if pas == 1: rdV(h, 0)
            M("s_waitcnt lgkmcnt(0)", "s_cmp_eq_u32 s%d, 0" % sCnt, "s_cbranch_scc1 %s_e" % Lp, "s_cmp_eq_u32 s%d, 8" % sCnt, "s_cbranch_scc1 %s_d" % Lp)
            M("%s %s, %s, %s, 0" % (MF, v(S0, 16), v(K0, 4), v(Qh, 4)), "s_branch %s_j" % Lp)
            A.label(Lp + "_e"); M("%s %s, %s, %s, %s" % (MF, v(S0, 16), v(K0, 4), v(Qh, 4), v(ME, 16)), "s_branch %s_j" % Lp)
            A.label(Lp + "_d"); A("%s %s, %s, %s, %s" % (MF, v(S0, 16), v(K0, 4), v(Qh, 4), v(MD, 16)))
            A.label(Lp + "_j")
            A("s_nop 15")
            if pas == 0:
                for i in range(16): A("v_max_f32 v%d, v%d, v%d" % (vM, vM, S0 + i))
            else:
                for i in range(16): A("v_sub_f32 v%d, v%d, v%d" % (S0 + i, S0 + i, vM))
                for i in range(16): ex_(S0 + i)
                for i in range(8): cv(P + i, S0 + 2 * i)
                A("%s %s, %s, %s, %s" % (MF, v(O, 16), v(Vr, 4), v(P, 4), v(O, 16)))
                A("%s %s, %s, %s, %s" % (MF, v(O, 16), v(Vr + 4, 4), v(P + 4, 4), v(O, 16)))
            M("v_add_u32 v%d, 1024, v%d" % (vKA, vKA), "v_add_u32 v%d, 2048, v%d" % (vVA, vVA),
              "s_add_u32 s%d, s%d, 1" % (sCnt, sCnt), "s_cmp_le_u32 s%d, 8" % sCnt, "s_cbranch_scc1 %s" % Lp)
            if pas == 0: M("v_mov_b32 v45, v%d" % vM, "v_permlane32_swap_b32 v%d, v45" % vM, "v_max_f32 v%d, v%d, v45" % (vM, vM))
    A("s_nop 15")
    M("v_rcp_f32 v40, v%d" % (O0 + 8), "v_rcp_f32 v41, v%d" % O1)
    M("s_nop 4", "s_branch A_fin2")
    A.label("L_end")
    A("s_endpgm")
    return A

def build():
    kn = NAME + "_kernel"
    lines = hazard.fix(gen().lines, True)
    t = "; generated by gen/v13.py\n; @launch grid=(256,1,1) block=(256,1,1) lds=163840\n"
    t += '.amdgcn_target "amdgcn-amd-amdhsa--gfx950"\n'
    t += kernel_header(kn) + "\n".join(lines) + "\n"
    t += kernel_desc(kn, 512, 102, 256)
    import subprocess, re
    open("_p1.s", "w").write(re.sub(r"OFF_L_\w+", "0x12345", t.replace("CODE_SPAN", "0x12345")))
    subprocess.run(["clang", "-x", "assembler", "-target", "amdgcn-amd-amdhsa", "-mcpu=gfx950", "-c", "_p1.s", "-o", "_p1.o"], check=True)
    h = subprocess.run(["llvm-objdump", "-h", "_p1.o"], capture_output=True, text=True).stdout
    size = int(re.search(r"\.text\s+([0-9a-f]+)", h).group(1), 16)
    syms = {}
    for ln in subprocess.run(["llvm-objdump", "-t", "_p1.o"], capture_output=True, text=True).stdout.splitlines():
        p = ln.split()
        if len(p) >= 5 and p[-1].startswith("L_"): syms[p[-1]] = int(p[0], 16)
    if "L_pc" in syms:
        for nm in set(re.findall(r"OFF_(L_\w+)", t)): t = t.replace("OFF_" + nm, "0x%x" % ((syms[nm] - syms["L_pc"]) | 0x10000000 & 0))
    print("code bytes:", size)
    t = t.replace("CODE_SPAN", "0x%x" % (size - 256))
    if OPT["stamp"]: t += "; STAMPS " + " ".join(NAMES[i] for i in sorted(NAMES)) + "\n"
    return t

if __name__ == "__main__":
    args = [x for x in sys.argv[1:] if not x.startswith("--")]
    for x in sys.argv[1:]:
        if x.startswith("--"):
            k, _, val = x[2:].partition("=")
            OPT[k] = (val if "," in val else int(val)) if val else True
    out = args[0] if args else "cdna_kernels/%s.s" % NAME
    open(out, "w").write(build())
```
